```python
import torch

def _softmax(x, axis=-1):
    return torch.softmax(x, dim=axis)
def _gelu(x):
    return torch.nn.functional.gelu(x, approximate="tanh")
def _silu(x):
    return torch.nn.functional.silu(x)
def _sigmoid(x):
    return torch.sigmoid(x)
def _layernorm(x, axis=-1, eps=1e-5):
    m = x.mean(dim=axis, keepdim=True)
    v = x.var(dim=axis, keepdim=True, unbiased=False)
    return (x - m) / torch.sqrt(v + eps)
def _scatter_add(tgt, idx, src, axis=0):
    return tgt.clone().index_add_(axis, idx, src)
def _segment_sum(src, seg, n):
    out = torch.zeros((n,) + src.shape[1:], dtype=src.dtype)
    return out.index_add_(0, seg, src)
def _pad(x, pw):
    flat = tuple(v for pair in reversed(pw) for v in pair)
    return torch.nn.functional.pad(x, flat)

kernel_name = 'concat_heads__spectral_fnet__mha_block__prompt'

def setup_inputs():

    _w = (lambda a: (lambda t: t.to(torch.bfloat16) if t.is_floating_point() else t)(torch.as_tensor(a)))
    def _A_setup():
        B, S, D = 1, 2048, 1024
        ns = torch.arange(S)[:, None] * torch.arange(S)[None, :]
        nd = torch.arange(D)[:, None] * torch.arange(D)[None, :]
        Ws_re = torch.cos(-2.0 * torch.pi * ns / S).to(float)
        Ws_im = torch.sin(-2.0 * torch.pi * ns / S).to(float)
        Wd_re = torch.cos(-2.0 * torch.pi * nd / D).to(float)
        Wd_im = torch.sin(-2.0 * torch.pi * nd / D).to(float)
        return {
            "x": _w((lambda *s: torch.randn(*s, dtype=torch.bfloat16) * 0.05)(B, S, D)),
            "dft_seq_re": _w(Ws_re),
            "dft_seq_im": _w(Ws_im),
            "dft_hid_re": _w(Wd_re),
            "dft_hid_im": _w(Wd_im),
        }
    _A_in = _A_setup()

    def _B_setup():
        B, S, D, H = 1, 2048, 1024, 32
        return {
            "x": _w((lambda *s: torch.randn(*s, dtype=torch.bfloat16) * 0.2)(B, S, D)),
            "wqkv": _w((lambda *s: torch.randn(*s, dtype=torch.bfloat16) * 0.8)(D, 3 * D)),
            "wo": _w((lambda *s: torch.randn(*s, dtype=torch.bfloat16) * 0.2)(D, D)),
        }
    _B_in = _B_setup()

    return {
        "A_x": _A_in["x"],
        "A_dft_seq_re": _A_in["dft_seq_re"],
        "A_dft_seq_im": _A_in["dft_seq_im"],
        "A_dft_hid_re": _A_in["dft_hid_re"],
        "A_dft_hid_im": _A_in["dft_hid_im"],
        "B_x": _B_in["x"],
        "B_wqkv": _B_in["wqkv"],
        "B_wo": _B_in["wo"],
    }

def reference(A_x, A_dft_seq_re, A_dft_seq_im, A_dft_hid_re, A_dft_hid_im, B_x, B_wqkv, B_wo):
    def _A_ref(x, dft_seq_re, dft_seq_im, dft_hid_re, dft_hid_im):
        a = torch.einsum("bsd,ed->bse", x, dft_hid_re)
        b = torch.einsum("bsd,ed->bse", x, dft_hid_im)
        y = torch.einsum("ts,bse->bte", dft_seq_re, a) - torch.einsum("ts,bse->bte", dft_seq_im, b)
        return y

    def _B_ref(x, wqkv, wo):
        B, S, D = x.shape
        H = 32
        Dh = D // H
        qkv = (lambda x, *d: x.permute(*d))((x @ wqkv).reshape(B, S, 3, H, Dh), 2, 0, 3, 1, 4)
        q, k, v = qkv[0], qkv[1], qkv[2]
        scores = torch.einsum("bhqd,bhkd->bhqk", q, k) * (Dh ** -0.5)
        p = _softmax(scores, axis=-1)
        o = torch.einsum("bhqk,bhkd->bhqd", p, v)
        return (lambda x, *d: x.permute(*d))(o, 0, 2, 1, 3).reshape(B, S, D) @ wo

    a = _A_ref(A_x, A_dft_seq_re, A_dft_seq_im, A_dft_hid_re, A_dft_hid_im)
    b = _B_ref(B_x, B_wqkv, B_wo)
    return torch.concatenate([a, b], axis=-1)
```

```python
import re

TRANS = {"v_exp_f32","v_log_f32","v_rcp_f32","v_rsq_f32","v_sqrt_f32","v_sin_f32","v_cos_f32","v_exp_f16","v_rcp_iflag_f32"}
RMW = {"v_fmac_f32","v_dot2c_f32_bf16","v_pk_fmac_f16","v_fmac_f16"}
NODEST_S = ("s_cmp","s_waitcnt","s_barrier","s_branch","s_cbranch","s_nop","s_setprio","s_endpgm","s_sleep","s_bitcmp","s_sendmsg")

_reg_re = re.compile(r"^(-?)(?:abs\()?\|?([vas])(\d+)\)?\|?$")
_rng_re = re.compile(r"^(-?)([vas])\[(\d+):(\d+)\]$")

def regs_of(tok):
    tok = tok.strip()
    m = _reg_re.match(tok)
    if m: return [m.group(2)+m.group(3)]
    m = _rng_re.match(tok)
    if m: return [m.group(2)+str(i) for i in range(int(m.group(3)), int(m.group(4))+1)]
    if tok in ("vcc","exec"): return [tok]
    if tok in ("vcc_lo","vcc_hi"): return ["vcc"]
    if tok in ("exec_lo","exec_hi"): return ["exec"]
    if tok == "m0": return ["m0"]
    return []

class Ins:
    __slots__ = ("text","mn","reads","writes","cls","passes","dtuple","ctuple","ab","target","nopn","is_store_wide","lds_dma","dpp")
    def __init__(self, text):
        self.text = text
        body = text.split(";")[0].strip()
        parts = body.split(None, 1)
        mn = parts[0]
        for suf in ("_e32","_e64","_dpp","_sdwa"):
            if mn.endswith(suf): mn = mn[:-len(suf)]
        self.mn = mn
        rest = parts[1] if len(parts) > 1 else ""
        ops = [o.strip() for o in rest.split(",")] if rest else []
        mods = ""
        if ops:
            lp = ops[-1].split(None, 1)
            ops[-1] = lp[0]
            mods = lp[1] if len(lp) > 1 else ""
        self.reads = []; self.writes = []; self.passes = 0; self.dtuple=None; self.ctuple=None; self.ab=[]
        self.target=None; self.nopn=1; self.is_store_wide=False; self.lds_dma=False
        self.dpp = ("row_" in mods) or ("quad_perm" in mods) or ("wave_" in mods)
        R = lambda idxs: [r for i in idxs for r in regs_of(ops[i])]
        n = len(ops)
        if mn.startswith("v_mfma"):
            self.cls = "mfma"
            self.passes = 8 if ("32x32x16" in mn or "32x32x8" in mn) else 4
            assert "32x32x16" in mn or "16x16x32" in mn, mn
            self.writes = R([0]); self.ab = R([1,2]); c = R([3])
            self.reads = self.ab + c
            self.dtuple = tuple(self.writes); self.ctuple = tuple(c)
        elif mn.startswith("v_cmp"):
            self.cls = "valu"; self.writes = R([0]); self.reads = R(range(1,n))
            if mn.startswith("v_cmpx"): self.writes.append("exec")
        elif mn.startswith("v_permlane") and "swap" in mn:
            self.cls = "valu"; self.writes = R([0,1]); self.reads = R([0,1])
        elif mn in ("v_add_co_u32","v_sub_co_u32","v_addc_co_u32","v_subb_co_u32"):
            self.cls = "valu"; self.writes = R([0,1]); self.reads = R(range(2,n))
        elif mn.startswith("v_"):
            self.cls = "trans" if mn in TRANS else "valu"
            if mn == "v_nop":
                pass
            else:
                self.writes = R([0]); self.reads = R(range(1,n))
                if mn in RMW: self.reads += self.writes
        elif mn.startswith("ds_read") or mn.startswith("ds_bpermute") or mn.startswith("ds_swizzle") or mn.startswith("ds_permute"):
            self.cls = "ds"; self.writes = R([0]); self.reads = R(range(1,n))
        elif mn.startswith("ds_"):
            self.cls = "ds"; self.reads = R(range(n))
            if "rtn" in mn: self.writes = R([0])
        elif mn.startswith("buffer_load") or mn.startswith("global_load"):
            self.cls = "vmem"
            if re.search(r"\blds\b", mods) or "load_lds" in mn:
                self.lds_dma = True; self.reads = R(range(n)) + ["m0"]
            else:
                self.writes = R([0]); self.reads = R(range(1,n))
        elif mn.startswith("buffer_store") or mn.startswith("global_store"):
            self.cls = "vmem"; self.reads = R(range(n))
            self.is_store_wide = mn.endswith("x4") or mn.endswith("x3")
            self.ab = R([0]) if mn.startswith("buffer") else R([1])
        elif mn.startswith("buffer_atomic") or mn.startswith("global_atomic"):
            self.cls = "vmem"; self.reads = R(range(n))
            if "sc0" in mods: self.writes = R([0])
        elif mn.startswith("buffer_") :
            self.cls = "vmem"
        elif mn.startswith("s_"):
            self.cls = "salu"
            if mn == "s_nop":
                self.nopn = int(ops[0], 0) + 1
            elif mn.startswith("s_branch") or mn.startswith("s_cbranch"):
                self.target = ops[0]
            elif mn.startswith(NODEST_S):
                self.reads = R(range(n))
            else:
                self.writes = R([0]); self.reads = R(range(1,n))
                if "saveexec" in mn: self.writes.append("exec")
        else:
            raise ValueError("unknown instr " + text)

class Asm:
    def __init__(self):
        self.items = []
    def I(self, text):
        for t in text.strip().split("\n"):
            t = t.strip()
            if t: self.items.append(("i", Ins(t)))
    def L(self, name): self.items.append(("l", name))
    def R(self, text): self.items.append(("r", text))
    def C(self, text): self.items.append(("r", "    ; " + text))

    @staticmethod
    def _need(ins, st):
        need = 0; why = None
        def chk(key, n):
            nonlocal need, why
            a = st.get(key)
            if a is not None and n - a > need:
                need = n - a; why = key
        c = ins.cls
        isv = c in ("valu","trans")
        for r in ins.reads:
            if r[0] in "va" and r not in ("vcc",):
                if c == "mfma":
                    chk(("vw", r), 2)
                    for p in (4, 8):
                        if r in ins.ab:
                            chk(("mw", r, p), 12 if p == 8 else 8)
                        if r in ins.ctuple:
                            d = st.get(("mwt", r, p))
                            if d is not None and not (d[1] == ins.ctuple and p == ins.passes):
                                chk(("mw", r, p), 10 if p == 8 else 6)
                else:
                    for p in (4, 8): chk(("mw", r, p), 12 if p == 8 else 8)
                    if isv:
                        if c == "valu": chk(("tw", r), 1)
                        if ins.mn.startswith("v_permlane") or ins.dpp: chk(("vw", r), 2)
                        if ins.mn in ("v_readfirstlane_b32","v_readlane_b32"): chk(("vw", r), 1)
            else:
                if isv or c == "mfma": chk(("sw", r), 2)
                if ins.mn in ("v_readlane_b32","v_writelane_b32"): chk(("sw", r), 4)
                if c == "vmem": chk(("sw", r), 5)
                if c == "salu": chk(("sw", r), 1)
                if r == "m0" and ins.lds_dma: chk(("m0w",), 1)
        for r in ins.writes:
            if r[0] in "va" and r != "vcc":
                if c != "mfma":
                    for p in (4, 8): chk(("mw", r, p), 12 if p == 8 else 8)
                    if isv:
                        for p in (4, 8): chk(("mc", r, p), 7 if p == 8 else 3)
                        chk(("sd", r), 2)
                    else:
                        chk(("sd", r), 1)
                else:
                    for p in (4, 8):
                        d = st.get(("mwt", r, p))
                        if d is not None and not (d[1] == ins.dtuple and p == ins.passes):
                            chk(("mw", r, p), 10 if p == 8 else 6)
                    chk(("sd", r), 2)
        if c == "mfma": chk(("execw",), 4)
        if ins.mn.startswith("v_permlane") or ins.mn in ("v_readfirstlane_b32","v_readlane_b32","v_writelane_b32"): chk(("execw",), 4)
        if ins.dpp: chk(("execw",), 5)
        return need, why

    @staticmethod
    def _age(st, n):
        out = {}
        for k, a in st.items():
            if k[0] == "mwt":
                if a[0] + n < 24: out[k] = (a[0] + n, a[1])
            elif a + n < 24: out[k] = a + n
        return out

    @staticmethod
    def _apply(ins, st):
        c = ins.cls
        st = Asm._age(st, ins.nopn)
        if c in ("valu","trans"):
            for r in ins.writes:
                if r[0] in "va" and r != "vcc":
                    st[("vw", r)] = 0
                    if c == "trans": st[("tw", r)] = 0
                    else: st.pop(("tw", r), None)
                elif r == "exec": st[("execw",)] = 0
                else: st[("sw", r)] = 0
        elif c == "mfma":
            for r in ins.writes:
                for p in (4,8):
                    st.pop(("mw", r, p), None); st.pop(("mwt", r, p), None)
                st[("mw", r, ins.passes)] = 0
                st[("mwt", r, ins.passes)] = (0, ins.dtuple)
            for r in ins.ctuple: st[("mc", r, ins.passes)] = 0
        elif c == "salu":
            if "m0" in ins.writes: st[("m0w",)] = 0
            for r in ins.writes: st.pop(("sw", r), None)
        elif c == "vmem" and ins.is_store_wide:
            for r in ins.ab: st[("sd", r)] = 0
        return st

    @staticmethod
    def _merge(a, b):
        if a is None: return dict(b)
        out = dict(a)
        for k, v in b.items():
            if k not in out: out[k] = v
            elif k[0] == "mwt":
                o = out[k]
                out[k] = (min(o[0], v[0]), o[1] if o[1] == v[1] else ("?",))
            else: out[k] = min(out[k], v)
        return out

    def finalize(self, verbose=True):
        saved = {}
        result = None
        for it in range(6):
            new_saved = {}
            out = []; st = {}; alive = True; nins = 0
            for kind, x in self.items:
                if kind == "l":
                    s = st if alive else None
                    for src in (saved.get(x), new_saved.get(x)):
                        if src is not None: s = Asm._merge(s, src)
                    st = s if s is not None else {}
                    alive = True
                    out.append(x + ":")
                elif kind == "r":
                    out.append(x)
                    if x.startswith(".p2align 8"): st = {}; alive = True
                else:
                    need, why = Asm._need(x, st)
                    while need > 0:
                        k = min(need, 16)
                        out.append(f"    s_nop {k-1}")
                        st = Asm._age(st, k); need -= k; nins += 1
                    out.append("    " + x.text)
                    st = Asm._apply(x, st)
                    if x.target is not None:
                        new_saved[x.target] = Asm._merge(new_saved.get(x.target), st)
                        if x.mn == "s_branch": alive = False
                    if x.mn == "s_endpgm": alive = False
            if result == out: break
            result = out; saved = new_saved
        if verbose: print(f"hazard pass: {nins} nops inserted, {it+1} iterations")
        return "\n".join(result) + "\n"
```

```python
import sys, os
sys.path.insert(0, os.path.dirname(os.path.abspath(__file__)))
from asmlib import Asm

MB_ = 1 << 20
WS_ABF = 0
WS_QF = 8 * MB_
WS_KV = 12 * MB_
KV_HSTRIDE = 65 * 4096
WS_OF = 21 * MB_
WS_PF = 25 * MB_
WS_QPF = 29 * MB_
WS_END = 33 * MB_
BIG = 0x80000000
QSCALE = 1.4426950408889634 / (32 ** 0.5)

import struct
def f32hex(x): return "0x%08x" % struct.unpack("<I", struct.pack("<f", x))[0]

def v(i, n=1): return f"v{i}" if n == 1 else f"v[{i}:{i+n-1}]"
def s(i, n=1): return f"s{i}" if n == 1 else f"s[{i}:{i+n-1}]"

class Alloc:
    def __init__(self, start, limit): self.n = start; self.limit = limit; self.hi = start
    def get(self, cnt=1, align=1):
        self.n = (self.n + align - 1) // align * align
        r = self.n; self.n += cnt
        assert self.n <= self.limit, ("register overflow", self.n, self.limit)
        self.hi = max(self.hi, self.n)
        return r

S_PTR = 8
P_AX, P_CR, P_CI, P_WR, P_WI, P_BX, P_WQKV, P_WO = [8 + 2 * i for i in range(8)]
P_OUT = 24; P_WS = 26
S_WAVE = 3
S_FREE0 = 28

def kernel_head(a, name, grid):
    a.R(".p2align 8")
    a.R(f".globl {name}")
    a.R(f".type {name},@function")
    a.L(name)
    a.I(f"s_cmp_ge_u32 s2, {grid}")
    a.I(f"s_cbranch_scc1 {name}_end")
    a.I("s_load_dwordx16 s[8:23], s[0:1], 0")
    a.I("s_load_dwordx2 s[24:25], s[0:1], 64")
    a.I("s_load_dwordx2 s[26:27], s[0:1], 80")
    a.I("v_lshrrev_b32 v1, 6, v0")
    a.I("v_and_b32 v0, 63, v0")
    a.I(f"v_readfirstlane_b32 s{S_WAVE}, v1")
    stamp(a, 0); stamp_rt(a, 1)

def kernel_tail(a, name):
    a.L(f"{name}_end")
    a.I("s_endpgm")

STAMP = os.environ.get("STAMP") == "1"
WS_STAMP = 40 * MB_
S_ST = 84
def stamp(a, i):
    if STAMP:
        a.I(f"s_memtime s[{S_ST+2*i}:{S_ST+2*i+1}]")
def stamp_rt(a, i):
    if STAMP:
        a.I(f"s_memrealtime s[{S_ST+2*i}:{S_ST+2*i+1}]")
def stamp_out(a, kidx):
    if not STAMP: return
    a.I("s_waitcnt vmcnt(0) lgkmcnt(0)")
    stamp(a, 6); stamp_rt(a, 7)
    a.I("s_waitcnt lgkmcnt(0)")
    a.I(f"s_mov_b32 s76, s{P_WS}")
    a.I(f"s_mov_b32 s77, s{P_WS+1}")
    a.I(f"s_mov_b32 s78, {WS_STAMP + 8*MB_}")
    a.I(f"s_mov_b32 s79, 0x00020000")
    a.I(f"s_lshl_b32 s80, s2, 3")
    a.I(f"s_add_u32 s80, s80, s{S_WAVE}")
    a.I(f"s_lshl_b32 s80, s80, 5")
    a.I(f"s_add_u32 s80, s80, {WS_STAMP + kidx*MB_}")
    for i in range(8): a.I(f"v_mov_b32 v{8+i}, s{S_ST+2*i}")
    a.I("v_mov_b32 v1, 0")
    a.I("buffer_store_dwordx4 v[8:11], v1, s[76:79], s80 offen")
    a.I("buffer_store_dwordx4 v[12:15], v1, s[76:79], s80 offen offset:16")

def make_srd(a, sr, ptr, nbytes):
    a.I(f"s_mov_b32 s{sr}, s{ptr}")
    a.I(f"s_mov_b32 s{sr+1}, s{ptr+1}")
    a.I(f"s_mov_b32 s{sr+2}, {nbytes}")
    a.I(f"s_mov_b32 s{sr+3}, 0x00020000")

def interleave(main, fill, lead=0):
    out = list(fill[:lead]); rest = fill[lead:]
    n = len(main)
    for i, m in enumerate(main):
        out.append(m)
        lo = len(rest) * i // n; hi = len(rest) * (i + 1) // n
        out += rest[lo:hi]
    return out

class OpRM:
    def __init__(self, nrows, pitch, ldsoff):
        self.nrows = nrows; self.pitch = pitch; self.ldsoff = ldsoff
        self.bytes = nrows * 128; self.step = 128; self.npieces = nrows // 8
    def setup(self, a, va, sa, srd, s_row0, s_dw, ndw, s_blk0, tmp):
        self.srd = srd
        per = self.npieces // ndw; self.per = per
        t0, t1, t2 = tmp, tmp + 1, tmp + 2
        st = sa.get()
        self.voff = []
        a.I(f"v_lshrrev_b32 {v(t0)}, 3, v0")
        a.I(f"s_mul_i32 s{st}, s{s_dw}, {per*8}")
        a.I(f"s_add_u32 s{st}, s{st}, s{s_row0}")
        a.I(f"v_add_u32 {v(t0)}, s{st}, {v(t0)}")
        a.I(f"s_mov_b32 s{st}, {self.pitch}")
        a.I(f"v_mul_lo_u32 {v(t0)}, {v(t0)}, s{st}")
        a.I(f"v_lshrrev_b32 {v(t1)}, 4, v0")
        a.I(f"v_xor_b32 {v(t1)}, {v(t1)}, v0")
        a.I(f"v_and_b32 {v(t1)}, 7, {v(t1)}")
        a.I(f"v_xor_b32 {v(t2)}, 4, {v(t1)}")
        a.I(f"v_lshl_add_u32 {v(t1)}, {v(t1)}, 4, {v(t0)}")
        a.I(f"v_lshl_add_u32 {v(t2)}, {v(t2)}, 4, {v(t0)}")
        assert per % 2 == 0 or per == 1
        for p in range(per):
            r = va.get()
            if per == 1:
                raise NotImplementedError
            src = t1 if p % 2 == 0 else t2
            a.I(f"v_add_u32 {v(r)}, {p*8*self.pitch - (p%4)*1024}, {v(src)}")
            self.voff.append(r)
        self.s_wb = sa.get()
        a.I(f"s_mul_i32 s{self.s_wb}, s{s_dw}, {per*1024}")
        a.I(f"s_add_u32 s{self.s_wb}, s{self.s_wb}, {self.ldsoff}")
        self.rb = [va.get() for _ in range(4)]
        a.I(f"v_and_b32 {v(t0)}, 31, v0")
        a.I(f"v_lshlrev_b32 {v(t0)}, 7, {v(t0)}")
        a.I(f"s_lshl_b32 s{st}, s{s_blk0}, 12")
        a.I(f"s_add_u32 s{st}, s{st}, {self.ldsoff}")
        a.I(f"v_add_u32 {v(t0)}, s{st}, {v(t0)}")
        a.I(f"v_bfe_u32 {v(t1)}, v0, 1, 3")
        a.I(f"v_lshrrev_b32 {v(t2)}, 5, v0")
        a.I(f"v_xor_b32 {v(t1)}, {v(t1)}, {v(t2)}")
        for g in range(4):
            a.I(f"v_xor_b32 {v(t2)}, {2*g}, {v(t1)}")
            a.I(f"v_lshl_add_u32 {v(self.rb[g])}, {v(t2)}, 4, {v(t0)}")
        self.bases = list(self.rb)
    def dma(self, s_off, s_k):
        out = []
        for p in range(self.per):
            if p % 4 == 0:
                if p == 0: out.append(f"s_add_u32 m0, s{self.s_wb}, s{s_off}")
                else: out.append(f"s_add_u32 m0, m0, 4096")
            out.append(f"buffer_load_dwordx4 {v(self.voff[p])}, {s(self.srd,4)}, s{s_k} offen offset:{(p%4)*1024} lds")
        return out
    def read(self, blk, g, dst):
        return [f"ds_read_b128 {v(dst,4)}, {v(self.rb[g])} offset:{blk*4096}"]

class OpFM:
    def __init__(self, nblk, bstride, base, ldsoff):
        self.nblk = nblk; self.bstride = bstride; self.base = base; self.ldsoff = ldsoff
        self.bytes = nblk * 4096; self.step = 4096; self.npieces = nblk * 4
    def setup(self, a, va, sa, srd, s_gblk0, s_dw, ndw, s_blk0, tmp):
        self.srd = srd
        per = self.npieces // ndw; self.per = per
        assert per in (2, 4)
        st = sa.get()
        r = va.get(); self.voff = r
        if per == 4:
            a.I(f"s_add_u32 s{st}, s{s_gblk0}, s{s_dw}")
            a.I(f"s_mul_i32 s{st}, s{st}, {self.bstride}")
        else:
            a.I(f"s_lshr_b32 s{st}, s{s_dw}, 1")
            a.I(f"s_add_u32 s{st}, s{s_gblk0}, s{st}")
            a.I(f"s_mul_i32 s{st}, s{st}, {self.bstride}")
            st2 = sa.get()
            a.I(f"s_and_b32 s{st2}, s{s_dw}, 1")
            a.I(f"s_lshl_b32 s{st2}, s{st2}, 11")
            a.I(f"s_add_u32 s{st}, s{st}, s{st2}")
        a.I(f"s_add_u32 s{st}, s{st}, {self.base}")
        a.I(f"v_lshlrev_b32 {v(tmp)}, 4, v0")
        a.I(f"v_add_u32 {v(r)}, s{st}, {v(tmp)}")
        self.s_wb = sa.get()
        a.I(f"s_mul_i32 s{self.s_wb}, s{s_dw}, {per*1024}")
        a.I(f"s_add_u32 s{self.s_wb}, s{self.s_wb}, {self.ldsoff}")
        self.rb = va.get()
        a.I(f"s_lshl_b32 s{st}, s{s_blk0}, 12")
        a.I(f"s_add_u32 s{st}, s{st}, {self.ldsoff}")
        a.I(f"v_add_u32 {v(self.rb)}, s{st}, {v(tmp)}")
        self.bases = [self.rb]
    def dma(self, s_off, s_k):
        out = [f"s_add_u32 m0, s{self.s_wb}, s{s_off}"]
        for p in range(self.per):
            out.append(f"buffer_load_dwordx4 {v(self.voff)}, {s(self.srd,4)}, s{s_k} offen offset:{p*1024} lds")
        return out
    def read(self, blk, g, dst):
        return [f"ds_read_b128 {v(dst,4)}, {v(self.rb)} offset:{blk*4096 + g*1024}"]

class OpTR:
    def __init__(self, nparts, pitch, partstride, ldsoff, perm):
        self.nparts = nparts; self.pitch = pitch; self.partstride = partstride; self.ldsoff = ldsoff
        self.perm = perm
        self.bytes = nparts * 8192; self.step = 64 * pitch; self.npieces = nparts * 8
    def setup(self, a, va, sa, srd, s_col0b, s_dw, ndw, s_half, tmp):
        self.srd = srd
        kg_per = 8 // ndw
        self.kg_per = kg_per
        P = self.nparts
        t0, t1, t2 = tmp, tmp + 1, tmp + 2
        st = sa.get()
        a.I(f"v_lshrrev_b32 {v(t0)}, 3, v0")
        a.I(f"s_mul_i32 s{st}, s{s_dw}, {kg_per*8}")
        a.I(f"v_add_u32 {v(t0)}, s{st}, {v(t0)}")
        a.I(f"s_mov_b32 s{st}, {self.pitch}")
        a.I(f"v_mul_lo_u32 {v(t0)}, {v(t0)}, s{st}")
        a.I(f"v_add_u32 {v(t0)}, s{s_col0b}, {v(t0)}")
        a.I(f"v_lshrrev_b32 {v(t1)}, 2, v0")
        a.I(f"v_and_b32 {v(t1)}, 4, {v(t1)}")
        a.I(f"v_xor_b32 {v(t1)}, {v(t1)}, v0")
        a.I(f"v_and_b32 {v(t1)}, 7, {v(t1)}")
        a.I(f"v_lshl_add_u32 {v(t0)}, {v(t1)}, 4, {v(t0)}")
        self.voff = []
        self.plist = []
        idx = 0
        for kg in range(kg_per):
            for j in range(P):
                r = va.get()
                a.I(f"v_add_u32 {v(r)}, {kg*8*self.pitch + j*self.partstride - (idx%4)*1024}, {v(t0)}")
                self.voff.append(r); idx += 1
        self.per = idx
        self.s_wb = sa.get()
        a.I(f"s_mul_i32 s{self.s_wb}, s{s_dw}, {self.per*1024}")
        a.I(f"s_add_u32 s{self.s_wb}, s{self.s_wb}, {self.ldsoff}")
        self.rb = va.get()
        a.I(f"v_bfe_u32 {v(t0)}, v0, 4, 1")
        a.I(f"v_bfe_u32 {v(t1)}, v0, 1, 1")
        a.I(f"v_lshl_add_u32 {v(t0)}, {v(t0)}, 1, {v(t1)}")
        if s_half is not None:
            a.I(f"s_lshl_b32 s{st}, s{s_half}, 2")
            a.I(f"v_add_u32 {v(t0)}, s{st}, {v(t0)}")
        a.I(f"v_bfe_u32 {v(t1)}, v0, 3, 1")
        a.I(f"v_lshlrev_b32 {v(t1)}, 2, {v(t1)}")
        a.I(f"v_xor_b32 {v(t0)}, {v(t0)}, {v(t1)}")
        a.I(f"v_lshlrev_b32 {v(t0)}, 4, {v(t0)}")
        a.I(f"v_bfe_u32 {v(t1)}, v0, 2, 2")
        a.I(f"v_lshl_add_u32 {v(t0)}, {v(t1)}, 7, {v(t0)}")
        a.I(f"v_and_b32 {v(t1)}, 1, v0")
        a.I(f"v_lshl_add_u32 {v(t0)}, {v(t1)}, 3, {v(t0)}")
        a.I(f"v_lshrrev_b32 {v(t1)}, 5, v0")
        hmul = 512 if self.perm else P * 1024
        a.I(f"v_mul_u32_u24 {v(t1)}, {hmul}, {v(t1)}")
        a.I(f"v_add3_u32 {v(t0)}, {v(t0)}, {v(t1)}, 0")
        a.I(f"v_add_u32 {v(self.rb)}, {self.ldsoff}, {v(t0)}")
        self.bases = [self.rb]
    def dma(self, s_off, s_k):
        out = []
        for p in range(self.per):
            if p % 4 == 0:
                if p == 0: out.append(f"s_add_u32 m0, s{self.s_wb}, s{s_off}")
                else: out.append(f"s_add_u32 m0, m0, 4096")
            out.append(f"buffer_load_dwordx4 {v(self.voff[p])}, {s(self.srd,4)}, s{s_k} offen offset:{(p%4)*1024} lds")
        return out
    def read(self, part, g, dst):
        P = self.nparts
        out = []
        for t in range(2):
            if self.perm: off = (2*g + t) * P * 1024 + part * 1024
            else: off = 2*g * P * 1024 + part * 1024 + t * 512
            out.append(f"ds_read_b64_tr_b16 {v(dst+2*t,2)}, {v(self.rb)} offset:{off}")
        return out

class ExtraDMA:
    pass

def gemm_core(a, pfx, va, sa, R, C, MB, NB, swap, nstages, nbuf, stride, extra=None, pre_loop=None):
    acc = [[va.get(16, 4) for n in range(NB)] for m in range(MB)]
    fr = [[va.get(4, 4) for m in range(MB)] for _ in range(2)]
    fc = [[va.get(4, 4) for n in range(NB)] for _ in range(2)]
    s_off = sa.get(); s_noff = sa.get(); s_delta = sa.get(); s_cnt = sa.get()
    ops = [R, C] + ([extra] if extra else [])
    s_k = [sa.get() for _ in ops]; s_ke = [sa.get() for _ in ops]
    ndma = sum(o.per for o in ops)
    def reads(g, st):
        out = []
        rl = [R.read(m, g, fr[st][m]) for m in range(MB)]
        cl = [C.read(n, g, fc[st][n]) for n in range(NB)]
        for i in range(max(MB, NB)):
            if i < MB: out += rl[i]
            if i < NB: out += cl[i]
        return out
    def mfmas(st):
        out = []
        for m in range(MB):
            for n in range(NB):
                A_, B_ = (fc[st][n], fr[st][m]) if swap[n] else (fr[st][m], fc[st][n])
                out.append(f"v_mfma_f32_32x32x16_bf16 {v(acc[m][n],16)}, {v(A_,4)}, {v(B_,4)}, {v(acc[m][n],16)}")
        return out
    for o, sk in zip(ops, s_k): a.I(f"s_mov_b32 s{sk}, {getattr(o,'k0',0)}")
    a.I(f"s_mov_b32 s{s_off}, 0")
    for b in range(nbuf):
        for o, sk in zip(ops, s_k):
            for t in o.dma(s_off, sk): a.I(t)
            a.I(f"s_add_u32 s{sk}, s{sk}, {o.step}")
        a.I(f"s_add_u32 s{s_off}, s{s_off}, {stride}")
    a.I(f"s_mov_b32 s{s_off}, 0")
    a.I(f"s_mov_b32 s{s_cnt}, 0")
    if pre_loop: pre_loop()
    for m in range(MB):
        for n in range(NB):
            for i in range(16): a.I(f"v_mov_b32 {v(acc[m][n]+i)}, 0")
    a.I(f"s_waitcnt vmcnt({(nbuf-1)*ndma})")
    a.I("s_barrier")
    stamp(a, 2)
    for t in reads(0, 0): a.I(t)
    a.L(f"{pfx}_loop")
    for g in range(4):
        st = g % 2
        if g < 3:
            a.I("s_waitcnt lgkmcnt(0)")
            fill = reads(g + 1, 1 - st)
            if g == 0:
                fill = fill + [f"s_add_u32 s{s_noff}, s{s_off}, {stride}",
                        f"s_cmp_eq_u32 s{s_noff}, {nbuf*stride}",
                        f"s_cselect_b32 s{s_noff}, 0, s{s_noff}",
                        f"s_sub_u32 s{s_delta}, s{s_noff}, s{s_off}"]
            if g == 1:
                fill = fill + [f"s_cmp_lt_u32 s{s_cnt}, {nstages - nbuf}"] + \
                       [f"s_cselect_b32 s{ke}, s{k}, {BIG}" for k, ke in zip(s_k, s_ke)] + \
                       [f"s_add_u32 s{k}, s{k}, {o.step}" for o, k in zip(ops, s_k)]
            for t in interleave(mfmas(st), fill, lead=2): a.I(t)
        else:
            a.I(f"s_waitcnt vmcnt({(nbuf-2)*ndma}) lgkmcnt(0)")
            a.I("s_barrier")
            fill = []
            for o in (R, C):
                for b in o.bases: fill.append(f"v_add_u32 {v(b)}, s{s_delta}, {v(b)}")
            mf = mfmas(st)
            a.I(mf[0])
            for t in fill: a.I(t)
            rest = reads(0, 0)
            for o, ke in zip(ops, s_ke): rest += o.dma(s_off, ke)
            for t in interleave(mf[1:], rest, lead=min(4, len(rest))): a.I(t)
            a.I(f"s_mov_b32 s{s_off}, s{s_noff}")
            a.I(f"s_add_u32 s{s_cnt}, s{s_cnt}, 1")
            a.I(f"s_cmp_lt_u32 s{s_cnt}, {nstages}")
            a.I(f"s_cbranch_scc1 {pfx}_loop")
    stamp(a, 3)
    a.I("s_waitcnt lgkmcnt(0)")
    return acc, fr, fc

def pack_block(a, accr, dst, scale_s=None):
    if scale_s is not None:
        for i in range(16): a.I(f"v_mul_f32 {v(accr+i)}, s{scale_s}, {v(accr+i)}")
    for i in range(8):
        a.I(f"v_cvt_pk_bf16_f32 {v(dst+i)}, {v(accr+2*i)}, {v(accr+2*i+1)}")

def swap_block(a, dst):
    for g in range(2):
        a.I(f"v_permlane32_swap_b32 {v(dst+4*g)}, {v(dst+4*g+2)}")
        a.I(f"v_permlane32_swap_b32 {v(dst+4*g+1)}, {v(dst+4*g+3)}")

def gen_k1(a, cfg):
    name = "k1_kernel"
    kernel_head(a, name, 256)
    a.I("s_and_b32 s4, s2, 7")
    a.I("s_lshr_b32 s5, s2, 3")
    a.I("s_and_b32 s6, s5, 3")
    a.I("s_lshr_b32 s5, s5, 2")
    a.I("s_bfe_u32 s7, s4, 0x10001")
    a.I("s_lshl_b32 s7, s7, 2")
    a.I("s_add_u32 s6, s6, s7")
    a.I("s_and_b32 s7, s4, 1")
    a.I("s_waitcnt lgkmcnt(0)")
    a.I("s_cmp_ge_u32 s4, 4")
    a.I(f"s_cbranch_scc1 {name}_g1")
    hi_v = 0
    va = Alloc(1, 256); sa = Alloc(S_FREE0, 76)
    tmp = va.get(4)
    srdx = sa.get(4, 4); srdw = sa.get(4, 4); srdo = sa.get(4, 4)
    make_srd(a, srdx, P_BX, 2048 * 2048)
    make_srd(a, srdw, P_WQKV, 1024 * 6144)
    make_srd(a, srdo, P_WS, WS_OF)
    s_row0 = sa.get(); s_c = sa.get(); s_col = sa.get(); s_wm2 = sa.get(); s_wn = sa.get()
    a.I(f"s_lshl_b32 s{s_row0}, s6, 8")
    a.I(f"s_lshl_b32 s{s_c}, s7, 3")
    a.I(f"s_add_u32 s{s_c}, s{s_c}, s5")
    a.I(f"s_lshl_b32 s{s_col}, s{s_c}, 7")
    a.I(f"s_lshr_b32 s{s_wm2}, s{S_WAVE}, 1")
    a.I(f"s_lshl_b32 s{s_wm2}, s{s_wm2}, 1")
    a.I(f"s_and_b32 s{s_wn}, s{S_WAVE}, 1")
    R = OpRM(256, 2048, 0); C = OpTR(3, 6144, 2048, 32768, False)
    R.setup(a, va, sa, srdx, s_row0, S_WAVE, 8, s_wm2, tmp)
    C.setup(a, va, sa, srdw, s_col, S_WAVE, 8, s_wn, tmp)
    acc, fr, fc = gemm_core(a, "k1g2", va, sa, R, C, 2, 3, [True, True, False], 16, 2, 57344)
    s_h = sa.get(); s_sb = sa.get(); s_q = sa.get(); s_kv = sa.get(); s_sc = sa.get()
    a.I(f"s_lshl_b32 s{s_h}, s{s_c}, 1")
    a.I(f"s_add_u32 s{s_h}, s{s_h}, s{s_wn}")
    a.I(f"s_lshl_b32 s{s_sb}, s6, 3")
    a.I(f"s_add_u32 s{s_sb}, s{s_sb}, s{s_wm2}")
    a.I(f"s_lshl_b32 s{s_q}, s{s_h}, 6")
    a.I(f"s_add_u32 s{s_q}, s{s_q}, s{s_sb}")
    a.I(f"s_lshl_b32 s{s_q}, s{s_q}, 11")
    a.I(f"s_add_u32 s{s_q}, s{s_q}, {WS_QF}")
    a.I(f"s_mul_i32 s{s_kv}, s{s_h}, {KV_HSTRIDE}")
    a.I(f"s_lshl_b32 s{s_sb}, s{s_sb}, 12")
    a.I(f"s_add_u32 s{s_kv}, s{s_kv}, s{s_sb}")
    a.I(f"s_add_u32 s{s_kv}, s{s_kv}, {WS_KV}")
    a.I(f"s_mov_b32 s{s_sc}, {f32hex(QSCALE)}")
    a.I(f"v_lshlrev_b32 {v(tmp)}, 4, v0")
    a.I(f"v_add_u32 {v(tmp+1)}, 4096, {v(tmp)}")
    a.I(f"v_add_u32 {v(tmp+2)}, 8192, {v(tmp)}")
    pk = fr[0][0]
    slot = 0
    for m in range(2):
        for n in range(3):
            d = pk + 8 * (slot % 5); slot += 1
            pack_block(a, acc[m][n], d, s_sc if n == 0 else None)
            for j in range(2):
                if n == 0:   va_, so, off = tmp, s_q, m * 2048 + j * 1024
                elif n == 1: va_, so, off = tmp + m, s_kv, j * 1024
                else:        va_, so, off = tmp + m + 1, s_kv, 2048 + j * 1024
                a.I(f"buffer_store_dwordx4 {v(d+4*j,4)}, {v(va_)}, {s(srdo,4)}, s{so} offen offset:{off}")
    stamp_out(a, 0)
    a.I("s_endpgm")
    hi_v = max(hi_v, va.hi); hi_s = sa.hi
    a.L(f"{name}_g1")
    va = Alloc(1, 256); sa = Alloc(S_FREE0, 76)
    tmp = va.get(4)
    srdx = sa.get(4, 4); srdw = sa.get(4, 4); srdo = sa.get(4, 4)
    make_srd(a, srdx, P_AX, 2048 * 2048)
    a.I("s_cmp_eq_u32 s7, 0")
    a.I(f"s_cselect_b32 s{srdw}, s{P_WR}, s{P_WI}")
    a.I(f"s_cselect_b32 s{srdw+1}, s{P_WR+1}, s{P_WI+1}")
    a.I(f"s_mov_b32 s{srdw+2}, {1024*2048}")
    a.I(f"s_mov_b32 s{srdw+3}, 0x00020000")
    make_srd(a, srdo, P_WS, WS_QF)
    s_row0 = sa.get(); s_col0 = sa.get(); s_wm2 = sa.get(); s_wn2 = sa.get()
    a.I(f"s_lshl_b32 s{s_row0}, s6, 8")
    a.I(f"s_lshl_b32 s{s_col0}, s5, 7")
    a.I(f"s_lshr_b32 s{s_wm2}, s{S_WAVE}, 1")
    a.I(f"s_lshl_b32 s{s_wm2}, s{s_wm2}, 1")
    a.I(f"s_and_b32 s{s_wn2}, s{S_WAVE}, 1")
    a.I(f"s_lshl_b32 s{s_wn2}, s{s_wn2}, 1")
    R = OpRM(256, 2048, 0); C = OpRM(128, 2048, 32768)
    R.setup(a, va, sa, srdx, s_row0, S_WAVE, 8, s_wm2, tmp)
    C.setup(a, va, sa, srdw, s_col0, S_WAVE, 8, s_wn2, tmp)
    acc, fr, fc = gemm_core(a, "k1g1", va, sa, R, C, 2, 2, [False, False], 16, 3, 49152)
    s_o = sa.get(); s_t = sa.get()
    a.I(f"s_lshl_b32 s{s_o}, s7, 5")
    a.I(f"s_lshl_b32 s{s_t}, s5, 2")
    a.I(f"s_add_u32 s{s_o}, s{s_o}, s{s_t}")
    a.I(f"s_add_u32 s{s_o}, s{s_o}, s{s_wn2}")
    a.I(f"s_lshl_b32 s{s_o}, s{s_o}, 17")
    a.I(f"s_lshl_b32 s{s_t}, s6, 3")
    a.I(f"s_add_u32 s{s_t}, s{s_t}, s{s_wm2}")
    a.I(f"s_lshl_b32 s{s_t}, s{s_t}, 11")
    a.I(f"s_add_u32 s{s_o}, s{s_o}, s{s_t}")
    a.I(f"v_lshlrev_b32 {v(tmp)}, 4, v0")
    a.I(f"v_add_u32 {v(tmp+1)}, {1<<17}, {v(tmp)}")
    pk = fr[0][0]
    slot = 0
    for m in range(2):
        for n in range(2):
            d = pk + 8 * slot; slot += 1
            pack_block(a, acc[m][n], d)
            swap_block(a, d)
            for g in range(2):
                a.I(f"buffer_store_dwordx4 {v(d+4*g,4)}, {v(tmp+n)}, {s(srdo,4)}, s{s_o} offen offset:{m*2048+g*1024}")
    stamp_out(a, 0)
    kernel_tail(a, name)
    hi_v = max(hi_v, va.hi); hi_s = max(hi_s, sa.hi)
    return dict(name=name, grid=256, block=512, lds=147456, vgpr=hi_v, sgpr=hi_s)

class OpLin:
    def __init__(self, per, step, ldsoff):
        self.per = per; self.step = step; self.ldsoff = ldsoff
    def setup(self, a, va, sa, srd, s_gbase, s_dw, tmp):
        self.srd = srd
        st = sa.get()
        self.voff = va.get(); self.s_wb = sa.get()
        a.I(f"s_mul_i32 s{st}, s{s_dw}, {self.per*1024}")
        a.I(f"s_add_u32 s{self.s_wb}, s{st}, {self.ldsoff}")
        a.I(f"s_add_u32 s{st}, s{st}, s{s_gbase}")
        a.I(f"v_lshlrev_b32 {v(tmp)}, 4, v0")
        a.I(f"v_add_u32 {v(self.voff)}, s{st}, {v(tmp)}")
    def dma(self, s_off, s_k):
        out = [f"s_add_u32 m0, s{self.s_wb}, s{s_off}"]
        for p in range(self.per):
            out.append(f"buffer_load_dwordx4 {v(self.voff)}, {s(self.srd,4)}, s{s_k} offen offset:{p*1024} lds")
        return out

MBIAS = 96.0
def att_role(a, cfg, nbuf, stride, kvoff):
    summode = cfg.get("sum", "pk")
    va = Alloc(1, 256); sa = Alloc(S_FREE0, 76)
    tmp = va.get(4)
    vl16 = va.get(); vkv = va.get()
    L = [va.get(2, 2) for _ in range(2)]
    Q = [[va.get(4, 4) for j in range(2)] for qb in range(2)]
    NM = [va.get(16, 4) for _ in range(2)]
    S = [va.get(16, 4) for _ in range(2)]
    O = [va.get(16, 4) for _ in range(2)]
    P = [va.get(8, 4) for _ in range(2)]
    K = [[va.get(4, 4) for j in range(2)] for b in range(2)]
    V = [[va.get(4, 4) for j in range(2)] for b in range(2)]
    srd = sa.get(4, 4)
    make_srd(a, srd, P_WS, WS_PF)
    s_h = sa.get(); s_sb = sa.get(); s_q = sa.get(); s_kv = sa.get(); s_t = sa.get(); s_fb = sa.get()
    s_off = sa.get(); s_noff = sa.get(); s_delta = sa.get(); s_cnt = sa.get(); s_one = sa.get()
    a.I(f"s_lshl_b32 s{s_h}, s4, 2")
    a.I(f"s_lshr_b32 s{s_t}, s5, 3")
    a.I(f"s_add_u32 s{s_h}, s{s_h}, s{s_t}")
    a.I(f"s_and_b32 s{s_sb}, s5, 7")
    a.I(f"s_lshl_b32 s{s_sb}, s{s_sb}, 3")
    a.I(f"s_lshl_b32 s{s_t}, s{S_WAVE}, 1")
    a.I(f"s_add_u32 s{s_sb}, s{s_sb}, s{s_t}")
    a.I(f"s_lshl_b32 s{s_q}, s{s_h}, 6")
    a.I(f"s_add_u32 s{s_q}, s{s_q}, s{s_sb}")
    a.I(f"s_lshl_b32 s{s_q}, s{s_q}, 11")
    a.I(f"s_add_u32 s{s_q}, s{s_q}, {WS_QF}")
    a.I(f"s_mul_i32 s{s_kv}, s{s_h}, {KV_HSTRIDE}")
    a.I(f"s_add_u32 s{s_kv}, s{s_kv}, {WS_KV}")
    a.I(f"v_lshlrev_b32 {v(vl16)}, 4, v0")
    for j in range(2):
        a.I(f"buffer_load_dwordx4 {v(K[0][j],4)}, {v(vl16)}, {s(srd,4)}, s{s_kv} offen offset:{j*1024}")
    for qb in range(2):
        for j in range(2):
            a.I(f"buffer_load_dwordx4 {v(Q[qb][j],4)}, {v(vl16)}, {s(srd,4)}, s{s_q} offen offset:{qb*2048+j*1024}")
    a.I(f"v_add_u32 {v(vkv)}, {kvoff}, {v(vl16)}")
    a.I(f"s_mov_b32 s{s_off}, 0")
    a.I(f"s_mov_b32 s{s_cnt}, 0")
    a.I(f"s_mov_b32 s{s_fb}, 0")
    a.I(f"s_mov_b32 s{s_one}, 0x3f803f80")
    def zero_state():
        for qb in range(2):
            for i in range(16): a.I(f"v_mov_b32 {v(O[qb]+i)}, 0")
            for i in range(2): a.I(f"v_mov_b32 {v(L[qb]+i)}, 0")
    zero_state()
    for i in range(8): a.I(f"v_mov_b32 {v(P[1]+i)}, 0")
    for j in range(2):
        for i in range(4): a.I(f"v_mov_b32 {v(V[0][j]+i)}, 0")
    mf = "v_mfma_f32_32x32x16_bf16"
    def s_mfma(qb, kbuf, c):
        return [f"{mf} {v(S[qb],16)}, {v(K[kbuf][0],4)}, {v(Q[qb][0],4)}, {c}",
                f"{mf} {v(S[qb],16)}, {v(K[kbuf][1],4)}, {v(Q[qb][1],4)}, {v(S[qb],16)}"]
    def pv_mfma(qb, vbuf):
        return [f"{mf} {v(O[qb],16)}, {v(V[vbuf][j],4)}, {v(P[qb]+4*j,4)}, {v(O[qb],16)}" for j in range(2)]
    def set_negm(qb, mreg, bias):
        a.I(f"v_mov_b32 {v(tmp+1)}, {v(mreg)}")
        a.I(f"v_permlane32_swap_b32 {v(mreg)}, {v(tmp+1)}")
        a.I(f"v_max_f32 {v(mreg)}, {v(mreg)}, {v(tmp+1)}")
        a.I(f"v_sub_f32 {v(NM[qb])}, {f32hex(-bias)}, {v(mreg)}")
        for i in range(1, 16): a.I(f"v_mov_b32 {v(NM[qb]+i)}, {v(NM[qb])}")
    def max16(dst, sreg, first):
        i = 0
        if first:
            a.I(f"v_max3_f32 {v(dst)}, {v(sreg)}, {v(sreg+1)}, {v(sreg+2)}"); i = 3
        while i < 16:
            if i + 1 < 16:
                a.I(f"v_max3_f32 {v(dst)}, {v(dst)}, {v(sreg+i)}, {v(sreg+i+1)}"); i += 2
            else:
                a.I(f"v_max_f32 {v(dst)}, {v(dst)}, {v(sreg+i)}"); i += 1
    def valu_groups(qb):
        gs = []
        for g in range(4):
            r = S[qb] + 4 * g
            x = [f"v_exp_f32 {v(r+i)}, {v(r+i)}" for i in range(4)]
            for h in range(2):
                x.append(f"v_cvt_pk_bf16_f32 {v(P[qb]+2*g+h)}, {v(r+2*h)}, {v(r+2*h+1)}")
                if summode == "pk":
                    x.append(f"v_pk_add_f32 {v(L[qb],2)}, {v(L[qb],2)}, {v(r+2*h,2)}")
                elif summode == "dot":
                    x.append(f"v_dot2_f32_bf16 {v(L[qb]+h)}, {v(P[qb]+2*g+h)}, s{s_one}, {v(L[qb]+h)}")
                elif summode == "add":
                    x.append(f"v_add_f32 {v(L[qb])}, {v(L[qb])}, {v(r+2*h)}")
                    x.append(f"v_add_f32 {v(L[qb]+1)}, {v(L[qb]+1)}, {v(r+2*h+1)}")
            gs.append(x)
        return gs
    a.I("s_waitcnt vmcnt(0)")
    for qb in range(2):
        for t in s_mfma(qb, 0, "0"): a.I(t)
    for qb in range(2):
        max16(tmp, S[qb], True)
        set_negm(qb, tmp, MBIAS)
        if qb == 0:
            for t in s_mfma(0, 0, v(NM[0], 16)): a.I(t)
    a.I("s_nop 1")
    a.I("s_barrier")
    stamp(a, 2)
    a.L("att_loop")
    for sl in range(4):
        qb = sl % 2; o = 1 - qb
        kbuf = ((sl + 1) // 2) % 2
        vbuf = (((sl - 1) // 2) + 1) % 2
        m = s_mfma(o, kbuf, v(NM[o], 16)) + pv_mfma(o, vbuf)
        gs = valu_groups(qb)
        pre = []
        if sl % 2 == 1: a.I("s_waitcnt lgkmcnt(0)")
        if sl == 3: a.I("s_barrier")
        extra = [[], [], [], []]
        if sl % 2 == 0:
            rb = (sl // 2 + 1) % 2
            ro = (sl // 2) * 4096
            extra[0] = [f"ds_read_b128 {v(K[rb][j],4)}, {v(vkv)} offset:{ro + j*1024}" for j in range(2)]
            extra[1] = [f"ds_read_b128 {v(V[rb][j],4)}, {v(vkv)} offset:{ro + 2048 + j*1024}" for j in range(2)]
        if sl == 1:
            extra[0] = [f"s_add_u32 s{s_noff}, s{s_off}, {stride}",
                        f"s_cmp_eq_u32 s{s_noff}, {nbuf*stride}",
                        f"s_cselect_b32 s{s_noff}, 0, s{s_noff}",
                        f"s_sub_u32 s{s_delta}, s{s_noff}, s{s_off}",
                        f"s_mov_b32 s{s_off}, s{s_noff}"]
        if sl == 3:
            extra[1] = [f"v_add_u32 {v(vkv)}, s{s_delta}, {v(vkv)}",
                        f"s_add_u32 s{s_cnt}, s{s_cnt}, 1",
                        f"s_cmp_lt_u32 s{s_cnt}, 32"]
        for g in range(4):
            a.I(m[g])
            for t in extra[g]: a.I(t)
            for t in gs[g]: a.I(t)
    a.I("s_cbranch_scc1 att_loop")
    stamp(a, 3)
    for t in pv_mfma(1, 0): a.I(t)
    a.L("att_fin")
    for qb in range(2):
        a.I(f"v_add_f32 {v(L[qb])}, {v(L[qb])}, {v(L[qb]+1)}")
        a.I(f"v_mov_b32 {v(L[qb]+1)}, {v(L[qb])}")
        a.I(f"v_permlane32_swap_b32 {v(L[qb])}, {v(L[qb]+1)}")
        a.I(f"v_add_f32 {v(L[qb])}, {v(L[qb])}, {v(L[qb]+1)}")
    a.I(f"s_cmp_lg_u32 s{s_fb}, 0")
    a.I("s_cbranch_scc1 att_store")
    a.I(f"v_max_f32 {v(tmp)}, {v(L[0])}, {v(L[1])}")
    a.I(f"v_mul_f32 {v(tmp+1)}, 0, {v(L[0])}")
    a.I(f"v_fmac_f32 {v(tmp+1)}, 0, {v(L[1])}")
    for qb in range(2):
        for i in range(16): a.I(f"v_fmac_f32 {v(tmp+1)}, 0, {v(O[qb]+i)}")
    a.I(f"v_add_f32 {v(tmp)}, {v(tmp)}, {v(tmp+1)}")
    a.I(f"v_cmp_ngt_f32 vcc, {f32hex(2.0**120)}, {v(tmp)}")
    a.I("s_cbranch_vccnz att_fallback")
    a.L("att_store")
    a.I(f"s_lshl_b32 s{s_t}, s{s_sb}, 16")
    a.I(f"s_lshl_b32 s{s_q}, s{s_h}, 11")
    a.I(f"s_add_u32 s{s_t}, s{s_t}, s{s_q}")
    a.I(f"s_add_u32 s{s_t}, s{s_t}, {WS_OF}")
    a.I(f"v_add_u32 {v(tmp+2)}, 0x10000, {v(vl16)}")
    for qb in range(2):
        a.I(f"v_rcp_f32 {v(tmp)}, {v(L[qb])}")
        for i in range(16): a.I(f"v_mul_f32 {v(O[qb]+i)}, {v(tmp)}, {v(O[qb]+i)}")
        pack_block(a, O[qb], P[qb])
        for j in range(2):
            a.I(f"buffer_store_dwordx4 {v(P[qb]+4*j,4)}, {v(vl16 if qb == 0 else tmp+2)}, {s(srd,4)}, s{s_t} offen offset:{j*1024}")
    stamp_out(a, 1)
    a.I("s_endpgm")
    a.L("att_fallback")
    a.I(f"s_mov_b32 s{s_fb}, 1")
    a.I(f"s_mov_b32 s{s_t}, s{s_kv}")
    a.I(f"s_mov_b32 s{s_cnt}, 0")
    a.I(f"v_mov_b32 {v(tmp+2)}, 0xff800000")
    a.I(f"v_mov_b32 {v(tmp+3)}, 0xff800000")
    a.L("att_fb1")
    for j in range(2):
        a.I(f"buffer_load_dwordx4 {v(K[0][j],4)}, {v(vl16)}, {s(srd,4)}, s{s_t} offen offset:{j*1024}")
    a.I("s_waitcnt vmcnt(0)")
    for qb in range(2):
        for t in s_mfma(qb, 0, "0"): a.I(t)
    for qb in range(2): max16(tmp + 2 + qb, S[qb], False)
    a.I(f"s_add_u32 s{s_t}, s{s_t}, 4096")
    a.I(f"s_add_u32 s{s_cnt}, s{s_cnt}, 1")
    a.I(f"s_cmp_lt_u32 s{s_cnt}, 64")
    a.I("s_cbranch_scc1 att_fb1")
    for qb in range(2): set_negm(qb, tmp + 2 + qb, 0.0)
    zero_state()
    a.I(f"s_mov_b32 s{s_t}, s{s_kv}")
    a.I(f"s_mov_b32 s{s_cnt}, 0")
    a.I(f"v_add_u32 {v(tmp+2)}, 4096, {v(vl16)}")
    a.L("att_fb2")
    for j in range(2):
        a.I(f"buffer_load_dwordx4 {v(K[0][j],4)}, {v(vl16)}, {s(srd,4)}, s{s_t} offen offset:{j*1024}")
        a.I(f"buffer_load_dwordx4 {v(V[0][j],4)}, {v(tmp+2)}, {s(srd,4)}, s{s_t} offen offset:{2048+j*1024}")
    a.I("s_waitcnt vmcnt(0)")
    for qb in range(2):
        for t in s_mfma(qb, 0, v(NM[qb], 16)): a.I(t)
    for qb in range(2):
        for g in valu_groups(qb):
            for t in g: a.I(t)
        for t in pv_mfma(qb, 0): a.I(t)
    a.I(f"s_add_u32 s{s_t}, s{s_t}, 4096")
    a.I(f"s_add_u32 s{s_cnt}, s{s_cnt}, 1")
    a.I(f"s_cmp_lt_u32 s{s_cnt}, 64")
    a.I("s_cbranch_scc1 att_fb2")
    a.I("s_branch att_fin")
    return va.hi, sa.hi

def gen_k2(a, cfg):
    name = "k2_kernel"
    nbuf = cfg.get("k2nbuf", 4); stride = 40960
    kernel_head(a, name, 256)
    a.I("s_and_b32 s4, s2, 7")
    a.I("s_lshr_b32 s5, s2, 3")
    a.I("s_waitcnt lgkmcnt(0)")
    a.I(f"s_cmp_ge_u32 s{S_WAVE}, 4")
    a.I(f"s_cbranch_scc1 {name}_g3")
    hv, hs = att_role(a, cfg, nbuf, stride, 32768)
    a.L(f"{name}_g3")
    va = Alloc(1, 256); sa = Alloc(S_FREE0, 76)
    tmp = va.get(4)
    srdc = sa.get(4, 4); srdw = sa.get(4, 4)
    a.I("s_and_b32 s7, s4, 1")
    a.I("s_cmp_eq_u32 s7, 0")
    a.I(f"s_cselect_b32 s{srdc}, s{P_CR}, s{P_CI}")
    a.I(f"s_cselect_b32 s{srdc+1}, s{P_CR+1}, s{P_CI+1}")
    a.I(f"s_mov_b32 s{srdc+2}, {2048*4096}")
    a.I(f"s_mov_b32 s{srdc+3}, 0x00020000")
    make_srd(a, srdw, P_WS, WS_END)
    s_w4 = sa.get(); s_tb = sa.get(); s_eb = sa.get(); s_row0 = sa.get(); s_g0 = sa.get(); s_wm2 = sa.get(); s_wn2 = sa.get(); s_kv = sa.get(); s_t = sa.get()
    a.I(f"s_sub_u32 s{s_w4}, s{S_WAVE}, 4")
    a.I(f"s_lshr_b32 s{s_tb}, s4, 1")
    a.I(f"s_lshl_b32 s{s_tb}, s{s_tb}, 2")
    a.I(f"s_and_b32 s{s_t}, s5, 3")
    a.I(f"s_add_u32 s{s_tb}, s{s_tb}, s{s_t}")
    a.I(f"s_lshr_b32 s{s_eb}, s5, 2")
    a.I(f"s_lshl_b32 s{s_row0}, s{s_tb}, 7")
    a.I(f"s_lshl_b32 s{s_g0}, s7, 5")
    a.I(f"s_lshl_b32 s{s_t}, s{s_eb}, 2")
    a.I(f"s_add_u32 s{s_g0}, s{s_g0}, s{s_t}")
    a.I(f"s_lshr_b32 s{s_wm2}, s{s_w4}, 1")
    a.I(f"s_lshl_b32 s{s_wm2}, s{s_wm2}, 1")
    a.I(f"s_and_b32 s{s_wn2}, s{s_w4}, 1")
    a.I(f"s_lshl_b32 s{s_wn2}, s{s_wn2}, 1")
    a.I(f"s_lshl_b32 s{s_kv}, s4, 2")
    a.I(f"s_lshr_b32 s{s_t}, s5, 3")
    a.I(f"s_add_u32 s{s_kv}, s{s_kv}, s{s_t}")
    a.I(f"s_mul_i32 s{s_kv}, s{s_kv}, {KV_HSTRIDE}")
    a.I(f"s_add_u32 s{s_kv}, s{s_kv}, {WS_KV + 4096}")
    R = OpRM(128, 4096, 0); C = OpFM(4, 131072, WS_ABF, 16384); X = OpLin(2, 8192, 32768)
    X.setup(a, va, sa, srdw, s_kv, s_w4, tmp)
    R.setup(a, va, sa, srdc, s_row0, s_w4, 4, s_wm2, tmp)
    C.setup(a, va, sa, srdw, s_g0, s_w4, 4, s_wn2, tmp)
    acc, fr, fc = gemm_core(a, "k2g3", va, sa, R, C, 2, 2, [True, True], 32, nbuf, stride, extra=X)
    s_o = sa.get()
    a.I(f"s_lshl_b32 s{s_o}, s{s_tb}, 2")
    a.I(f"s_add_u32 s{s_o}, s{s_o}, s{s_wm2}")
    a.I(f"s_lshl_b32 s{s_o}, s{s_o}, 5")
    a.I(f"s_lshl_b32 s{s_t}, s{s_eb}, 2")
    a.I(f"s_add_u32 s{s_o}, s{s_o}, s{s_t}")
    a.I(f"s_add_u32 s{s_o}, s{s_o}, s{s_wn2}")
    a.I(f"s_lshl_b32 s{s_o}, s{s_o}, 11")
    a.I(f"s_mul_i32 s{s_t}, s7, {WS_QPF - WS_PF}")
    a.I(f"s_add_u32 s{s_o}, s{s_o}, s{s_t}")
    a.I(f"s_add_u32 s{s_o}, s{s_o}, {WS_PF}")
    a.I(f"v_lshlrev_b32 {v(tmp)}, 4, v0")
    a.I(f"v_add_u32 {v(tmp+1)}, 0x10000, {v(tmp)}")
    pk = fr[0][0]; slot = 0
    for m in range(2):
        for n in range(2):
            d = pk + 8 * slot; slot += 1
            pack_block(a, acc[m][n], d)
            for g in range(2):
                a.I(f"buffer_store_dwordx4 {v(d+4*g,4)}, {v(tmp+m)}, {s(srdw,4)}, s{s_o} offen offset:{n*2048+g*1024}")
    stamp_out(a, 1)
    kernel_tail(a, name)
    return dict(name=name, grid=256, block=512, lds=nbuf*stride, vgpr=max(hv, va.hi), sgpr=max(hs, sa.hi))

def gen_k3(a, cfg):
    name = "k3_kernel"
    nbuf = cfg.get("k3nbuf", 4); stride = 24576
    kernel_head(a, name, 256)
    a.I("s_and_b32 s4, s2, 7")
    a.I("s_lshr_b32 s5, s2, 3")
    va = Alloc(1, 256); sa = Alloc(S_FREE0, 76)
    tmp = va.get(4)
    srdw = sa.get(4, 4); srdo = sa.get(4, 4); srdwo = sa.get(4, 4)
    s_qb = sa.get(); s_nb = sa.get(); s_t = sa.get(); s_g0 = sa.get(); s_col = sa.get(); s_wm2 = sa.get(); s_wn = sa.get()
    a.I(f"s_lshr_b32 s{s_qb}, s4, 1")
    a.I(f"s_lshl_b32 s{s_qb}, s{s_qb}, 2")
    a.I(f"s_and_b32 s{s_t}, s5, 3")
    a.I(f"s_add_u32 s{s_qb}, s{s_qb}, s{s_t}")
    a.I(f"s_and_b32 s{s_nb}, s4, 1")
    a.I(f"s_lshl_b32 s{s_nb}, s{s_nb}, 3")
    a.I(f"s_lshr_b32 s{s_t}, s5, 2")
    a.I(f"s_add_u32 s{s_nb}, s{s_nb}, s{s_t}")
    a.I(f"s_lshl_b32 s{s_g0}, s{s_qb}, 2")
    a.I(f"s_lshl_b32 s{s_col}, s{s_nb}, 7")
    a.I(f"s_lshr_b32 s{s_wm2}, s{S_WAVE}, 1")
    a.I(f"s_lshl_b32 s{s_wm2}, s{s_wm2}, 1")
    a.I(f"s_and_b32 s{s_wn}, s{S_WAVE}, 1")
    a.I("s_waitcnt lgkmcnt(0)")
    make_srd(a, srdw, P_WS, WS_END)
    make_srd(a, srdo, P_OUT, 2048 * 4096)
    make_srd(a, srdwo, P_WO, 1024 * 2048)
    R = OpFM(4, 65536, WS_OF, 0); C = OpTR(1, 2048, 0, 16384, True)
    R.setup(a, va, sa, srdw, s_g0, S_WAVE, 4, s_wm2, tmp)
    C.setup(a, va, sa, srdwo, s_col, S_WAVE, 4, s_wn, tmp)
    cP = [va.get(8, 4) for m in range(2)]; cQ = [va.get(8, 4) for m in range(2)]
    s_c = sa.get(); s_c2 = sa.get(); vst = va.get(2)
    def pre():
        a.I(f"s_add_u32 s{s_c}, s{s_g0}, s{s_wm2}")
        a.I(f"s_lshl_b32 s{s_c}, s{s_c}, 5")
        a.I(f"s_lshl_b32 s{s_t}, s{s_nb}, 1")
        a.I(f"s_add_u32 s{s_c}, s{s_c}, s{s_t}")
        a.I(f"s_add_u32 s{s_c}, s{s_c}, s{s_wn}")
        a.I(f"s_lshl_b32 s{s_c}, s{s_c}, 11")
        a.I(f"s_add_u32 s{s_c2}, s{s_c}, {WS_QPF}")
        a.I(f"s_add_u32 s{s_c}, s{s_c}, {WS_PF}")
    pre()
    a.I(f"v_lshlrev_b32 {v(tmp)}, 4, v0")
    a.I(f"v_add_u32 {v(tmp+1)}, 0x10000, {v(tmp)}")
    for m in range(2):
        for g in range(2):
            a.I(f"buffer_load_dwordx4 {v(cP[m]+4*g,4)}, {v(tmp+m)}, {s(srdw,4)}, s{s_c} offen offset:{g*1024}")
            a.I(f"buffer_load_dwordx4 {v(cQ[m]+4*g,4)}, {v(tmp+m)}, {s(srdw,4)}, s{s_c2} offen offset:{g*1024}")
    acc, fr, fc = gemm_core(a, "k3g4", va, sa, R, C, 2, 1, [True], 16, nbuf, stride)
    s_o = sa.get()
    a.I(f"s_add_u32 s{s_o}, s{s_g0}, s{s_wm2}")
    a.I(f"s_lshl_b32 s{s_o}, s{s_o}, 17")
    a.I(f"s_add_u32 s{s_o}, s{s_o}, s{s_col}")
    a.I(f"s_lshl_b32 s{s_t}, s{s_wn}, 6")
    a.I(f"s_add_u32 s{s_o}, s{s_o}, s{s_t}")
    a.I(f"v_and_b32 {v(vst)}, 31, v0")
    a.I(f"v_lshlrev_b32 {v(vst)}, 12, {v(vst)}")
    a.I(f"v_lshrrev_b32 {v(tmp)}, 5, v0")
    a.I(f"v_lshl_add_u32 {v(vst)}, {v(tmp)}, 4, {v(vst)}")
    a.I(f"v_add_u32 {v(vst+1)}, {1<<17}, {v(vst)}")
    pk = fr[0][0]
    for m in range(2):
        d = pk + 8 * m
        pack_block(a, acc[m][0], d)
        swap_block(a, d)
        for g in range(2):
            a.I(f"buffer_store_dwordx4 {v(d+4*g,4)}, {v(vst+m)}, {s(srdo,4)}, s{s_o} offen offset:{2048+g*32}")
    a.I("s_waitcnt vmcnt(4)")
    for m in range(2):
        t0 = acc[m][0]
        for i in range(8):
            a.I(f"v_lshlrev_b32 {v(t0)}, 16, {v(cP[m]+i)}")
            a.I(f"v_lshlrev_b32 {v(t0+1)}, 16, {v(cQ[m]+i)}")
            a.I(f"v_and_b32 {v(t0+2)}, 0xffff0000, {v(cP[m]+i)}")
            a.I(f"v_and_b32 {v(t0+3)}, 0xffff0000, {v(cQ[m]+i)}")
            a.I(f"v_sub_f32 {v(t0)}, {v(t0)}, {v(t0+1)}")
            a.I(f"v_sub_f32 {v(t0+2)}, {v(t0+2)}, {v(t0+3)}")
            a.I(f"v_cvt_pk_bf16_f32 {v(cP[m]+i)}, {v(t0)}, {v(t0+2)}")
        swap_block(a, cP[m])
        for g in range(2):
            a.I(f"buffer_store_dwordx4 {v(cP[m]+4*g,4)}, {v(vst+m)}, {s(srdo,4)}, s{s_o} offen offset:{g*32}")
    stamp_out(a, 2)
    kernel_tail(a, name)
    return dict(name=name, grid=256, block=256, lds=nbuf*stride, vgpr=va.hi, sgpr=sa.hi)

def emit(kernels, a):
    head = []
    for k in kernels:
        head.append(f"; @launch kernel={k['name']} grid=({k['grid']},1,1) block=({k['block']},1,1) lds={k['lds']}")
    head.append('.amdgcn_target "amdgcn-amd-amdhsa--gfx950"')
    head.append(".text")
    body = a.finalize()
    tail = ['.section .rodata,"a"']
    seen = set()
    for k in kernels:
        if k['name'] in seen: continue
        seen.add(k['name'])
        vg = (k['vgpr'] + 7) // 8 * 8
        tail += [".p2align 6", f".amdhsa_kernel {k['name']}",
                 f"  .amdhsa_next_free_vgpr {vg}", f"  .amdhsa_next_free_sgpr {100 if STAMP else max(k['sgpr'], 32)}",
                 f"  .amdhsa_accum_offset {vg}", "  .amdhsa_group_segment_fixed_size 0", "  .amdhsa_kernarg_size 88",
                 "  .amdhsa_user_sgpr_count 2", "  .amdhsa_user_sgpr_kernarg_segment_ptr 1",
                 "  .amdhsa_system_sgpr_workgroup_id_x 1", ".end_amdhsa_kernel"]
    return "\n".join(head) + "\n" + body + "\n".join(tail) + "\n"

if __name__ == "__main__":
    a = Asm()
    cfg = {}
    for kv in sys.argv[2:]:
        k_, v_ = kv.split("=")
        cfg[k_] = int(v_) if v_.lstrip("-").isdigit() else v_
    ks = [gen_k1(a, cfg), gen_k2(a, cfg), gen_k3(a, cfg)]
    out = sys.argv[1] if len(sys.argv) > 1 else "concat_heads__spectral_fnet__mha_block__prompt.s"
    open(out, "w").write(emit(ks, a))
    print(ks)
```

```python
import sys, os, struct
sys.path.insert(0, os.path.dirname(os.path.abspath(__file__)))
from asmlib import Asm

MB_ = 1 << 20
WS_AF = 0
WS_QF = 4 * MB_
WS_KV = 8 * MB_
KV_HSTRIDE = 65 * 4096
WS_OF = 17 * MB_
WS_PF = 21 * MB_
WS_VF = 25 * MB_
WS_END = 29 * MB_
BIG = 0x80000000
QSCALE = 1.4426950408889634 / (32 ** 0.5)
SUB = 8192

def f32hex(x): return "0x%08x" % struct.unpack("<I", struct.pack("<f", x))[0]
def v(i, n=1): return f"v{i}" if n == 1 else f"v[{i}:{i+n-1}]"
def s(i, n=1): return f"s{i}" if n == 1 else f"s[{i}:{i+n-1}]"

class Alloc:
    def __init__(self, start, limit): self.n = start; self.limit = limit; self.hi = start
    def get(self, cnt=1, align=1):
        self.n = (self.n + align - 1) // align * align
        r = self.n; self.n += cnt
        assert self.n <= self.limit, ("register overflow", self.n, self.limit)
        self.hi = max(self.hi, self.n)
        return r

P_AX, P_CR, P_CI, P_WR, P_WI, P_BX, P_WQKV, P_WO = [8 + 2 * i for i in range(8)]
P_OUT = 24; P_WS = 26
S_WAVE = 3
S_FREE0 = 28
MF = "v_mfma_f32_32x32x16_bf16"

STAMP = os.environ.get("STAMP") == "1"
WS_STAMP = 40 * MB_
S_ST = 84
def stamp(a, i):
    if STAMP: a.I(f"s_memtime s[{S_ST+2*i}:{S_ST+2*i+1}]")
def stamp_rt(a, i):
    if STAMP: a.I(f"s_memrealtime s[{S_ST+2*i}:{S_ST+2*i+1}]")
def stamp_out(a, kidx):
    if not STAMP: return
    a.I("s_waitcnt vmcnt(0) lgkmcnt(0)")
    stamp(a, 6); stamp_rt(a, 7)
    a.I("s_waitcnt lgkmcnt(0)")
    a.I(f"s_mov_b32 s76, s{P_WS}")
    a.I(f"s_mov_b32 s77, s{P_WS+1}")
    a.I(f"s_mov_b32 s78, {WS_STAMP + 8*MB_}")
    a.I(f"s_mov_b32 s79, 0x00020000")
    a.I(f"s_lshl_b32 s80, s2, 4")
    a.I(f"s_add_u32 s80, s80, s{S_WAVE}")
    a.I(f"s_lshl_b32 s80, s80, 5")
    a.I(f"s_add_u32 s80, s80, {WS_STAMP + kidx*MB_}")
    for i in range(8): a.I(f"v_mov_b32 v{8+i}, s{S_ST+2*i}")
    a.I("v_mov_b32 v1, 0")
    a.I("buffer_store_dwordx4 v[8:11], v1, s[76:79], s80 offen")
    a.I("buffer_store_dwordx4 v[12:15], v1, s[76:79], s80 offen offset:16")

def kernel_head(a, name, grid):
    a.R(".p2align 8")
    a.R(f".globl {name}")
    a.R(f".type {name},@function")
    a.L(name)
    a.I(f"s_cmp_ge_u32 s2, {grid}")
    a.I(f"s_cbranch_scc1 {name}_end")
    a.I("s_load_dwordx16 s[8:23], s[0:1], 0")
    a.I("s_load_dwordx2 s[24:25], s[0:1], 64")
    a.I("s_load_dwordx2 s[26:27], s[0:1], 80")
    a.I("v_lshrrev_b32 v1, 6, v0")
    a.I("v_and_b32 v0, 63, v0")
    a.I(f"v_readfirstlane_b32 s{S_WAVE}, v1")
    if STAMP:
        for i in (2, 3, 4, 5): a.I(f"s_mov_b64 s[{S_ST+2*i}:{S_ST+2*i+1}], 0")
    stamp(a, 0); stamp_rt(a, 1)
    a.I("s_and_b32 s4, s2, 7")
    a.I("s_lshr_b32 s5, s2, 3")

def kernel_tail(a, name):
    a.L(f"{name}_end")
    a.I("s_endpgm")

def make_srd(a, sr, ptr, nbytes):
    a.I(f"s_mov_b32 s{sr}, s{ptr}")
    a.I(f"s_mov_b32 s{sr+1}, s{ptr+1}")
    a.I(f"s_mov_b32 s{sr+2}, {nbytes}")
    a.I(f"s_mov_b32 s{sr+3}, 0x00020000")

def interleave(main, fill, lead=0, span=None):
    out = list(fill[:lead]); rest = fill[lead:]
    n = span or len(main)
    for i, m in enumerate(main):
        out.append(m)
        if i < n:
            lo = len(rest) * i // n; hi = len(rest) * (i + 1) // n
            out += rest[lo:hi]
    return out

class LGroup:
    def __init__(self, srd, voffs, s_wb, s_k, kstep, one=False):
        self.srd = srd; self.voffs = voffs; self.s_wb = s_wb; self.s_k = s_k; self.kstep = kstep
        self.per = len(voffs)
        self.s_base = None
        self.pf = None
        self.pfalt = None
        self.pflim = None
    def issue(self, s_boff, mod="", s_si=None, s_dummy=None):
        out = []
        if self.s_base is not None:
            out.append(f"s_mul_i32 s{self.s_k}, s{s_si}, {self.kstep}")
            out.append(f"s_add_u32 s{self.s_k}, s{self.s_k}, s{self.s_base}")
        for p in range(self.per):
            if p % 4 == 0:
                out.append(f"s_add_u32 m0, s{self.s_wb}, s{s_boff}" if p == 0 else "s_add_u32 m0, m0, 4096")
            out.append(f"buffer_load_dwordx4 {v(self.voffs[p])}, {s(self.srd,4)}, s{self.s_k} offen offset:{(p%4)*1024} lds{mod}")
        if self.s_base is None:
            out.append(f"s_add_u32 s{self.s_k}, s{self.s_k}, {self.kstep}")
        return out
    def prefetch(self, s_dummy):
        out = []
        if self.pf is not None:
            s_pf, imms, wide = self.pf
            for im in imms:
                if wide: out.append(f"s_buffer_load_dwordx2 {s(s_dummy,2)}, {s(self.srd,4)}, s{s_pf} offset:{im}")
                else: out.append(f"s_buffer_load_dword s{s_dummy}, {s(self.srd,4)}, s{s_pf} offset:{im}")
            if self.pfalt is None:
                out.append(f"s_add_u32 s{s_pf}, s{s_pf}, {self.kstep}")
            else:
                out.append(f"s_add_u32 s{s_pf}, s{s_pf}, s{self.pfalt}")
                out.append(f"s_sub_u32 s{self.pfalt}, {2*self.kstep}, s{self.pfalt}")
            if self.pflim is not None:
                out.append(f"s_min_u32 s{s_pf}, s{s_pf}, {self.pflim - max(imms) - 8}")
        return out
    def set_pf_rm(self, a, sa, cfg, s_row, s_share, nrow, pitch):
        d = cfg.get("spf", 0); mode = cfg.get("spfm", 1)
        if not d: return
        s_pf = sa.get()
        a.I(f"s_mul_i32 s{s_pf}, s{s_share}, {nrow}")
        a.I(f"s_add_u32 s{s_pf}, s{s_pf}, s{s_row}")
        a.I(f"s_mul_i32 s{s_pf}, s{s_pf}, {pitch}")
        a.I(f"s_add_u32 s{s_pf}, s{s_pf}, {d*128}")
        if mode == 1: self.pf = (s_pf, [j*pitch for j in range(nrow)], False)
        elif mode == 3: self.pf = (s_pf, [j*pitch + 60 for j in range(nrow)], True)
        else:
            assert d % 2 == 0
            self.pf = (s_pf, [j*pitch + 124 for j in range(nrow//2)], True)
            self.pfalt = sa.get()
            a.I(f"s_mov_b32 s{self.pfalt}, {nrow//2*pitch}")
    def set_pf_lin(self, a, sa, cfg, s_gbase, s_share, nbytes):
        d = cfg.get("spf", 0); mode = cfg.get("spfm", 1)
        if not d: return
        s_pf = sa.get()
        a.I(f"s_mul_i32 s{s_pf}, s{s_share}, {nbytes}")
        a.I(f"s_add_u32 s{s_pf}, s{s_pf}, s{s_gbase}")
        a.I(f"s_add_u32 s{s_pf}, s{s_pf}, {d*self.kstep}")
        n = nbytes // 128
        if mode == 1: self.pf = (s_pf, [j*128 for j in range(n)], False)
        elif mode == 3: self.pf = (s_pf, [j*128 + 60 for j in range(n)], True)
        else: self.pf = (s_pf, [j*256 + 124 for j in range(n//2)], True)
    def set_pf_tr(self, a, sa, cfg, s_col0, s_lw, s_share, pitch):
        d = cfg.get("spf", 0); mode = cfg.get("spfm", 1)
        if not d: return
        s_pf = sa.get()
        a.I(f"s_lshl_b32 s{s_pf}, s{s_share}, 2")
        a.I(f"s_add_u32 s{s_pf}, s{s_pf}, s{s_lw}")
        a.I(f"s_mul_i32 s{s_pf}, s{s_pf}, {4*pitch}")
        a.I(f"s_add_u32 s{s_pf}, s{s_pf}, s{s_col0}")
        a.I(f"s_add_u32 s{s_pf}, s{s_pf}, {d*self.kstep}")
        if mode == 1: self.pf = (s_pf, [j*pitch + h*128 for j in range(4) for h in range(2)], False)
        elif mode == 3: self.pf = (s_pf, [j*pitch + h*128 + 60 for j in range(4) for h in range(2)], True)
        else: self.pf = (s_pf, [j*pitch + 124 for j in range(4)], True)

def lset_rm(a, va, sa, srd, s_row, per, pitch, s_wb, tmp):
    t0, t1, t2 = tmp, tmp + 1, tmp + 2
    st = sa.get(); sk = sa.get()
    a.I(f"v_lshrrev_b32 {v(t0)}, 3, v0")
    a.I(f"v_add_u32 {v(t0)}, s{s_row}, {v(t0)}")
    a.I(f"v_lshlrev_b32 {v(t0)}, {pitch.bit_length()-1}, {v(t0)}")
    a.I(f"v_lshrrev_b32 {v(t1)}, 4, v0")
    a.I(f"v_xor_b32 {v(t1)}, {v(t1)}, v0")
    a.I(f"v_and_b32 {v(t1)}, 7, {v(t1)}")
    a.I(f"v_xor_b32 {v(t2)}, 4, {v(t1)}")
    a.I(f"v_lshl_add_u32 {v(t1)}, {v(t1)}, 4, {v(t0)}")
    a.I(f"v_lshl_add_u32 {v(t2)}, {v(t2)}, 4, {v(t0)}")
    voffs = []
    for p in range(per):
        r = va.get()
        a.I(f"v_add_u32 {v(r)}, {p*8*pitch - (p%4)*1024}, {v(t1 if p % 2 == 0 else t2)}")
        voffs.append(r)
    a.I(f"s_mov_b32 s{sk}, 0")
    return LGroup(srd, voffs, s_wb, sk, 128)

def lset_lin(a, va, sa, srd, s_gbase, per, kstep, s_wb):
    assert per <= 4
    r = va.get(); sk = sa.get()
    a.I(f"v_lshlrev_b32 {v(r)}, 4, v0")
    a.I(f"s_mov_b32 s{sk}, s{s_gbase}")
    return LGroup(srd, [r] * per, s_wb, sk, kstep)

def lset_tr(a, va, sa, srd, s_krow, s_colb, pitch, s_wb, tmp):
    t0, t1 = tmp, tmp + 1
    st = sa.get(); sk = sa.get()
    a.I(f"v_lshrrev_b32 {v(t0)}, 3, v0")
    a.I(f"v_add_u32 {v(t0)}, s{s_krow}, {v(t0)}")
    a.I(f"v_mul_u32_u24 {v(t0)}, {pitch}, {v(t0)}")
    a.I(f"v_lshrrev_b32 {v(t1)}, 2, v0")
    a.I(f"v_and_b32 {v(t1)}, 4, {v(t1)}")
    a.I(f"v_xor_b32 {v(t1)}, {v(t1)}, v0")
    a.I(f"v_and_b32 {v(t1)}, 7, {v(t1)}")
    a.I(f"v_lshl_add_u32 {v(t0)}, {v(t1)}, 4, {v(t0)}")
    voffs = []
    for p in range(4):
        r = va.get()
        a.I(f"v_add_u32 {v(r)}, {p*8*pitch - p*1024}, {v(t0)}")
        voffs.append(r)
    a.I(f"s_mov_b32 s{sk}, s{s_colb}")
    return LGroup(srd, voffs, s_wb, sk, 64 * pitch)

def loader_main(a, pfx, sa, groups, T, N, nbar, cfg, kidx):
    nd = sum(g.per for g in groups)
    s_boff = sa.get(); s_cnt = sa.get()
    a.I(f"s_mov_b32 s{s_boff}, 0")
    if cfg.get("rot", 0) >> {0: 1, 1: 8, 2: 2}[kidx] & 1:
        for g in groups:
            g.s_base = sa.get()
    rot = any(g.s_base is not None for g in groups)
    s_dummy = sa.get(2, 2)
    if rot:
        s_t = sa.get(); s_si = sa.get(); s_r = sa.get()
        a.I(f"s_mov_b32 s{s_t}, 0")
        a.I(f"s_lshr_b32 s{s_r}, s2, 3")
        a.I(f"s_lshr_b32 s{s_si}, s2, 5")
        a.I(f"s_add_u32 s{s_r}, s{s_r}, s{s_si}")
        for g in groups:
            if g.s_base is not None: a.I(f"s_mov_b32 s{g.s_base}, s{g.s_k}")
    else: s_si = None
    npf0 = cfg.get("spf", 0)
    def issue(wrap):
        if rot:
            a.I(f"s_add_u32 s{s_si}, s{s_t}, s{s_r}")
            a.I(f"s_and_b32 s{s_si}, s{s_si}, 3")
            a.I(f"s_andn2_b32 s{s_dummy}, s{s_t}, 3")
            a.I(f"s_or_b32 s{s_si}, s{s_si}, s{s_dummy}")
            a.I(f"s_add_u32 s{s_t}, s{s_t}, 1")
        for g in groups:
            for t in g.issue(s_boff, s_si=s_si): a.I(t)
        for g in groups:
            for t in g.prefetch(s_dummy2): a.I(t)
        a.I(f"s_add_u32 s{s_boff}, s{s_boff}, {SUB}")
        if wrap:
            a.I(f"s_cmp_eq_u32 s{s_boff}, {N*SUB}")
            a.I(f"s_cselect_b32 s{s_boff}, 0, s{s_boff}")
    s_dummy2 = sa.get(2, 2)
    stamp(a, 4)
    issued = 0
    first = cfg.get("first", 2)
    for _ in range(first): issue(True); issued += 1
    for _ in range(cfg.get("spf0", 0)):
        for g in groups:
            for t in g.prefetch(s_dummy2): a.I(t)
    stamp(a, 5)
    k = 0
    while True:
        a.I(f"s_waitcnt vmcnt({(issued - 1 - k) * nd})")
        a.I("s_barrier")
        if k == 0: stamp(a, 2)
        allowed = min(k - 1 + N, T - 1)
        n = min(cfg.get("ramp", 2), allowed + 1 - issued)
        for _ in range(n): issue(True); issued += 1
        k += 1
        if issued == k - 1 + N: break
    nloop = T - N - k + 1
    if nloop > 0:
        a.I(f"s_mov_b32 s{s_cnt}, {nloop}")
        a.L(f"{pfx}_lloop")
        a.I(f"s_waitcnt vmcnt({(N-2)*nd})")
        a.I("s_barrier")
        issue(True)
        a.I(f"s_sub_u32 s{s_cnt}, s{s_cnt}, 1")
        a.I(f"s_cmp_lg_u32 s{s_cnt}, 0")
        a.I(f"s_cbranch_scc1 {pfx}_lloop")
        k += nloop; issued += nloop
    assert issued == T
    while k < nbar:
        if k < T: a.I(f"s_waitcnt vmcnt({(T - 1 - k) * nd})")
        a.I("s_barrier")
        k += 1
    stamp(a, 3)
    stamp_out(a, kidx)
    a.I("s_endpgm")

class RdRM:
    def __init__(self, a, va, s_base, blkoff, tmp):
        t0, t1, t2 = tmp, tmp + 1, tmp + 2
        self.blkoff = blkoff
        self.rb = [va.get() for _ in range(4)]
        a.I(f"v_and_b32 {v(t0)}, 31, v0")
        a.I(f"v_lshlrev_b32 {v(t0)}, 7, {v(t0)}")
        a.I(f"v_add_u32 {v(t0)}, s{s_base}, {v(t0)}")
        a.I(f"v_bfe_u32 {v(t1)}, v0, 1, 3")
        a.I(f"v_lshrrev_b32 {v(t2)}, 5, v0")
        a.I(f"v_xor_b32 {v(t1)}, {v(t1)}, {v(t2)}")
        for g in range(4):
            a.I(f"v_xor_b32 {v(t2)}, {2*g}, {v(t1)}")
            a.I(f"v_lshl_add_u32 {v(self.rb[g])}, {v(t2)}, 4, {v(t0)}")
    def read(self, blk, g, buf, dst):
        off = self.blkoff(blk) + buf * SUB
        assert off < 65536
        return [f"ds_read_b128 {v(dst,4)}, {v(self.rb[g])} offset:{off}"]

class RdFM:
    def __init__(self, a, va, s_base, blkoff, tmp):
        self.blkoff = blkoff
        self.rb = va.get()
        a.I(f"v_lshlrev_b32 {v(tmp)}, 4, v0")
        a.I(f"v_add_u32 {v(self.rb)}, s{s_base}, {v(tmp)}")
    def read(self, blk, g, buf, dst):
        off = self.blkoff(blk) + buf * SUB + g * 1024
        assert off < 65536
        return [f"ds_read_b128 {v(dst,4)}, {v(self.rb)} offset:{off}"]

class RdTR:
    def __init__(self, a, va, sa, s_base, partoff, perm, mode, s_half, tmp):
        t0, t1 = tmp, tmp + 1
        self.partoff = partoff; self.perm = perm; self.mode = mode
        a.I(f"v_bfe_u32 {v(t0)}, v0, 4, 1")
        a.I(f"v_bfe_u32 {v(t1)}, v0, 1, 1")
        a.I(f"v_lshl_add_u32 {v(t0)}, {v(t0)}, 1, {v(t1)}")
        if mode == "parts":
            st = sa.get()
            a.I(f"s_lshl_b32 s{st}, s{s_half}, 2")
            a.I(f"v_add_u32 {v(t0)}, s{st}, {v(t0)}")
        a.I(f"v_bfe_u32 {v(t1)}, v0, 3, 1")
        a.I(f"v_lshlrev_b32 {v(t1)}, 2, {v(t1)}")
        a.I(f"v_xor_b32 {v(t0)}, {v(t0)}, {v(t1)}")
        a.I(f"v_lshlrev_b32 {v(t0)}, 4, {v(t0)}")
        a.I(f"v_bfe_u32 {v(t1)}, v0, 2, 2")
        a.I(f"v_lshl_add_u32 {v(t0)}, {v(t1)}, 7, {v(t0)}")
        a.I(f"v_and_b32 {v(t1)}, 1, v0")
        a.I(f"v_lshl_add_u32 {v(t0)}, {v(t1)}, 3, {v(t0)}")
        a.I(f"v_lshrrev_b32 {v(t1)}, 5, v0")
        a.I(f"v_lshl_add_u32 {v(t0)}, {v(t1)}, {9 if perm else 10}, {v(t0)}")
        self.rb = [va.get()]
        a.I(f"v_add_u32 {v(self.rb[0])}, s{s_base}, {v(t0)}")
        if mode == "halves":
            self.rb.append(va.get())
            a.I(f"v_xor_b32 {v(self.rb[1])}, 64, {v(self.rb[0])}")
    def read(self, blk, g, buf, dst):
        out = []
        for t in range(2):
            off = (2*g + t) * 1024 if self.perm else 2*g * 1024 + t * 512
            off += buf * SUB
            if self.mode == "parts": off += self.partoff * blk; rb = self.rb[0]
            else: rb = self.rb[blk]
            assert off < 65536
            out.append(f"ds_read_b64_tr_b16 {v(dst+2*t,2)}, {v(rb)} offset:{off}")
        return out

def gemm_compute(a, pfx, va, sa, R, C, MB, NB, swap, T, N, init_acc, last_cb, peel=True, pace=0, pre_bar=1, stage_hook=None, regs=None, off=0):
    if regs is None:
        acc = [[va.get(16, 4) for n in range(NB)] for m in range(MB)]
        fr = [[va.get(4, 4) for m in range(MB)] for _ in range(2)]
        fc = [[va.get(4, 4) for n in range(NB)] for _ in range(2)]
    else:
        acc, fr, fc = regs
    s_cnt = sa.get()
    def reads(g, buf, st):
        out = []
        rl = [R.read(m, g, buf, fr[st][m]) for m in range(MB)]
        cl = [C.read(n, g, buf, fc[st][n]) for n in range(NB)]
        for i in range(max(MB, NB)):
            if i < MB: out += rl[i]
            if i < NB: out += cl[i]
        return out
    def mfmas(st):
        out = []
        for m in range(MB):
            for n in range(NB):
                A_, B_ = (fc[st][n], fr[st][m]) if swap else (fr[st][m], fc[st][n])
                out.append(f"{MF} {v(acc[m][n],16)}, {v(A_,4)}, {v(B_,4)}, {v(acc[m][n],16)}")
        return out
    def emit_seq(mf, fill, span=None):
        seq = interleave(mf, fill, span=span)
        for i, t in enumerate(seq):
            if off & 1 and t.startswith("v_mfma"): continue
            if off & 2 and t.startswith("ds_read"): continue
            if pace and t.startswith("v_mfma"):
                p = pace
                while p > 0:
                    q = min(p, 16); a.I(f"s_nop {q-1}"); p -= q
            a.I(t)
    init_acc(acc)
    a.I("s_barrier")
    stamp(a, 2)
    for t in reads(0, 0, 0): a.I(t)
    nmf = MB * NB
    def stage(buf, last, sidx):
        for g in range(4):
            st = g % 2
            a.I("s_waitcnt lgkmcnt(0)")
            mf = mfmas(st)
            if g < 3:
                fill = reads(g + 1, buf, 1 - st)
                if stage_hook: fill = fill + stage_hook(sidx, g)
                emit_seq(mf, fill, span=max(1, nmf - 1))
            elif not last:
                emit_seq(mf[:pre_bar], [])
                a.I("s_barrier")
                fill = reads(0, (buf + 1) % N, 0)
                rest = mf[pre_bar:]
                lead = min(2, len(fill))
                for t in fill[:lead]:
                    if not off & 2: a.I(t)
                emit_seq(rest, fill[lead:], span=max(1, len(rest) - 1))
            else:
                stamp(a, 3)
                last_cb(acc, mf, fr, fc)
    nfull = T - 1 if peel else T
    niter = nfull // N
    assert niter * N == nfull, (T, N, peel)
    a.I(f"s_mov_b32 s{s_cnt}, {niter}")
    a.L(f"{pfx}_loop")
    for b in range(N):
        stage(b, False, b)
    a.I(f"s_sub_u32 s{s_cnt}, s{s_cnt}, 1")
    a.I(f"s_cmp_lg_u32 s{s_cnt}, 0")
    a.I(f"s_cbranch_scc1 {pfx}_loop")
    if peel:
        stage(0, True, None)
    else:
        stamp(a, 3)
        a.I("s_waitcnt lgkmcnt(0)")
        last_cb(acc, [], fr, fc)
    return acc, fr, fc

def zero_acc(a):
    def f(acc):
        for row in acc:
            for r in row:
                for i in range(16): a.I(f"v_mov_b32 {v(r+i)}, 0")
    return f

def pack_ops(accr, dst, scale_s=None, neg=False, swap=False):
    out = []
    if scale_s is not None:
        for i in range(16): out.append(f"v_mul_f32 {v(accr+i)}, s{scale_s}, {v(accr+i)}")
    n = "-" if neg else ""
    for i in range(8):
        out.append(f"v_cvt_pk_bf16_f32 {v(dst+i)}, {n}{v(accr+2*i)}, {n}{v(accr+2*i+1)}")
    if swap:
        for g in range(2):
            out.append(f"v_permlane32_swap_b32 {v(dst+4*g)}, {v(dst+4*g+2)}")
            out.append(f"v_permlane32_swap_b32 {v(dst+4*g+1)}, {v(dst+4*g+3)}")
    return out

def tail_interleave(a, mf, blocks, lag=2):
    n = len(blocks)
    for i, m in enumerate(mf):
        a.I(m)
        if i - lag >= 0:
            for t in blocks[i - lag]: a.I(t)
    for i in range(max(0, len(mf) - lag), n):
        for t in blocks[i]: a.I(t)

def gen_k1(a, cfg):
    name = "k1_kernel"
    N = 3; T = 16
    stm = cfg.get("st1", " sc1")
    RB = 0; CB = 4 * N * SUB
    kernel_head(a, name, 256)
    a.I("s_lshr_b32 s7, s4, 1")
    a.I("s_and_b32 s6, s4, 1")
    a.I("s_lshl_b32 s6, s6, 2")
    a.I("s_and_b32 s4, s5, 3")
    a.I("s_add_u32 s6, s6, s4")
    a.I("s_lshr_b32 s5, s5, 2")
    a.I(f"s_cmp_lt_u32 s{S_WAVE}, 4")
    a.I(f"s_cbranch_scc1 {name}_comp")
    va = Alloc(1, 256); sa = Alloc(S_FREE0, 76)
    tmp = va.get(4)
    srdx = sa.get(4, 4); srdw = sa.get(4, 4)
    s_lw = sa.get(); s_row = sa.get(); s_wbr = sa.get(); s_wbc = sa.get(); s_t = sa.get(); s_t2 = sa.get()
    a.I(f"s_sub_u32 s{s_lw}, s{S_WAVE}, 4")
    a.I(f"s_lshl_b32 s{s_row}, s6, 8")
    a.I(f"s_lshl_b32 s{s_t}, s{s_lw}, 6")
    a.I(f"s_add_u32 s{s_row}, s{s_row}, s{s_t}")
    a.I(f"s_mul_i32 s{s_wbr}, s{s_lw}, {N*SUB}")
    a.I(f"s_lshr_b32 s{s_t}, s{s_lw}, 1")
    a.I(f"s_mul_i32 s{s_wbc}, s{s_t}, {N*SUB}")
    a.I(f"s_and_b32 s{s_t2}, s{s_lw}, 1")
    a.I(f"s_lshl_b32 s{s_t2}, s{s_t2}, 12")
    a.I(f"s_add_u32 s{s_wbc}, s{s_wbc}, s{s_t2}")
    a.I(f"s_add_u32 s{s_wbc}, s{s_wbc}, {CB}")
    gR = lset_rm(a, va, sa, srdx, s_row, 8, 2048, s_wbr, tmp)
    a.I(f"s_mov_b32 s{srdx+2}, {2048*2048}")
    a.I(f"s_mov_b32 s{srdx+3}, 0x00020000")
    a.I(f"s_mov_b32 s{srdw+3}, 0x00020000")
    a.I("s_cmp_eq_u32 s7, 3")
    a.I(f"s_cbranch_scc1 {name}_lda")
    save = (va.n, sa.n)
    s_col = sa.get(); s_kr = sa.get()
    a.I(f"s_lshl_b32 s{s_col}, s7, 11")
    a.I(f"s_lshl_b32 s{s_kr}, s5, 8")
    a.I(f"s_add_u32 s{s_col}, s{s_col}, s{s_kr}")
    a.I(f"s_lshl_b32 s{s_t}, s{s_t}, 7")
    a.I(f"s_add_u32 s{s_col}, s{s_col}, s{s_t}")
    a.I(f"s_lshr_b32 s{s_kr}, s{s_t2}, 7")
    gC = lset_tr(a, va, sa, srdw, s_kr, s_col, 6144, s_wbc, tmp)
    a.I(f"s_mov_b32 s{srdw+2}, {1024*6144}")
    a.I("s_waitcnt lgkmcnt(0)")
    a.I(f"s_mov_b64 s[{srdx}:{srdx+1}], s[{P_BX}:{P_BX+1}]")
    a.I(f"s_mov_b64 s[{srdw}:{srdw+1}], s[{P_WQKV}:{P_WQKV+1}]")
    loader_main(a, "k1q", sa, [gR, gC], T, N, T, cfg, 0)
    hv = va.hi; hs = sa.hi
    a.L(f"{name}_lda")
    va.n, sa.n = save
    s_r2 = sa.get()
    a.I(f"s_lshl_b32 s{s_r2}, s5, 7")
    a.I(f"s_lshl_b32 s{s_t}, s{s_lw}, 5")
    a.I(f"s_add_u32 s{s_r2}, s{s_r2}, s{s_t}")
    gC = lset_rm(a, va, sa, srdw, s_r2, 4, 2048, s_wbc, tmp)
    a.I(f"s_mov_b32 s{srdw+2}, {1024*2048}")
    a.I("s_waitcnt lgkmcnt(0)")
    a.I(f"s_mov_b64 s[{srdx}:{srdx+1}], s[{P_AX}:{P_AX+1}]")
    a.I(f"s_mov_b64 s[{srdw}:{srdw+1}], s[{P_WR}:{P_WR+1}]")
    loader_main(a, "k1a", sa, [gR, gC], T, N, T, cfg, 0)
    hv = max(hv, va.hi); hs = max(hs, sa.hi)
    a.L(f"{name}_comp")
    va = Alloc(1, 256); sa = Alloc(S_FREE0, 76)
    tmp = va.get(3)
    vst = va.get(2)
    srdo = sa.get(4, 4)
    s_wm = sa.get(); s_wn = sa.get(); s_b = sa.get(); s_o = sa.get(); s_t = sa.get(); s_sc = sa.get(); s_sb = sa.get()
    a.I(f"s_lshr_b32 s{s_wm}, s{S_WAVE}, 1")
    a.I(f"s_and_b32 s{s_wn}, s{S_WAVE}, 1")
    a.I(f"s_mul_i32 s{s_b}, s{s_wm}, {2*N*SUB}")
    R = RdRM(a, va, s_b, lambda m: (m >> 1) * N * SUB + (m & 1) * 4096, tmp)
    regs = ([[va.get(16, 4) for n in range(2)] for m in range(4)],
            [[va.get(4, 4) for m in range(4)] for _ in range(2)],
            [[va.get(4, 4) for n in range(2)] for _ in range(2)])
    pk = va.get(24, 4)
    a.I(f"s_lshl_b32 s{s_sb}, s6, 3")
    a.I(f"s_lshl_b32 s{s_t}, s{s_wm}, 2")
    a.I(f"s_add_u32 s{s_sb}, s{s_sb}, s{s_t}")
    a.I(f"v_lshlrev_b32 {v(vst)}, 4, v0")
    a.I(f"s_mov_b32 s{srdo+2}, {WS_OF}")
    a.I(f"s_mov_b32 s{srdo+3}, 0x00020000")
    a.I("s_cmp_eq_u32 s7, 3")
    a.I(f"s_cbranch_scc1 {name}_ca")
    save = (va.n, sa.n)
    a.I(f"s_mov_b32 s{s_b}, {CB}")
    C = RdTR(a, va, sa, s_b, N * SUB, False, "parts", s_wn, tmp)
    s_h = sa.get()
    a.I(f"s_lshl_b32 s{s_h}, s5, 2")
    a.I(f"s_add_u32 s{s_h}, s{s_h}, s{s_wn}")
    a.I("s_cmp_eq_u32 s7, 0")
    a.I(f"s_cbranch_scc1 {name}_cq")
    a.I(f"s_mul_i32 s{s_o}, s{s_h}, {KV_HSTRIDE}")
    a.I(f"s_lshl_b32 s{s_t}, s{s_sb}, 12")
    a.I(f"s_add_u32 s{s_o}, s{s_o}, s{s_t}")
    a.I(f"s_add_u32 s{s_o}, s{s_o}, {WS_KV}")
    a.I(f"v_add_u32 {v(vst+1)}, {2*KV_HSTRIDE}, {v(vst)}")
    s_mstep = sa.get()
    a.I(f"s_mov_b32 s{s_mstep}, 4096")
    a.I("s_cmp_eq_u32 s7, 2")
    a.I(f"s_cbranch_scc1 {name}_cv")
    a.I(f"s_branch {name}_cqk")
    a.L(f"{name}_cq")
    a.I(f"s_lshl_b32 s{s_o}, s{s_h}, 6")
    a.I(f"s_add_u32 s{s_o}, s{s_o}, s{s_sb}")
    a.I(f"s_lshl_b32 s{s_o}, s{s_o}, 11")
    a.I(f"s_add_u32 s{s_o}, s{s_o}, {WS_QF}")
    a.I(f"v_add_u32 {v(vst+1)}, {2*64*2048}, {v(vst)}")
    a.I(f"s_mov_b32 s{s_sc}, {f32hex(QSCALE)}")
    a.I(f"s_mov_b32 s{s_mstep}, 2048")
    def mk_last(scale, swp, off0, mstep_s=None, mimm=None):
        def last(acc, mf, fr, fc):
            a.I(f"s_mov_b64 s[{srdo}:{srdo+1}], s[{P_WS}:{P_WS+1}]")
            blocks = []
            i = 0
            for m in range(4):
                for n in range(2):
                    d = pk + 8 * (i % 3); i += 1
                    ops = pack_ops(acc[m][n], d, scale, swap=swp)
                    for j in range(2):
                        off = off0 + j * 1024 + (mimm * m if mimm else 0)
                        ops.append(f"buffer_store_dwordx4 {v(d+4*j,4)}, {v(vst+n)}, {s(srdo,4)}, s{s_o} offen offset:{off}{stm}")
                    if n == 1 and mstep_s is not None:
                        ops.append(f"s_add_u32 s{s_o}, s{s_o}, s{mstep_s}")
                    blocks.append(ops)
            tail_interleave(a, mf, blocks)
            stamp_out(a, 0)
            a.I("s_endpgm")
        return last
    a.L(f"{name}_cqk")
    a.I("s_waitcnt lgkmcnt(0)")
    def last_qk(acc, mf, fr, fc):
        a.I("s_cmp_eq_u32 s7, 0")
        a.I(f"s_cbranch_scc0 {name}_tk")
        mk_last(s_sc, False, 0, s_mstep)(acc, mf, fr, fc)
        a.L(f"{name}_tk")
        mk_last(None, False, 0, s_mstep)(acc, mf, fr, fc)
    gemm_compute(a, "k1qk", va, sa, R, C, 4, 2, True, T, N, zero_acc(a), last_qk, regs=regs)
    a.L(f"{name}_cv")
    a.I(f"s_add_u32 s{s_o}, s{s_o}, 4096")
    a.I("s_waitcnt lgkmcnt(0)")
    gemm_compute(a, "k1v", va, sa, R, C, 4, 2, False, T, N, zero_acc(a), mk_last(None, False, 2048, s_mstep), regs=regs)
    hv = max(hv, va.hi); hs = max(hs, sa.hi)
    a.L(f"{name}_ca")
    va.n, sa.n = save
    a.I(f"s_lshl_b32 s{s_b}, s{s_wn}, 12")
    a.I(f"s_add_u32 s{s_b}, s{s_b}, {CB}")
    C = RdRM(a, va, s_b, lambda n: n * N * SUB, tmp)
    a.I(f"s_lshl_b32 s{s_o}, s5, 2")
    a.I(f"s_add_u32 s{s_o}, s{s_o}, s{s_wn}")
    a.I(f"s_lshl_b32 s{s_o}, s{s_o}, 17")
    a.I(f"s_lshl_b32 s{s_t}, s{s_sb}, 11")
    a.I(f"s_add_u32 s{s_o}, s{s_o}, s{s_t}")
    a.I(f"v_add_u32 {v(vst+1)}, {2<<17}, {v(vst)}")
    s_mstep = sa.get()
    a.I(f"s_mov_b32 s{s_mstep}, 2048")
    a.I("s_waitcnt lgkmcnt(0)")
    gemm_compute(a, "k1a", va, sa, R, C, 4, 2, False, T, N, zero_acc(a), mk_last(None, True, 0, s_mstep), regs=regs)
    hv = max(hv, va.hi); hs = max(hs, sa.hi)
    kernel_tail(a, name)
    return dict(name=name, grid=256, block=512, lds=6*N*SUB, vgpr=hv, sgpr=hs)

MBIAS = 96.0
def att_role(a, cfg, N, kvoff):
    summode = cfg.get("sum", "pk")
    stm = cfg.get("st2", " sc1")
    va = Alloc(1, 168); sa = Alloc(S_FREE0, 76)
    vl16 = 0
    vkv = va.get()
    L = [va.get(2, 2) for _ in range(2)]
    Q = [[va.get(4, 2) for j in range(2)] for qb in range(2)]
    NM = [va.get(16, 2) for _ in range(2)]
    S = [va.get(16, 2) for _ in range(2)]
    O = [va.get(16, 2) for _ in range(2)]
    P = [va.get(8, 2) for _ in range(2)]
    K = [[va.get(4, 2) for j in range(2)] for b in range(2)]
    V = [[va.get(4, 2) for j in range(2)] for b in range(2)]
    srd = sa.get(4, 4)
    s_h = sa.get(); s_sb = sa.get(); s_q = sa.get(); s_kv = sa.get(); s_t = sa.get(); s_fb = sa.get()
    s_cnt = sa.get(); s_one = sa.get()
    a.I(f"s_lshl_b32 s{s_h}, s4, 2")
    a.I(f"s_lshr_b32 s{s_t}, s5, 3")
    a.I(f"s_add_u32 s{s_h}, s{s_h}, s{s_t}")
    a.I(f"s_and_b32 s{s_sb}, s5, 7")
    a.I(f"s_lshl_b32 s{s_sb}, s{s_sb}, 3")
    a.I(f"s_lshl_b32 s{s_t}, s{S_WAVE}, 1")
    a.I(f"s_add_u32 s{s_sb}, s{s_sb}, s{s_t}")
    a.I(f"s_lshl_b32 s{s_q}, s{s_h}, 6")
    a.I(f"s_add_u32 s{s_q}, s{s_q}, s{s_sb}")
    a.I(f"s_lshl_b32 s{s_q}, s{s_q}, 11")
    a.I(f"s_add_u32 s{s_q}, s{s_q}, {WS_QF}")
    a.I(f"s_mul_i32 s{s_kv}, s{s_h}, {KV_HSTRIDE}")
    a.I(f"s_add_u32 s{s_kv}, s{s_kv}, {WS_KV}")
    a.I(f"v_lshlrev_b32 {v(vl16)}, 4, v0")
    a.I(f"s_mov_b32 s{srd+2}, {WS_PF}")
    a.I(f"s_mov_b32 s{srd+3}, 0x00020000")
    a.I("s_waitcnt lgkmcnt(0)")
    a.I(f"s_mov_b64 s[{srd}:{srd+1}], s[{P_WS}:{P_WS+1}]")
    for j in range(2):
        a.I(f"buffer_load_dwordx4 {v(K[0][j],4)}, {v(vl16)}, {s(srd,4)}, s{s_kv} offen offset:{j*1024}")
    for qb in range(2):
        for j in range(2):
            a.I(f"buffer_load_dwordx4 {v(Q[qb][j],4)}, {v(vl16)}, {s(srd,4)}, s{s_q} offen offset:{qb*2048+j*1024}")
    a.I(f"v_add_u32 {v(vkv)}, {kvoff}, {v(vl16)}")
    a.I(f"s_mov_b32 s{s_fb}, 0")
    a.I(f"s_mov_b32 s{s_one}, 0x3f803f80")
    def zero_state():
        for qb in range(2):
            for i in range(16): a.I(f"v_mov_b32 {v(O[qb]+i)}, 0")
            for i in range(2): a.I(f"v_mov_b32 {v(L[qb]+i)}, 0")
    zero_state()
    for i in range(8): a.I(f"v_mov_b32 {v(P[1]+i)}, 0")
    for j in range(2):
        for i in range(4): a.I(f"v_mov_b32 {v(V[0][j]+i)}, 0")
    def s_mfma(qb, kbuf, c):
        return [f"{MF} {v(S[qb],16)}, {v(K[kbuf][0],4)}, {v(Q[qb][0],4)}, {c}",
                f"{MF} {v(S[qb],16)}, {v(K[kbuf][1],4)}, {v(Q[qb][1],4)}, {v(S[qb],16)}"]
    def pv_mfma(qb, vbuf):
        return [f"{MF} {v(O[qb],16)}, {v(V[vbuf][j],4)}, {v(P[qb]+4*j,4)}, {v(O[qb],16)}" for j in range(2)]
    def set_negm(qb, mreg, t1, bias):
        a.I(f"v_mov_b32 {v(t1)}, {v(mreg)}")
        a.I(f"v_permlane32_swap_b32 {v(mreg)}, {v(t1)}")
        a.I(f"v_max_f32 {v(mreg)}, {v(mreg)}, {v(t1)}")
        a.I(f"v_sub_f32 {v(NM[qb])}, {f32hex(-bias)}, {v(mreg)}")
        for i in range(1, 16): a.I(f"v_mov_b32 {v(NM[qb]+i)}, {v(NM[qb])}")
    def max16(dst, sreg, first):
        i = 0
        if first:
            a.I(f"v_max3_f32 {v(dst)}, {v(sreg)}, {v(sreg+1)}, {v(sreg+2)}"); i = 3
        while i < 16:
            if i + 1 < 16:
                a.I(f"v_max3_f32 {v(dst)}, {v(dst)}, {v(sreg+i)}, {v(sreg+i+1)}"); i += 2
            else:
                a.I(f"v_max_f32 {v(dst)}, {v(dst)}, {v(sreg+i)}"); i += 1
    def valu_groups(qb):
        gs = []
        for g in range(4):
            r = S[qb] + 4 * g
            x = [f"v_exp_f32 {v(r+i)}, {v(r+i)}" for i in range(4)]
            for h in range(2):
                x.append(f"v_cvt_pk_bf16_f32 {v(P[qb]+2*g+h)}, {v(r+2*h)}, {v(r+2*h+1)}")
                if summode == "pk":
                    x.append(f"v_pk_add_f32 {v(L[qb],2)}, {v(L[qb],2)}, {v(r+2*h,2)}")
                elif summode == "add":
                    x.append(f"v_add_f32 {v(L[qb])}, {v(L[qb])}, {v(r+2*h)}")
                    x.append(f"v_add_f32 {v(L[qb]+1)}, {v(L[qb]+1)}, {v(r+2*h+1)}")
                elif summode == "dot":
                    x.append(f"v_dot2_f32_bf16 {v(L[qb]+h)}, {v(P[qb]+2*g+h)}, s{s_one}, {v(L[qb]+h)}")
            gs.append(x)
        return gs
    tmp = P[0]
    a.I("s_waitcnt vmcnt(0)")
    for qb in range(2):
        for t in s_mfma(qb, 0, "0"): a.I(t)
    for qb in range(2):
        max16(tmp, S[qb], True)
        set_negm(qb, tmp, tmp + 1, MBIAS)
        if qb == 0:
            for t in s_mfma(0, 0, v(NM[0], 16)): a.I(t)
    a.I(f"s_mov_b32 s{s_cnt}, {32 // N}")
    a.I("s_barrier")
    stamp(a, 2)
    a.L("att_loop")
    for buf in range(N):
        for sl in range(4):
            qb = sl % 2; o = 1 - qb
            kbuf = ((sl + 1) // 2) % 2
            vbuf = (((sl - 1) // 2) + 1) % 2
            m = s_mfma(o, kbuf, v(NM[o], 16)) + pv_mfma(o, vbuf)
            gs = valu_groups(qb)
            if sl % 2 == 1: a.I("s_waitcnt lgkmcnt(0)")
            extra = [[], [], [], []]
            if sl == 3: extra[0] = ["s_barrier"]
            if sl % 2 == 0:
                rb = (sl // 2 + 1) % 2
                ro = (sl // 2) * 4096 + buf * SUB
                extra[0] = [f"ds_read_b128 {v(K[rb][j],4)}, {v(vkv)} offset:{ro + j*1024}" for j in range(2)]
                extra[1] = [f"ds_read_b128 {v(V[rb][j],4)}, {v(vkv)} offset:{ro + 2048 + j*1024}" for j in range(2)]
            if sl == 3 and buf == N - 1:
                extra[1] = [f"s_sub_u32 s{s_cnt}, s{s_cnt}, 1", f"s_cmp_lg_u32 s{s_cnt}, 0"]
            for g in range(4):
                if not cfg.get("attoff", 0) & 1: a.I(m[g])
                for t in extra[g]:
                    if not (cfg.get("attoff", 0) & 4 and t.startswith("ds_read")): a.I(t)
                if not cfg.get("attoff", 0) & 2:
                    for t in gs[g]: a.I(t)
    a.I("s_cbranch_scc1 att_loop")
    stamp(a, 3)
    for t in pv_mfma(1, 0): a.I(t)
    tmp = S[0]
    a.L("att_fin")
    for qb in range(2):
        a.I(f"v_add_f32 {v(L[qb])}, {v(L[qb])}, {v(L[qb]+1)}")
        a.I(f"v_mov_b32 {v(L[qb]+1)}, {v(L[qb])}")
        a.I(f"v_permlane32_swap_b32 {v(L[qb])}, {v(L[qb]+1)}")
        a.I(f"v_add_f32 {v(L[qb])}, {v(L[qb])}, {v(L[qb]+1)}")
    a.I(f"s_lshl_b32 s{s_t}, s{s_sb}, 16")
    a.I(f"s_lshl_b32 s{s_q}, s{s_h}, 11")
    a.I(f"s_add_u32 s{s_t}, s{s_t}, s{s_q}")
    a.I(f"s_add_u32 s{s_t}, s{s_t}, {WS_OF}")
    a.I(f"v_add_u32 {v(tmp+4)}, 0x10000, {v(vl16)}")
    a.I(f"v_rcp_f32 {v(tmp+2)}, {v(L[0])}")
    a.I(f"v_rcp_f32 {v(tmp+3)}, {v(L[1])}")
    a.I(f"s_cmp_lg_u32 s{s_fb}, 0")
    a.I("s_cbranch_scc1 att_store")
    a.I(f"v_max_f32 {v(tmp)}, {v(L[0])}, {v(L[1])}")
    a.I(f"v_mul_f32 {v(tmp+1)}, 0, {v(L[0])}")
    a.I(f"v_mul_f32 {v(tmp+5)}, 0, {v(L[1])}")
    for i in range(16):
        a.I(f"v_fmac_f32 {v(tmp+1)}, 0, {v(O[0]+i)}")
        a.I(f"v_fmac_f32 {v(tmp+5)}, 0, {v(O[1]+i)}")
    a.I(f"v_add_f32 {v(tmp)}, {v(tmp)}, {v(tmp+1)}")
    a.I(f"v_add_f32 {v(tmp)}, {v(tmp)}, {v(tmp+5)}")
    a.I(f"v_cmp_ngt_f32 vcc, {f32hex(2.0**120)}, {v(tmp)}")
    if not cfg.get("attoff", 0): a.I("s_cbranch_vccnz att_fallback")
    a.L("att_store")
    for qb in range(2):
        for i in range(16): a.I(f"v_mul_f32 {v(O[qb]+i)}, {v(tmp+2+qb)}, {v(O[qb]+i)}")
        for t in pack_ops(O[qb], P[qb]): a.I(t)
        for j in range(2):
            a.I(f"buffer_store_dwordx4 {v(P[qb]+4*j,4)}, {v(vl16 if qb == 0 else tmp+4)}, {s(srd,4)}, s{s_t} offen offset:{j*1024}{stm}")
    stamp_out(a, 1)
    a.I("s_endpgm")
    tmp = P[0]
    a.L("att_fallback")
    a.I(f"s_mov_b32 s{s_fb}, 1")
    a.I(f"s_mov_b32 s{s_t}, s{s_kv}")
    a.I(f"s_mov_b32 s{s_cnt}, 0")
    a.I(f"v_mov_b32 {v(tmp+2)}, 0xff800000")
    a.I(f"v_mov_b32 {v(tmp+3)}, 0xff800000")
    a.L("att_fb1")
    for j in range(2):
        a.I(f"buffer_load_dwordx4 {v(K[0][j],4)}, {v(vl16)}, {s(srd,4)}, s{s_t} offen offset:{j*1024}")
    a.I("s_waitcnt vmcnt(0)")
    for qb in range(2):
        for t in s_mfma(qb, 0, "0"): a.I(t)
    for qb in range(2): max16(tmp + 2 + qb, S[qb], False)
    a.I(f"s_add_u32 s{s_t}, s{s_t}, 4096")
    a.I(f"s_add_u32 s{s_cnt}, s{s_cnt}, 1")
    a.I(f"s_cmp_lt_u32 s{s_cnt}, 64")
    a.I("s_cbranch_scc1 att_fb1")
    for qb in range(2): set_negm(qb, tmp + 2 + qb, tmp + 1, 0.0)
    zero_state()
    a.I(f"s_mov_b32 s{s_t}, s{s_kv}")
    a.I(f"s_mov_b32 s{s_cnt}, 0")
    va2 = K[1][0]
    a.I(f"v_add_u32 {v(va2)}, 4096, {v(vl16)}")
    a.L("att_fb2")
    for j in range(2):
        a.I(f"buffer_load_dwordx4 {v(K[0][j],4)}, {v(vl16)}, {s(srd,4)}, s{s_t} offen offset:{j*1024}")
        a.I(f"buffer_load_dwordx4 {v(V[0][j],4)}, {v(va2)}, {s(srd,4)}, s{s_t} offen offset:{2048+j*1024}")
    a.I("s_waitcnt vmcnt(0)")
    for qb in range(2):
        for t in s_mfma(qb, 0, v(NM[qb], 16)): a.I(t)
    for qb in range(2):
        for g in valu_groups(qb):
            for t in g: a.I(t)
        for t in pv_mfma(qb, 0): a.I(t)
    a.I(f"s_add_u32 s{s_t}, s{s_t}, 4096")
    a.I(f"s_add_u32 s{s_cnt}, s{s_cnt}, 1")
    a.I(f"s_cmp_lt_u32 s{s_cnt}, 64")
    a.I("s_cbranch_scc1 att_fb2")
    a.I("s_branch att_fin")
    return va.hi, sa.hi

def gen_k2(a, cfg):
    name = "k2_kernel"
    N = 4; T = 32
    stm = cfg.get("st2", " sc1")
    RB = 0; CB = 2 * N * SUB; KB = 4 * N * SUB
    kernel_head(a, name, 256)
    a.I(f"s_cmp_ge_u32 s{S_WAVE}, 4")
    a.I(f"s_cbranch_scc1 {name}_g3")
    if cfg.get("prio_att"): a.I(f"s_setprio {cfg['prio_att']}")
    hv, hs = att_role(a, cfg, N, KB)
    a.L(f"{name}_g3")
    sa = Alloc(S_FREE0, 76)
    s_tb = sa.get(); s_eb = sa.get(); s_t = sa.get(); s_t2 = sa.get()
    a.I("s_and_b32 s7, s4, 1")
    a.I(f"s_lshr_b32 s{s_tb}, s4, 1")
    a.I(f"s_lshl_b32 s{s_tb}, s{s_tb}, 2")
    a.I(f"s_and_b32 s{s_t}, s5, 3")
    a.I(f"s_add_u32 s{s_tb}, s{s_tb}, s{s_t}")
    a.I(f"s_lshr_b32 s{s_eb}, s5, 2")
    a.I(f"s_cmp_lt_u32 s{S_WAVE}, 8")
    a.I(f"s_cbranch_scc1 {name}_comp")
    save_s = sa.n
    va = Alloc(1, 168)
    tmp = va.get(4)
    srdc = sa.get(4, 4); srdw = sa.get(4, 4); srdx = sa.get(4, 4)
    s_lw = sa.get(); s_row = sa.get(); s_wbr = sa.get(); s_wbc = sa.get(); s_wbk = sa.get(); s_kv = sa.get()
    a.I(f"s_sub_u32 s{s_lw}, s{S_WAVE}, 8")
    a.I(f"s_lshl_b32 s{s_row}, s{s_tb}, 7")
    a.I(f"s_lshl_b32 s{s_t}, s{s_lw}, 5")
    a.I(f"s_add_u32 s{s_row}, s{s_row}, s{s_t}")
    a.I(f"s_lshr_b32 s{s_t}, s{s_lw}, 1")
    a.I(f"s_mul_i32 s{s_wbr}, s{s_t}, {N*SUB}")
    a.I(f"s_and_b32 s{s_t2}, s{s_lw}, 1")
    a.I(f"s_lshl_b32 s{s_t2}, s{s_t2}, 12")
    a.I(f"s_add_u32 s{s_wbr}, s{s_wbr}, s{s_t2}")
    a.I(f"s_add_u32 s{s_wbc}, s{s_wbr}, {CB}")
    a.I(f"s_lshl_b32 s{s_wbk}, s{s_lw}, 11")
    a.I(f"s_lshl_b32 s{s_kv}, s4, 2")
    a.I(f"s_lshr_b32 s6, s5, 3")
    a.I(f"s_add_u32 s{s_kv}, s{s_kv}, s6")
    a.I(f"s_mul_i32 s{s_kv}, s{s_kv}, {KV_HSTRIDE}")
    a.I(f"s_add_u32 s{s_kv}, s{s_kv}, s{s_wbk}")
    a.I(f"s_add_u32 s{s_kv}, s{s_kv}, {WS_KV + 4096}")
    a.I(f"s_add_u32 s{s_wbk}, s{s_wbk}, {KB}")
    gK = lset_lin(a, va, sa, srdw, s_kv, 2, 8192, s_wbk)
    gR = lset_rm(a, va, sa, srdc, s_row, 4, 4096, s_wbr, tmp)
    rot = cfg.get("rot", 0) & 1
    s_sh4 = sa.get(); s_sh8 = sa.get()
    a.I(f"s_and_b32 s{s_sh4}, s5, 3")
    a.I(f"s_and_b32 s{s_sh8}, s5, 7")
    gK.set_pf_lin(a, sa, cfg, s_kv, s_sh8, 256)
    if rot: gR.s_base = sa.get()
    else: gR.set_pf_rm(a, sa, cfg, s_row, s_eb, 4, 4096); gR.pflim = 2048*4096
    a.I(f"s_mov_b32 s{srdc+2}, {2048*4096}")
    a.I(f"s_mov_b32 s{srdc+3}, 0x00020000")
    a.I(f"s_mov_b32 s{srdw+2}, {WS_OF}")
    a.I(f"s_mov_b32 s{srdw+3}, 0x00020000")
    a.I("s_cmp_eq_u32 s7, 1")
    a.I(f"s_cbranch_scc1 {name}_ldv")
    save = (va.n, sa.n)
    s_g = sa.get()
    a.I(f"s_lshl_b32 s{s_g}, s{s_eb}, 2")
    a.I(f"s_add_u32 s{s_g}, s{s_g}, s{s_lw}")
    a.I(f"s_lshl_b32 s{s_g}, s{s_g}, 17")
    gC = lset_lin(a, va, sa, srdw, s_g, 4, 4096, s_wbc)
    if rot: gC.s_base = sa.get()
    else: gC.set_pf_lin(a, sa, cfg, s_g, s_sh4, 1024)
    a.I("s_waitcnt lgkmcnt(0)")
    a.I(f"s_mov_b64 s[{srdc}:{srdc+1}], s[{P_CR}:{P_CR+1}]")
    a.I(f"s_mov_b64 s[{srdw}:{srdw+1}], s[{P_WS}:{P_WS+1}]")
    gm = cfg.get("gmask", 7)
    loader_main(a, "k2p", sa, [g for i, g in enumerate([gK, gR, gC]) if gm >> i & 1], T, N, T + 1, cfg, 1)
    hv = max(hv, va.hi); hs = max(hs, sa.hi)
    a.L(f"{name}_ldv")
    va.n, sa.n = save
    s_col = sa.get(); s_kr = sa.get()
    a.I(f"s_lshl_b32 s{s_col}, s{s_eb}, 8")
    a.I(f"s_lshl_b32 s{s_t}, s{s_t}, 7")
    a.I(f"s_add_u32 s{s_col}, s{s_col}, s{s_t}")
    a.I(f"s_lshr_b32 s{s_kr}, s{s_t2}, 7")
    gC = lset_tr(a, va, sa, srdx, s_kr, s_col, 2048, s_wbc, tmp)
    if rot: gC.s_base = sa.get()
    else:
        a.I(f"s_lshl_b32 s{s_t}, s{s_eb}, 8")
        gC.set_pf_tr(a, sa, cfg, s_t, s_lw, s_sh4, 2048); gC.pflim = 2048*2048
    a.I(f"s_mov_b32 s{srdx+2}, {2048*2048}")
    a.I(f"s_mov_b32 s{srdx+3}, 0x00020000")
    a.I("s_waitcnt lgkmcnt(0)")
    a.I(f"s_mov_b64 s[{srdc}:{srdc+1}], s[{P_CI}:{P_CI+1}]")
    a.I(f"s_mov_b64 s[{srdw}:{srdw+1}], s[{P_WS}:{P_WS+1}]")
    a.I(f"s_mov_b64 s[{srdx}:{srdx+1}], s[{P_AX}:{P_AX+1}]")
    loader_main(a, "k2v", sa, [g for i, g in enumerate([gK, gR, gC]) if gm >> i & 1], T, N, T + 1, cfg, 1)
    hv = max(hv, va.hi); hs = max(hs, sa.hi)
    a.L(f"{name}_comp")
    if cfg.get("prio_g3"): a.I(f"s_setprio {cfg['prio_g3']}")
    sa.n = save_s
    va = Alloc(1, 168)
    tmp = va.get(3); vst = va.get(2)
    srdo = sa.get(4, 4)
    s_wm = sa.get(); s_wn = sa.get(); s_b = sa.get(); s_o = sa.get()
    a.I(f"s_bfe_u32 s{s_wm}, s{S_WAVE}, 0x10001")
    a.I(f"s_and_b32 s{s_wn}, s{S_WAVE}, 1")
    a.I(f"s_mul_i32 s{s_b}, s{s_wm}, {N*SUB}")
    R = RdRM(a, va, s_b, lambda m: m * 4096, tmp)
    regs = ([[va.get(16, 4) for n in range(2)] for m in range(2)],
            [[va.get(4, 4) for m in range(2)] for _ in range(2)],
            [[va.get(4, 4) for n in range(2)] for _ in range(2)])
    a.I(f"s_lshl_b32 s{s_o}, s{s_tb}, 1")
    a.I(f"s_add_u32 s{s_o}, s{s_o}, s{s_wm}")
    a.I(f"s_lshl_b32 s{s_o}, s{s_o}, 6")
    a.I(f"s_lshl_b32 s{s_t}, s{s_eb}, 2")
    a.I(f"s_add_u32 s{s_o}, s{s_o}, s{s_t}")
    a.I(f"s_add_u32 s{s_o}, s{s_o}, s{s_wn}")
    a.I(f"s_lshl_b32 s{s_o}, s{s_o}, 11")
    a.I(f"s_mul_i32 s{s_t}, s7, {WS_VF - WS_PF}")
    a.I(f"s_add_u32 s{s_o}, s{s_o}, s{s_t}")
    a.I(f"s_add_u32 s{s_o}, s{s_o}, {WS_PF}")
    a.I(f"s_add_u32 s{s_t2}, s{s_o}, 4096")
    a.I(f"v_lshlrev_b32 {v(vst)}, 4, v0")
    a.I(f"v_add_u32 {v(vst+1)}, 0x10000, {v(vst)}")
    a.I(f"s_mov_b32 s{srdo+2}, {WS_END}")
    a.I(f"s_mov_b32 s{srdo+3}, 0x00020000")
    def mk_last(isv):
        def last(acc, mf, fr, fc):
            a.I(f"s_mov_b64 s[{srdo}:{srdo+1}], s[{P_WS}:{P_WS+1}]")
            pk = fr[0][0]; i = 0
            for m in range(2):
                for n in range(2):
                    d = pk + 8 * i; i += 1
                    for t in pack_ops(acc[m][n], d, neg=isv, swap=isv): a.I(t)
                    for g in range(2):
                        a.I(f"buffer_store_dwordx4 {v(d+4*g,4)}, {v(vst+m)}, {s(srdo,4)}, s{s_o if n == 0 else s_t2} offen offset:{g*1024}{stm}")
            stamp_out(a, 1)
            a.I("s_endpgm")
        return last
    pace = cfg.get("pace", 10)
    a.I("s_cmp_eq_u32 s7, 1")
    a.I(f"s_cbranch_scc1 {name}_cv")
    save = (va.n, sa.n)
    a.I(f"s_lshl_b32 s{s_b}, s{s_wn}, 12")
    a.I(f"s_add_u32 s{s_b}, s{s_b}, {CB}")
    C = RdFM(a, va, s_b, lambda n: n * N * SUB, tmp)
    a.I("s_waitcnt lgkmcnt(0)")
    gemm_compute(a, "k2p", va, sa, R, C, 2, 2, True, T, N, zero_acc(a), mk_last(False), peel=False, pace=pace, regs=regs, off=cfg.get("g3off", 0))
    hv = max(hv, va.hi); hs = max(hs, sa.hi)
    a.L(f"{name}_cv")
    va.n, sa.n = save
    a.I(f"s_mov_b32 s{s_b}, {CB}")
    C = RdTR(a, va, sa, s_b, N * SUB, False, "parts", s_wn, tmp)
    a.I("s_waitcnt lgkmcnt(0)")
    gemm_compute(a, "k2v", va, sa, R, C, 2, 2, True, T, N, zero_acc(a), mk_last(True), peel=False, pace=max(0, pace - cfg.get("pacev", 1)), regs=regs, off=cfg.get("g3off", 0))
    hv = max(hv, va.hi); hs = max(hs, sa.hi)
    kernel_tail(a, name)
    return dict(name=name, grid=256, block=768, lds=5*N*SUB, vgpr=hv, sgpr=hs)

def gen_k3(a, cfg):
    name = "k3_kernel"
    N = 5; T = 16
    stm = cfg.get("st3", "")
    RB = 0; CB = 2 * N * SUB
    kernel_head(a, name, 256)
    a.I("s_lshr_b32 s7, s4, 2")
    a.I("s_and_b32 s6, s4, 3")
    a.I("s_lshl_b32 s6, s6, 2")
    a.I("s_and_b32 s4, s5, 3")
    a.I("s_add_u32 s6, s6, s4")
    a.I("s_lshr_b32 s5, s5, 2")
    a.I(f"s_cmp_lt_u32 s{S_WAVE}, 4")
    a.I(f"s_cbranch_scc1 {name}_comp")
    va = Alloc(1, 256); sa = Alloc(S_FREE0, 76)
    tmp = va.get(4)
    srdw = sa.get(4, 4); srdb = sa.get(4, 4)
    s_lw = sa.get(); s_wbr = sa.get(); s_wbc = sa.get(); s_t = sa.get(); s_t2 = sa.get(); s_g = sa.get()
    a.I(f"s_sub_u32 s{s_lw}, s{S_WAVE}, 4")
    a.I(f"s_lshr_b32 s{s_t}, s{s_lw}, 1")
    a.I(f"s_mul_i32 s{s_wbr}, s{s_t}, {N*SUB}")
    a.I(f"s_and_b32 s{s_t2}, s{s_lw}, 1")
    a.I(f"s_lshl_b32 s{s_t2}, s{s_t2}, 12")
    a.I(f"s_add_u32 s{s_wbr}, s{s_wbr}, s{s_t2}")
    a.I(f"s_add_u32 s{s_wbc}, s{s_wbr}, {CB}")
    a.I(f"s_lshl_b32 s{s_g}, s6, 2")
    a.I(f"s_add_u32 s{s_g}, s{s_g}, s{s_lw}")
    a.I(f"s_lshl_b32 s{s_g}, s{s_g}, 16")
    a.I(f"s_mul_i32 s4, s7, {WS_VF - WS_OF}")
    a.I(f"s_add_u32 s{s_g}, s{s_g}, s4")
    a.I(f"s_add_u32 s{s_g}, s{s_g}, {WS_OF}")
    gR = lset_lin(a, va, sa, srdw, s_g, 4, 4096, s_wbr)
    a.I(f"s_mov_b32 s{srdw+2}, {WS_END}")
    a.I(f"s_mov_b32 s{srdw+3}, 0x00020000")
    a.I(f"s_mov_b32 s{srdb+2}, {1024*2048}")
    a.I(f"s_mov_b32 s{srdb+3}, 0x00020000")
    a.I("s_cmp_eq_u32 s7, 1")
    a.I(f"s_cbranch_scc1 {name}_ldy")
    save = (va.n, sa.n)
    s_col = sa.get(); s_kr = sa.get()
    a.I(f"s_lshl_b32 s{s_col}, s5, 8")
    a.I(f"s_lshl_b32 s{s_t}, s{s_t}, 7")
    a.I(f"s_add_u32 s{s_col}, s{s_col}, s{s_t}")
    a.I(f"s_lshr_b32 s{s_kr}, s{s_t2}, 7")
    gC = lset_tr(a, va, sa, srdb, s_kr, s_col, 2048, s_wbc, tmp)
    a.I("s_waitcnt lgkmcnt(0)")
    a.I(f"s_mov_b64 s[{srdw}:{srdw+1}], s[{P_WS}:{P_WS+1}]")
    a.I(f"s_mov_b64 s[{srdb}:{srdb+1}], s[{P_WO}:{P_WO+1}]")
    loader_main(a, "k3o", sa, [gR, gC], T, N, T, cfg, 2)
    hv = va.hi; hs = sa.hi
    a.L(f"{name}_ldy")
    va.n, sa.n = save
    s_r2 = sa.get()
    a.I(f"s_lshl_b32 s{s_r2}, s5, 7")
    a.I(f"s_lshl_b32 s{s_t}, s{s_lw}, 5")
    a.I(f"s_add_u32 s{s_r2}, s{s_r2}, s{s_t}")
    gC = lset_rm(a, va, sa, srdb, s_r2, 4, 2048, s_wbc, tmp)
    a.I("s_waitcnt lgkmcnt(0)")
    a.I(f"s_mov_b64 s[{srdw}:{srdw+1}], s[{P_WS}:{P_WS+1}]")
    a.I(f"s_mov_b64 s[{srdb}:{srdb+1}], s[{P_WI}:{P_WI+1}]")
    loader_main(a, "k3y", sa, [gR, gC], T, N, T, cfg, 2)
    hv = max(hv, va.hi); hs = max(hs, sa.hi)
    a.L(f"{name}_comp")
    va = Alloc(1, 256); sa = Alloc(S_FREE0, 76)
    tmp = va.get(3); vst = va.get(2); vtw = va.get(); vtr = va.get()
    srdo = sa.get(4, 4); srdw = sa.get(4, 4)
    s_wm = sa.get(); s_wn = sa.get(); s_b = sa.get(); s_o = sa.get(); s_t = sa.get(); s_tb = sa.get()
    a.I(f"s_lshr_b32 s{s_wm}, s{S_WAVE}, 1")
    a.I(f"s_and_b32 s{s_wn}, s{S_WAVE}, 1")
    a.I(f"s_mul_i32 s{s_b}, s{s_wm}, {N*SUB}")
    R = RdFM(a, va, s_b, lambda m: m * 4096, tmp)
    regs = ([[va.get(16, 4) for n in range(2)] for m in range(2)],
            [[va.get(4, 4) for m in range(2)] for _ in range(2)],
            [[va.get(4, 4) for n in range(2)] for _ in range(2)])
    pk = va.get(32, 4)
    a.I(f"s_lshl_b32 s{s_tb}, s6, 1")
    a.I(f"s_add_u32 s{s_tb}, s{s_tb}, s{s_wm}")
    a.I(f"s_lshl_b32 s{s_o}, s{s_tb}, 18")
    a.I(f"s_lshl_b32 s{s_t}, s5, 8")
    a.I(f"s_add_u32 s{s_o}, s{s_o}, s{s_t}")
    a.I(f"s_lshl_b32 s{s_t}, s{s_wn}, 7")
    a.I(f"s_add_u32 s{s_o}, s{s_o}, s{s_t}")
    a.I(f"s_xor_b32 s{s_t}, s7, 1")
    a.I(f"s_lshl_b32 s{s_t}, s{s_t}, 11")
    a.I(f"s_add_u32 s{s_o}, s{s_o}, s{s_t}")
    a.I(f"s_mov_b32 s{srdo+2}, {2048*4096}")
    a.I(f"s_mov_b32 s{srdo+3}, 0x00020000")
    lt = cfg.get("ldst", 1)
    if lt:
        a.I(f"s_mul_i32 s{s_t}, s{S_WAVE}, {N*SUB}")
        a.I(f"s_add_u32 s{s_t}, s{s_t}, {2*SUB}")
        a.I(f"v_and_b32 {v(tmp)}, 31, v0")
        a.I(f"v_lshrrev_b32 {v(tmp+1)}, 5, v0")
        a.I(f"v_xor_b32 {v(tmp+1)}, {v(tmp+1)}, v0")
        a.I(f"v_and_b32 {v(tmp+1)}, 7, {v(tmp+1)}")
        a.I(f"v_lshlrev_b32 {v(tmp+1)}, 4, {v(tmp+1)}")
        a.I(f"v_lshl_add_u32 {v(tmp)}, {v(tmp)}, 7, {v(tmp+1)}")
        a.I(f"v_add_u32 {v(vtw)}, s{s_t}, {v(tmp)}")
        a.I(f"v_lshrrev_b32 {v(tmp)}, 3, v0")
        a.I(f"v_xor_b32 {v(tmp+1)}, {v(tmp)}, v0")
        a.I(f"v_and_b32 {v(tmp+1)}, 7, {v(tmp+1)}")
        a.I(f"v_lshlrev_b32 {v(vtr)}, 4, v0")
        a.I(f"v_add_u32 {v(vtr)}, s{s_t}, {v(vtr)}")
        a.I(f"v_lshlrev_b32 {v(vst)}, 12, {v(tmp)}")
        a.I(f"v_lshl_add_u32 {v(vst)}, {v(tmp+1)}, 4, {v(vst)}")
        vtw2 = [vtw] + [va.get() for _ in range(3)]
        for c in range(1, 4): a.I(f"v_xor_b32 {v(vtw2[c])}, {c*32}, {v(vtw)}")
    else:
        a.I(f"v_and_b32 {v(vst)}, 31, v0")
        a.I(f"v_lshlrev_b32 {v(vst)}, 12, {v(vst)}")
        a.I(f"v_lshrrev_b32 {v(tmp)}, 5, v0")
        a.I(f"v_lshl_add_u32 {v(vst)}, {v(tmp)}, 4, {v(vst)}")
        a.I(f"v_add_u32 {v(vst+1)}, {1<<17}, {v(vst)}")
    def last(acc, mf, fr, fc):
        a.I(f"s_mov_b64 s[{srdo}:{srdo+1}], s[{P_OUT}:{P_OUT+1}]")
        blocks = []; i = 0
        for m in range(2):
            for n in range(2):
                d = pk + 8 * i; i += 1
                ops = pack_ops(acc[m][n], d, swap=True)
                for g in range(2):
                    if lt: ops.append(f"ds_write_b128 {v(vtw2[2*n+g])}, {v(d+4*g,4)} offset:{m*4096}")
                    else: ops.append(f"buffer_store_dwordx4 {v(d+4*g,4)}, {v(vst+m)}, {s(srdo,4)}, s{s_o} offen offset:{n*64+g*32}{stm}")
                blocks.append(ops)
        tail_interleave(a, mf, blocks)
        if lt:
            t0 = acc[0][0]
            a.I("s_waitcnt lgkmcnt(0)")
            for j in range(8):
                a.I(f"ds_read_b128 {v(t0+4*j,4)}, {v(vtr)} offset:{j*1024}")
            for j in range(8):
                a.I(f"s_waitcnt lgkmcnt({7-j})")
                a.I(f"buffer_store_dwordx4 {v(t0+4*j,4)}, {v(vst)}, {s(srdo,4)}, s{s_o} offen{stm}")
                if j < 7: a.I(f"s_add_u32 s{s_o}, s{s_o}, {8*4096}")
        stamp_out(a, 2)
        a.I("s_endpgm")
    a.I(f"s_mul_i32 s{s_b}, s{s_wn}, {N*SUB}")
    a.I(f"s_add_u32 s{s_b}, s{s_b}, {CB}")
    a.I("s_cmp_eq_u32 s7, 1")
    a.I(f"s_cbranch_scc1 {name}_cy")
    save = (va.n, sa.n)
    C = RdTR(a, va, sa, s_b, 0, True, "halves", None, tmp)
    a.I("s_waitcnt lgkmcnt(0)")
    gemm_compute(a, "k3o", va, sa, R, C, 2, 2, True, T, N, zero_acc(a), last, regs=regs)
    hv = max(hv, va.hi); hs = max(hs, sa.hi)
    a.L(f"{name}_cy")
    va.n, sa.n = save
    s_p = sa.get(); vp = va.get(2)
    a.I(f"s_lshl_b32 s{s_p}, s{s_tb}, 6")
    a.I(f"s_lshl_b32 s{s_t}, s5, 2")
    a.I(f"s_add_u32 s{s_p}, s{s_p}, s{s_t}")
    a.I(f"s_lshl_b32 s{s_t}, s{s_wn}, 1")
    a.I(f"s_add_u32 s{s_p}, s{s_p}, s{s_t}")
    a.I(f"s_lshl_b32 s{s_p}, s{s_p}, 11")
    a.I(f"s_add_u32 s{s_p}, s{s_p}, {WS_PF}")
    a.I(f"v_lshlrev_b32 {v(vp)}, 4, v0")
    a.I(f"v_add_u32 {v(vp+1)}, 0x10000, {v(vp)}")
    a.I(f"s_mov_b32 s{srdw+2}, {WS_END}")
    a.I(f"s_mov_b32 s{srdw+3}, 0x00020000")
    a.I("s_waitcnt lgkmcnt(0)")
    a.I(f"s_mov_b64 s[{srdw}:{srdw+1}], s[{P_WS}:{P_WS+1}]")
    for m in range(2):
        for n in range(2):
            for g in range(2):
                a.I(f"buffer_load_dwordx4 {v(pk+16*m+8*n+4*g,4)}, {v(vp+m)}, {s(srdw,4)}, s{s_p} offen offset:{n*2048+g*1024}")
    C = RdRM(a, va, s_b, lambda n: n * 4096, tmp)
    def initp(acc):
        a.I("s_waitcnt vmcnt(0)")
        for m in range(2):
            for n in range(2):
                for i in range(8):
                    src = pk + 16*m + 8*n + i
                    a.I(f"v_lshlrev_b32 {v(acc[m][n]+2*i)}, 16, {v(src)}")
                    a.I(f"v_and_b32 {v(acc[m][n]+2*i+1)}, 0xffff0000, {v(src)}")
    gemm_compute(a, "k3y", va, sa, R, C, 2, 2, True, T, N, initp, last, regs=regs)
    hv = max(hv, va.hi); hs = max(hs, sa.hi)
    kernel_tail(a, name)
    return dict(name=name, grid=256, block=512, lds=4*N*SUB, vgpr=hv, sgpr=hs)

def emit(kernels, a):
    head = []
    for k in kernels:
        head.append(f"; @launch kernel={k['name']} grid=({k['grid']},1,1) block=({k['block']},1,1) lds={k['lds']}")
    head.append('.amdgcn_target "amdgcn-amd-amdhsa--gfx950"')
    head.append(".text")
    body = a.finalize()
    tail = ['.section .rodata,"a"']
    for k in kernels:
        vg = (k['vgpr'] + 7) // 8 * 8
        tail += [".p2align 6", f".amdhsa_kernel {k['name']}",
                 f"  .amdhsa_next_free_vgpr {vg}", f"  .amdhsa_next_free_sgpr {100 if STAMP else max(k['sgpr'], 32)}",
                 f"  .amdhsa_accum_offset {vg}", "  .amdhsa_group_segment_fixed_size 0", "  .amdhsa_kernarg_size 88",
                 "  .amdhsa_user_sgpr_count 2", "  .amdhsa_user_sgpr_kernarg_segment_ptr 1",
                 "  .amdhsa_system_sgpr_workgroup_id_x 1", ".end_amdhsa_kernel"]
    return "\n".join(head) + "\n" + body + "\n".join(tail) + "\n"

if __name__ == "__main__":
    a = Asm()
    cfg = {}
    for kv in sys.argv[2:]:
        k_, v_ = kv.split("=")
        if k_.startswith("st"): cfg[k_] = (" " + v_.replace("_", " ")) if v_ else ""
        else: cfg[k_] = int(v_) if v_.lstrip("-").isdigit() else v_
    ks = [gen_k1(a, cfg), gen_k2(a, cfg), gen_k3(a, cfg)]
    out = sys.argv[1] if len(sys.argv) > 1 else "concat_heads__spectral_fnet__mha_block__prompt.s"
    open(out, "w").write(emit(ks, a))
    print(ks)
```

```python
import sys, os, struct
sys.path.insert(0, os.path.dirname(os.path.abspath(__file__)))
from asmlib import Asm

MB_ = 1 << 20
WSB = MB_ * int(([x.split("=")[1] for x in sys.argv if x.startswith("wsb=")] + ["0"])[0])
WS_AF = WSB
WS_QF = WSB + 4 * MB_
WS_KV = WSB + 8 * MB_
KV_HSTRIDE = 65 * 4096
WS_OF = WSB + 17 * MB_
WS_PF = WSB + 21 * MB_
WS_VF = WSB + 25 * MB_
WS_END = WSB + 29 * MB_
BIG = 0x80000000
QSCALE = 1.4426950408889634 / (32 ** 0.5)
SUB = 8192

def f32hex(x): return "0x%08x" % struct.unpack("<I", struct.pack("<f", x))[0]
def v(i, n=1): return f"v{i}" if n == 1 else f"v[{i}:{i+n-1}]"
def s(i, n=1): return f"s{i}" if n == 1 else f"s[{i}:{i+n-1}]"

class Alloc:
    def __init__(self, start, limit): self.n = start; self.limit = limit; self.hi = start
    def get(self, cnt=1, align=1):
        self.n = (self.n + align - 1) // align * align
        r = self.n; self.n += cnt
        assert self.n <= self.limit, ("register overflow", self.n, self.limit)
        self.hi = max(self.hi, self.n)
        return r

P_AX, P_CR, P_CI, P_WR, P_WI, P_BX, P_WQKV, P_WO = [8 + 2 * i for i in range(8)]
P_OUT = 24; P_WS = 26
S_WAVE = 3
S_FREE0 = 28
MF = "v_mfma_f32_32x32x16_bf16"

STAMP = os.environ.get("STAMP") == "1"
WS_STAMP = 40 * MB_
S_ST = 84
def stamp(a, i):
    if STAMP: a.I(f"s_memtime s[{S_ST+2*i}:{S_ST+2*i+1}]")
def stamp_rt(a, i):
    if STAMP: a.I(f"s_memrealtime s[{S_ST+2*i}:{S_ST+2*i+1}]")
def stamp_out(a, kidx):
    if not STAMP: return
    a.I("s_waitcnt vmcnt(0) lgkmcnt(0)")
    stamp(a, 6); stamp_rt(a, 7)
    a.I("s_waitcnt lgkmcnt(0)")
    a.I(f"s_mov_b32 s76, s{P_WS}")
    a.I(f"s_mov_b32 s77, s{P_WS+1}")
    a.I(f"s_mov_b32 s78, {WS_STAMP + 8*MB_}")
    a.I(f"s_mov_b32 s79, 0x00020000")
    a.I(f"s_lshl_b32 s80, s2, 4")
    a.I(f"s_add_u32 s80, s80, s{S_WAVE}")
    a.I(f"s_lshl_b32 s80, s80, 5")
    a.I(f"s_add_u32 s80, s80, {WS_STAMP + kidx*MB_}")
    for i in range(8): a.I(f"v_mov_b32 v{8+i}, s{S_ST+2*i}")
    a.I("v_mov_b32 v1, 0")
    a.I("buffer_store_dwordx4 v[8:11], v1, s[76:79], s80 offen")
    a.I("buffer_store_dwordx4 v[12:15], v1, s[76:79], s80 offen offset:16")

def kernel_head(a, name, grid):
    a.R(".p2align 8")
    a.R(f".globl {name}")
    a.R(f".type {name},@function")
    a.L(name)
    a.I(f"s_cmp_ge_u32 s2, {grid}")
    a.I(f"s_cbranch_scc1 {name}_end")
    a.I("s_load_dwordx16 s[8:23], s[0:1], 0")
    a.I("s_load_dwordx2 s[24:25], s[0:1], 64")
    a.I("s_load_dwordx2 s[26:27], s[0:1], 80")
    a.I("v_lshrrev_b32 v1, 6, v0")
    a.I("v_and_b32 v0, 63, v0")
    a.I(f"v_readfirstlane_b32 s{S_WAVE}, v1")
    if STAMP:
        for i in (2, 3, 4, 5): a.I(f"s_mov_b64 s[{S_ST+2*i}:{S_ST+2*i+1}], 0")
    stamp(a, 0); stamp_rt(a, 1)
    a.I("s_and_b32 s4, s2, 7")
    a.I("s_lshr_b32 s5, s2, 3")

def kernel_tail(a, name):
    a.L(f"{name}_end")
    a.I("s_endpgm")

def make_srd(a, sr, ptr, nbytes):
    a.I(f"s_mov_b32 s{sr}, s{ptr}")
    a.I(f"s_mov_b32 s{sr+1}, s{ptr+1}")
    a.I(f"s_mov_b32 s{sr+2}, {nbytes}")
    a.I(f"s_mov_b32 s{sr+3}, 0x00020000")

def interleave(main, fill, lead=0, span=None):
    out = list(fill[:lead]); rest = fill[lead:]
    n = span or len(main)
    for i, m in enumerate(main):
        out.append(m)
        if i < n:
            lo = len(rest) * i // n; hi = len(rest) * (i + 1) // n
            out += rest[lo:hi]
    return out

class LGroup:
    def __init__(self, srd, voffs, s_wb, s_k, kstep, one=False):
        self.srd = srd; self.voffs = voffs; self.s_wb = s_wb; self.s_k = s_k; self.kstep = kstep
        self.per = len(voffs)
        self.s_base = None
        self.pf = None
        self.pfalt = None
        self.pflim = None
    def issue(self, s_boff, mod="", s_si=None, s_dummy=None):
        out = []
        if self.s_base is not None:
            out.append(f"s_mul_i32 s{self.s_k}, s{s_si}, {self.kstep}")
            out.append(f"s_add_u32 s{self.s_k}, s{self.s_k}, s{self.s_base}")
        for p in range(self.per):
            if p % 4 == 0:
                out.append(f"s_add_u32 m0, s{self.s_wb}, s{s_boff}" if p == 0 else "s_add_u32 m0, m0, 4096")
            out.append(f"buffer_load_dwordx4 {v(self.voffs[p])}, {s(self.srd,4)}, s{self.s_k} offen offset:{(p%4)*1024} lds{mod}")
        if self.s_base is None:
            out.append(f"s_add_u32 s{self.s_k}, s{self.s_k}, {self.kstep}")
        return out
    def prefetch(self, s_dummy):
        out = []
        if self.pf is not None:
            s_pf, imms, wide = self.pf
            for im in imms:
                if wide: out.append(f"s_buffer_load_dwordx2 {s(s_dummy,2)}, {s(self.srd,4)}, s{s_pf} offset:{im}")
                else: out.append(f"s_buffer_load_dword s{s_dummy}, {s(self.srd,4)}, s{s_pf} offset:{im}")
            if self.pfalt is None:
                out.append(f"s_add_u32 s{s_pf}, s{s_pf}, {self.kstep}")
            else:
                out.append(f"s_add_u32 s{s_pf}, s{s_pf}, s{self.pfalt}")
                out.append(f"s_sub_u32 s{self.pfalt}, {2*self.kstep}, s{self.pfalt}")
            if self.pflim is not None:
                out.append(f"s_min_u32 s{s_pf}, s{s_pf}, {self.pflim - max(imms) - 8}")
        return out
    def set_pf_rm(self, a, sa, cfg, s_row, s_share, nrow, pitch):
        d = cfg.get("spf", 0); mode = cfg.get("spfm", 1)
        if not d: return
        s_pf = sa.get()
        a.I(f"s_mul_i32 s{s_pf}, s{s_share}, {nrow}")
        a.I(f"s_add_u32 s{s_pf}, s{s_pf}, s{s_row}")
        a.I(f"s_mul_i32 s{s_pf}, s{s_pf}, {pitch}")
        a.I(f"s_add_u32 s{s_pf}, s{s_pf}, {d*128}")
        if mode == 1: self.pf = (s_pf, [j*pitch for j in range(nrow)], False)
        elif mode == 3: self.pf = (s_pf, [j*pitch + 60 for j in range(nrow)], True)
        else:
            assert d % 2 == 0
            self.pf = (s_pf, [j*pitch + 124 for j in range(nrow//2)], True)
            self.pfalt = sa.get()
            a.I(f"s_mov_b32 s{self.pfalt}, {nrow//2*pitch}")
    def set_pf_lin(self, a, sa, cfg, s_gbase, s_share, nbytes):
        d = cfg.get("spf", 0); mode = cfg.get("spfm", 1)
        if not d: return
        s_pf = sa.get()
        a.I(f"s_mul_i32 s{s_pf}, s{s_share}, {nbytes}")
        a.I(f"s_add_u32 s{s_pf}, s{s_pf}, s{s_gbase}")
        a.I(f"s_add_u32 s{s_pf}, s{s_pf}, {d*self.kstep}")
        n = nbytes // 128
        if mode == 1: self.pf = (s_pf, [j*128 for j in range(n)], False)
        elif mode == 3: self.pf = (s_pf, [j*128 + 60 for j in range(n)], True)
        else: self.pf = (s_pf, [j*256 + 124 for j in range(n//2)], True)
    def set_pf_tr(self, a, sa, cfg, s_col0, s_lw, s_share, pitch):
        d = cfg.get("spf", 0); mode = cfg.get("spfm", 1)
        if not d: return
        s_pf = sa.get()
        a.I(f"s_lshl_b32 s{s_pf}, s{s_share}, 2")
        a.I(f"s_add_u32 s{s_pf}, s{s_pf}, s{s_lw}")
        a.I(f"s_mul_i32 s{s_pf}, s{s_pf}, {4*pitch}")
        a.I(f"s_add_u32 s{s_pf}, s{s_pf}, s{s_col0}")
        a.I(f"s_add_u32 s{s_pf}, s{s_pf}, {d*self.kstep}")
        if mode == 1: self.pf = (s_pf, [j*pitch + h*128 for j in range(4) for h in range(2)], False)
        elif mode == 3: self.pf = (s_pf, [j*pitch + h*128 + 60 for j in range(4) for h in range(2)], True)
        else: self.pf = (s_pf, [j*pitch + 124 for j in range(4)], True)

def lset_rm(a, va, sa, srd, s_row, per, pitch, s_wb, tmp):
    t0, t1, t2 = tmp, tmp + 1, tmp + 2
    st = sa.get(); sk = sa.get()
    a.I(f"v_lshrrev_b32 {v(t0)}, 3, v0")
    a.I(f"v_add_u32 {v(t0)}, s{s_row}, {v(t0)}")
    a.I(f"v_lshlrev_b32 {v(t0)}, {pitch.bit_length()-1}, {v(t0)}")
    a.I(f"v_lshrrev_b32 {v(t1)}, 4, v0")
    a.I(f"v_xor_b32 {v(t1)}, {v(t1)}, v0")
    a.I(f"v_and_b32 {v(t1)}, 7, {v(t1)}")
    a.I(f"v_xor_b32 {v(t2)}, 4, {v(t1)}")
    a.I(f"v_lshl_add_u32 {v(t1)}, {v(t1)}, 4, {v(t0)}")
    a.I(f"v_lshl_add_u32 {v(t2)}, {v(t2)}, 4, {v(t0)}")
    voffs = []
    for p in range(per):
        r = va.get()
        a.I(f"v_add_u32 {v(r)}, {p*8*pitch - (p%4)*1024}, {v(t1 if p % 2 == 0 else t2)}")
        voffs.append(r)
    a.I(f"s_mov_b32 s{sk}, 0")
    return LGroup(srd, voffs, s_wb, sk, 128)

def lset_lin(a, va, sa, srd, s_gbase, per, kstep, s_wb):
    assert per <= 4
    r = va.get(); sk = sa.get()
    a.I(f"v_lshlrev_b32 {v(r)}, 4, v0")
    a.I(f"s_mov_b32 s{sk}, s{s_gbase}")
    return LGroup(srd, [r] * per, s_wb, sk, kstep)

def lset_tr(a, va, sa, srd, s_krow, s_colb, pitch, s_wb, tmp):
    t0, t1 = tmp, tmp + 1
    st = sa.get(); sk = sa.get()
    a.I(f"v_lshrrev_b32 {v(t0)}, 3, v0")
    a.I(f"v_add_u32 {v(t0)}, s{s_krow}, {v(t0)}")
    a.I(f"v_mul_u32_u24 {v(t0)}, {pitch}, {v(t0)}")
    a.I(f"v_lshrrev_b32 {v(t1)}, 2, v0")
    a.I(f"v_and_b32 {v(t1)}, 4, {v(t1)}")
    a.I(f"v_xor_b32 {v(t1)}, {v(t1)}, v0")
    a.I(f"v_and_b32 {v(t1)}, 7, {v(t1)}")
    a.I(f"v_lshl_add_u32 {v(t0)}, {v(t1)}, 4, {v(t0)}")
    voffs = []
    for p in range(4):
        r = va.get()
        a.I(f"v_add_u32 {v(r)}, {p*8*pitch - p*1024}, {v(t0)}")
        voffs.append(r)
    a.I(f"s_mov_b32 s{sk}, s{s_colb}")
    return LGroup(srd, voffs, s_wb, sk, 64 * pitch)

def loader_main(a, pfx, sa, groups, T, N, nbar, cfg, kidx):
    nd = sum(g.per for g in groups)
    if cfg.get("k0", 0) >> kidx & 1:
        for g in groups: g.kstep = 0
    s_boff = sa.get(); s_cnt = sa.get()
    a.I(f"s_mov_b32 s{s_boff}, 0")
    if cfg.get("rot", 0) >> {0: 1, 1: 8, 2: 2}[kidx] & 1:
        for g in groups:
            g.s_base = sa.get()
    rot = any(g.s_base is not None for g in groups)
    s_dummy = sa.get(2, 2)
    if rot:
        s_t = sa.get(); s_si = sa.get(); s_r = sa.get()
        a.I(f"s_mov_b32 s{s_t}, 0")
        a.I(f"s_lshr_b32 s{s_r}, s2, 3")
        a.I(f"s_lshr_b32 s{s_si}, s2, 5")
        a.I(f"s_add_u32 s{s_r}, s{s_r}, s{s_si}")
        for g in groups:
            if g.s_base is not None: a.I(f"s_mov_b32 s{g.s_base}, s{g.s_k}")
    else: s_si = None
    npf0 = cfg.get("spf", 0)
    def issue(wrap):
        if rot:
            a.I(f"s_add_u32 s{s_si}, s{s_t}, s{s_r}")
            a.I(f"s_and_b32 s{s_si}, s{s_si}, 3")
            a.I(f"s_andn2_b32 s{s_dummy}, s{s_t}, 3")
            a.I(f"s_or_b32 s{s_si}, s{s_si}, s{s_dummy}")
            a.I(f"s_add_u32 s{s_t}, s{s_t}, 1")
        for g in groups:
            for t in g.issue(s_boff, s_si=s_si): a.I(t)
        for g in groups:
            for t in g.prefetch(s_dummy2): a.I(t)
        a.I(f"s_add_u32 s{s_boff}, s{s_boff}, {SUB}")
        if wrap:
            a.I(f"s_cmp_eq_u32 s{s_boff}, {N*SUB}")
            a.I(f"s_cselect_b32 s{s_boff}, 0, s{s_boff}")
    s_dummy2 = sa.get(2, 2)
    stamp(a, 4)
    issued = 0
    first = cfg.get("first", 2)
    for _ in range(first): issue(True); issued += 1
    for _ in range(cfg.get("spf0", 0)):
        for g in groups:
            for t in g.prefetch(s_dummy2): a.I(t)
    stamp(a, 5)
    k = 0
    while True:
        a.I(f"s_waitcnt vmcnt({(issued - 1 - k) * nd})")
        a.I("s_barrier")
        if k == 0: stamp(a, 2)
        allowed = min(k - 1 + N, T - 1)
        n = min(cfg.get("ramp", 2), allowed + 1 - issued)
        for _ in range(n): issue(True); issued += 1
        k += 1
        if issued == k - 1 + N: break
    nloop = T - N - k + 1
    if nloop > 0:
        a.I(f"s_mov_b32 s{s_cnt}, {nloop}")
        a.L(f"{pfx}_lloop")
        a.I(f"s_waitcnt vmcnt({(N-2)*nd})")
        a.I("s_barrier")
        issue(True)
        a.I(f"s_sub_u32 s{s_cnt}, s{s_cnt}, 1")
        a.I(f"s_cmp_lg_u32 s{s_cnt}, 0")
        a.I(f"s_cbranch_scc1 {pfx}_lloop")
        k += nloop; issued += nloop
    assert issued == T
    while k < nbar:
        if k < T: a.I(f"s_waitcnt vmcnt({(T - 1 - k) * nd})")
        a.I("s_barrier")
        k += 1
    stamp(a, 3)
    stamp_out(a, kidx)
    a.I("s_endpgm")

class RdRM:
    def __init__(self, a, va, s_base, blkoff, tmp):
        t0, t1, t2 = tmp, tmp + 1, tmp + 2
        self.blkoff = blkoff
        self.rb = [va.get() for _ in range(4)]
        a.I(f"v_and_b32 {v(t0)}, 31, v0")
        a.I(f"v_lshlrev_b32 {v(t0)}, 7, {v(t0)}")
        a.I(f"v_add_u32 {v(t0)}, s{s_base}, {v(t0)}")
        a.I(f"v_bfe_u32 {v(t1)}, v0, 1, 3")
        a.I(f"v_lshrrev_b32 {v(t2)}, 5, v0")
        a.I(f"v_xor_b32 {v(t1)}, {v(t1)}, {v(t2)}")
        for g in range(4):
            a.I(f"v_xor_b32 {v(t2)}, {2*g}, {v(t1)}")
            a.I(f"v_lshl_add_u32 {v(self.rb[g])}, {v(t2)}, 4, {v(t0)}")
    def read(self, blk, g, buf, dst):
        off = self.blkoff(blk) + buf * SUB
        assert off < 65536
        return [f"ds_read_b128 {v(dst,4)}, {v(self.rb[g])} offset:{off}"]

class RdFM:
    def __init__(self, a, va, s_base, blkoff, tmp):
        self.blkoff = blkoff
        self.rb = va.get()
        a.I(f"v_lshlrev_b32 {v(tmp)}, 4, v0")
        a.I(f"v_add_u32 {v(self.rb)}, s{s_base}, {v(tmp)}")
    def read(self, blk, g, buf, dst):
        off = self.blkoff(blk) + buf * SUB + g * 1024
        assert off < 65536
        return [f"ds_read_b128 {v(dst,4)}, {v(self.rb)} offset:{off}"]

class RdTR:
    def __init__(self, a, va, sa, s_base, partoff, perm, mode, s_half, tmp):
        t0, t1 = tmp, tmp + 1
        self.partoff = partoff; self.perm = perm; self.mode = mode
        a.I(f"v_bfe_u32 {v(t0)}, v0, 4, 1")
        a.I(f"v_bfe_u32 {v(t1)}, v0, 1, 1")
        a.I(f"v_lshl_add_u32 {v(t0)}, {v(t0)}, 1, {v(t1)}")
        if mode == "parts":
            st = sa.get()
            a.I(f"s_lshl_b32 s{st}, s{s_half}, 2")
            a.I(f"v_add_u32 {v(t0)}, s{st}, {v(t0)}")
        a.I(f"v_bfe_u32 {v(t1)}, v0, 3, 1")
        a.I(f"v_lshlrev_b32 {v(t1)}, 2, {v(t1)}")
        a.I(f"v_xor_b32 {v(t0)}, {v(t0)}, {v(t1)}")
        a.I(f"v_lshlrev_b32 {v(t0)}, 4, {v(t0)}")
        a.I(f"v_bfe_u32 {v(t1)}, v0, 2, 2")
        a.I(f"v_lshl_add_u32 {v(t0)}, {v(t1)}, 7, {v(t0)}")
        a.I(f"v_and_b32 {v(t1)}, 1, v0")
        a.I(f"v_lshl_add_u32 {v(t0)}, {v(t1)}, 3, {v(t0)}")
        a.I(f"v_lshrrev_b32 {v(t1)}, 5, v0")
        a.I(f"v_lshl_add_u32 {v(t0)}, {v(t1)}, {9 if perm else 10}, {v(t0)}")
        self.rb = [va.get()]
        a.I(f"v_add_u32 {v(self.rb[0])}, s{s_base}, {v(t0)}")
        if mode == "halves":
            self.rb.append(va.get())
            a.I(f"v_xor_b32 {v(self.rb[1])}, 64, {v(self.rb[0])}")
    def read(self, blk, g, buf, dst):
        out = []
        for t in range(2):
            off = (2*g + t) * 1024 if self.perm else 2*g * 1024 + t * 512
            off += buf * SUB
            if self.mode == "parts": off += self.partoff * blk; rb = self.rb[0]
            else: rb = self.rb[blk]
            assert off < 65536
            out.append(f"ds_read_b64_tr_b16 {v(dst+2*t,2)}, {v(rb)} offset:{off}")
        return out

def gemm_compute(a, pfx, va, sa, R, C, MB, NB, swap, T, N, init_acc, last_cb, peel=True, pace=0, pre_bar=1, stage_hook=None, regs=None, off=0):
    if regs is None:
        acc = [[va.get(16, 4) for n in range(NB)] for m in range(MB)]
        fr = [[va.get(4, 4) for m in range(MB)] for _ in range(2)]
        fc = [[va.get(4, 4) for n in range(NB)] for _ in range(2)]
    else:
        acc, fr, fc = regs
    s_cnt = sa.get()
    def reads(g, buf, st):
        out = []
        rl = [R.read(m, g, buf, fr[st][m]) for m in range(MB)]
        cl = [C.read(n, g, buf, fc[st][n]) for n in range(NB)]
        for i in range(max(MB, NB)):
            if i < MB: out += rl[i]
            if i < NB: out += cl[i]
        return out
    def mfmas(st):
        out = []
        for m in range(MB):
            for n in range(NB):
                A_, B_ = (fc[st][n], fr[st][m]) if swap else (fr[st][m], fc[st][n])
                out.append(f"{MF} {v(acc[m][n],16)}, {v(A_,4)}, {v(B_,4)}, {v(acc[m][n],16)}")
        return out
    def emit_seq(mf, fill, span=None):
        seq = interleave(mf, fill, span=span)
        for i, t in enumerate(seq):
            if off & 1 and t.startswith("v_mfma"): continue
            if off & 2 and t.startswith("ds_read"): continue
            if pace and t.startswith("v_mfma"):
                p = pace
                while p > 0:
                    q = min(p, 16); a.I(f"s_nop {q-1}"); p -= q
            a.I(t)
    init_acc(acc)
    a.I("s_barrier")
    stamp(a, 2)
    for t in reads(0, 0, 0): a.I(t)
    nmf = MB * NB
    def stage(buf, last, sidx):
        for g in range(4):
            st = g % 2
            a.I("s_waitcnt lgkmcnt(0)")
            mf = mfmas(st)
            if g < 3:
                fill = reads(g + 1, buf, 1 - st)
                if stage_hook: fill = fill + stage_hook(sidx, g)
                emit_seq(mf, fill, span=max(1, nmf - 1))
            elif not last:
                emit_seq(mf[:pre_bar], [])
                a.I("s_barrier")
                fill = reads(0, (buf + 1) % N, 0)
                rest = mf[pre_bar:]
                lead = min(2, len(fill))
                for t in fill[:lead]:
                    if not off & 2: a.I(t)
                emit_seq(rest, fill[lead:], span=max(1, len(rest) - 1))
            else:
                stamp(a, 3)
                last_cb(acc, mf, fr, fc)
    nfull = T - 1 if peel else T
    niter = nfull // N
    assert niter * N == nfull, (T, N, peel)
    a.I(f"s_mov_b32 s{s_cnt}, {niter}")
    a.L(f"{pfx}_loop")
    for b in range(N):
        stage(b, False, b)
    a.I(f"s_sub_u32 s{s_cnt}, s{s_cnt}, 1")
    a.I(f"s_cmp_lg_u32 s{s_cnt}, 0")
    a.I(f"s_cbranch_scc1 {pfx}_loop")
    if peel:
        stage(0, True, None)
    else:
        stamp(a, 3)
        a.I("s_waitcnt lgkmcnt(0)")
        last_cb(acc, [], fr, fc)
    return acc, fr, fc

def zero_acc(a):
    def f(acc):
        for row in acc:
            for r in row:
                for i in range(16): a.I(f"v_mov_b32 {v(r+i)}, 0")
    return f

def pack_ops(accr, dst, scale_s=None, neg=False, swap=False):
    out = []
    if scale_s is not None:
        for i in range(16): out.append(f"v_mul_f32 {v(accr+i)}, s{scale_s}, {v(accr+i)}")
    n = "-" if neg else ""
    for i in range(8):
        out.append(f"v_cvt_pk_bf16_f32 {v(dst+i)}, {n}{v(accr+2*i)}, {n}{v(accr+2*i+1)}")
    if swap:
        for g in range(2):
            out.append(f"v_permlane32_swap_b32 {v(dst+4*g)}, {v(dst+4*g+2)}")
            out.append(f"v_permlane32_swap_b32 {v(dst+4*g+1)}, {v(dst+4*g+3)}")
    return out

def tail_interleave(a, mf, blocks, lag=2):
    n = len(blocks)
    for i, m in enumerate(mf):
        a.I(m)
        if i - lag >= 0:
            for t in blocks[i - lag]: a.I(t)
    for i in range(max(0, len(mf) - lag), n):
        for t in blocks[i]: a.I(t)

def gen_k1(a, cfg):
    name = "k1_kernel"
    N = 3; T = 16
    stm = cfg.get("st1", " sc1")
    RB = 0; CB = 4 * N * SUB
    kernel_head(a, name, 256)
    a.I("s_lshr_b32 s7, s4, 1")
    a.I("s_and_b32 s6, s4, 1")
    a.I("s_lshl_b32 s6, s6, 2")
    a.I("s_and_b32 s4, s5, 3")
    a.I("s_add_u32 s6, s6, s4")
    a.I("s_lshr_b32 s5, s5, 2")
    a.I(f"s_cmp_lt_u32 s{S_WAVE}, 4")
    a.I(f"s_cbranch_scc1 {name}_comp")
    va = Alloc(1, 256); sa = Alloc(S_FREE0, 76)
    tmp = va.get(4)
    srdx = sa.get(4, 4); srdw = sa.get(4, 4)
    s_lw = sa.get(); s_row = sa.get(); s_wbr = sa.get(); s_wbc = sa.get(); s_t = sa.get(); s_t2 = sa.get()
    a.I(f"s_sub_u32 s{s_lw}, s{S_WAVE}, 4")
    a.I(f"s_lshl_b32 s{s_row}, s6, 8")
    a.I(f"s_lshl_b32 s{s_t}, s{s_lw}, 6")
    a.I(f"s_add_u32 s{s_row}, s{s_row}, s{s_t}")
    a.I(f"s_mul_i32 s{s_wbr}, s{s_lw}, {N*SUB}")
    a.I(f"s_lshr_b32 s{s_t}, s{s_lw}, 1")
    a.I(f"s_mul_i32 s{s_wbc}, s{s_t}, {N*SUB}")
    a.I(f"s_and_b32 s{s_t2}, s{s_lw}, 1")
    a.I(f"s_lshl_b32 s{s_t2}, s{s_t2}, 12")
    a.I(f"s_add_u32 s{s_wbc}, s{s_wbc}, s{s_t2}")
    a.I(f"s_add_u32 s{s_wbc}, s{s_wbc}, {CB}")
    gR = lset_rm(a, va, sa, srdx, s_row, 8, 2048, s_wbr, tmp)
    a.I(f"s_mov_b32 s{srdx+2}, {2048*2048}")
    a.I(f"s_mov_b32 s{srdx+3}, 0x00020000")
    a.I(f"s_mov_b32 s{srdw+3}, 0x00020000")
    a.I("s_cmp_eq_u32 s7, 3")
    a.I(f"s_cbranch_scc1 {name}_lda")
    save = (va.n, sa.n)
    s_col = sa.get(); s_kr = sa.get()
    a.I(f"s_lshl_b32 s{s_col}, s7, 11")
    a.I(f"s_lshl_b32 s{s_kr}, s5, 8")
    a.I(f"s_add_u32 s{s_col}, s{s_col}, s{s_kr}")
    a.I(f"s_lshl_b32 s{s_t}, s{s_t}, 7")
    a.I(f"s_add_u32 s{s_col}, s{s_col}, s{s_t}")
    a.I(f"s_lshr_b32 s{s_kr}, s{s_t2}, 7")
    gC = lset_tr(a, va, sa, srdw, s_kr, s_col, 6144, s_wbc, tmp)
    a.I(f"s_mov_b32 s{srdw+2}, {1024*6144}")
    a.I("s_waitcnt lgkmcnt(0)")
    a.I(f"s_mov_b64 s[{srdx}:{srdx+1}], s[{P_BX}:{P_BX+1}]")
    a.I(f"s_mov_b64 s[{srdw}:{srdw+1}], s[{P_WQKV}:{P_WQKV+1}]")
    loader_main(a, "k1q", sa, [gR, gC], T, N, T, cfg, 0)
    hv = va.hi; hs = sa.hi
    a.L(f"{name}_lda")
    va.n, sa.n = save
    s_r2 = sa.get()
    a.I(f"s_lshl_b32 s{s_r2}, s5, 7")
    a.I(f"s_lshl_b32 s{s_t}, s{s_lw}, 5")
    a.I(f"s_add_u32 s{s_r2}, s{s_r2}, s{s_t}")
    gC = lset_rm(a, va, sa, srdw, s_r2, 4, 2048, s_wbc, tmp)
    a.I(f"s_mov_b32 s{srdw+2}, {1024*2048}")
    a.I("s_waitcnt lgkmcnt(0)")
    a.I(f"s_mov_b64 s[{srdx}:{srdx+1}], s[{P_AX}:{P_AX+1}]")
    a.I(f"s_mov_b64 s[{srdw}:{srdw+1}], s[{P_WR}:{P_WR+1}]")
    loader_main(a, "k1a", sa, [gR, gC], T, N, T, cfg, 0)
    hv = max(hv, va.hi); hs = max(hs, sa.hi)
    a.L(f"{name}_comp")
    va = Alloc(1, 256); sa = Alloc(S_FREE0, 76)
    tmp = va.get(3)
    vst = va.get(2)
    srdo = sa.get(4, 4)
    s_wm = sa.get(); s_wn = sa.get(); s_b = sa.get(); s_o = sa.get(); s_t = sa.get(); s_sc = sa.get(); s_sb = sa.get()
    a.I(f"s_lshr_b32 s{s_wm}, s{S_WAVE}, 1")
    a.I(f"s_and_b32 s{s_wn}, s{S_WAVE}, 1")
    a.I(f"s_mul_i32 s{s_b}, s{s_wm}, {2*N*SUB}")
    R = RdRM(a, va, s_b, lambda m: (m >> 1) * N * SUB + (m & 1) * 4096, tmp)
    regs = ([[va.get(16, 4) for n in range(2)] for m in range(4)],
            [[va.get(4, 4) for m in range(4)] for _ in range(2)],
            [[va.get(4, 4) for n in range(2)] for _ in range(2)])
    pk = va.get(24, 4)
    a.I(f"s_lshl_b32 s{s_sb}, s6, 3")
    a.I(f"s_lshl_b32 s{s_t}, s{s_wm}, 2")
    a.I(f"s_add_u32 s{s_sb}, s{s_sb}, s{s_t}")
    a.I(f"v_lshlrev_b32 {v(vst)}, 4, v0")
    a.I(f"s_mov_b32 s{srdo+2}, {WS_OF}")
    a.I(f"s_mov_b32 s{srdo+3}, 0x00020000")
    a.I("s_cmp_eq_u32 s7, 3")
    a.I(f"s_cbranch_scc1 {name}_ca")
    save = (va.n, sa.n)
    a.I(f"s_mov_b32 s{s_b}, {CB}")
    C = RdTR(a, va, sa, s_b, N * SUB, False, "parts", s_wn, tmp)
    s_h = sa.get()
    a.I(f"s_lshl_b32 s{s_h}, s5, 2")
    a.I(f"s_add_u32 s{s_h}, s{s_h}, s{s_wn}")
    a.I("s_cmp_eq_u32 s7, 0")
    a.I(f"s_cbranch_scc1 {name}_cq")
    a.I(f"s_mul_i32 s{s_o}, s{s_h}, {KV_HSTRIDE}")
    a.I(f"s_lshl_b32 s{s_t}, s{s_sb}, 12")
    a.I(f"s_add_u32 s{s_o}, s{s_o}, s{s_t}")
    a.I(f"s_add_u32 s{s_o}, s{s_o}, {WS_KV}")
    a.I(f"v_add_u32 {v(vst+1)}, {2*KV_HSTRIDE}, {v(vst)}")
    s_mstep = sa.get()
    a.I(f"s_mov_b32 s{s_mstep}, 4096")
    a.I("s_cmp_eq_u32 s7, 2")
    a.I(f"s_cbranch_scc1 {name}_cv")
    a.I(f"s_branch {name}_cqk")
    a.L(f"{name}_cq")
    a.I(f"s_lshl_b32 s{s_o}, s{s_h}, 6")
    a.I(f"s_add_u32 s{s_o}, s{s_o}, s{s_sb}")
    a.I(f"s_lshl_b32 s{s_o}, s{s_o}, 11")
    a.I(f"s_add_u32 s{s_o}, s{s_o}, {WS_QF}")
    a.I(f"v_add_u32 {v(vst+1)}, {2*64*2048}, {v(vst)}")
    a.I(f"s_mov_b32 s{s_sc}, {f32hex(QSCALE)}")
    a.I(f"s_mov_b32 s{s_mstep}, 2048")
    def mk_last(scale, swp, off0, mstep_s=None, mimm=None):
        def last(acc, mf, fr, fc):
            a.I(f"s_mov_b64 s[{srdo}:{srdo+1}], s[{P_WS}:{P_WS+1}]")
            blocks = []
            i = 0
            for m in range(4):
                for n in range(2):
                    d = pk + 8 * (i % 3); i += 1
                    ops = pack_ops(acc[m][n], d, scale, swap=swp)
                    for j in range(2):
                        off = off0 + j * 1024 + (mimm * m if mimm else 0)
                        ops.append(f"buffer_store_dwordx4 {v(d+4*j,4)}, {v(vst+n)}, {s(srdo,4)}, s{s_o} offen offset:{off}{stm}")
                    if n == 1 and mstep_s is not None:
                        ops.append(f"s_add_u32 s{s_o}, s{s_o}, s{mstep_s}")
                    blocks.append(ops)
            tail_interleave(a, mf, blocks)
            stamp_out(a, 0)
            a.I("s_endpgm")
        return last
    a.L(f"{name}_cqk")
    a.I("s_waitcnt lgkmcnt(0)")
    def last_qk(acc, mf, fr, fc):
        a.I("s_cmp_eq_u32 s7, 0")
        a.I(f"s_cbranch_scc0 {name}_tk")
        mk_last(s_sc, False, 0, s_mstep)(acc, mf, fr, fc)
        a.L(f"{name}_tk")
        mk_last(None, False, 0, s_mstep)(acc, mf, fr, fc)
    gemm_compute(a, "k1qk", va, sa, R, C, 4, 2, True, T, N, zero_acc(a), last_qk, regs=regs)
    a.L(f"{name}_cv")
    a.I(f"s_add_u32 s{s_o}, s{s_o}, 4096")
    a.I("s_waitcnt lgkmcnt(0)")
    gemm_compute(a, "k1v", va, sa, R, C, 4, 2, False, T, N, zero_acc(a), mk_last(None, False, 2048, s_mstep), regs=regs)
    hv = max(hv, va.hi); hs = max(hs, sa.hi)
    a.L(f"{name}_ca")
    va.n, sa.n = save
    a.I(f"s_lshl_b32 s{s_b}, s{s_wn}, 12")
    a.I(f"s_add_u32 s{s_b}, s{s_b}, {CB}")
    C = RdRM(a, va, s_b, lambda n: n * N * SUB, tmp)
    a.I(f"s_lshl_b32 s{s_o}, s5, 2")
    a.I(f"s_add_u32 s{s_o}, s{s_o}, s{s_wn}")
    a.I(f"s_lshl_b32 s{s_o}, s{s_o}, 17")
    a.I(f"s_lshl_b32 s{s_t}, s{s_sb}, 11")
    a.I(f"s_add_u32 s{s_o}, s{s_o}, s{s_t}")
    if WS_AF: a.I(f"s_add_u32 s{s_o}, s{s_o}, {WS_AF}")
    a.I(f"v_add_u32 {v(vst+1)}, {2<<17}, {v(vst)}")
    s_mstep = sa.get()
    a.I(f"s_mov_b32 s{s_mstep}, 2048")
    a.I("s_waitcnt lgkmcnt(0)")
    gemm_compute(a, "k1a", va, sa, R, C, 4, 2, False, T, N, zero_acc(a), mk_last(None, True, 0, s_mstep), regs=regs)
    hv = max(hv, va.hi); hs = max(hs, sa.hi)
    kernel_tail(a, name)
    return dict(name=name, grid=256, block=512, lds=6*N*SUB, vgpr=hv, sgpr=hs)

MBIAS = 96.0
def att_role(a, cfg, N, kvoff):
    summode = cfg.get("sum", "pk")
    stm = cfg.get("st2", " sc1")
    va = Alloc(1, 168); sa = Alloc(S_FREE0, 76)
    vl16 = 0
    vkv = va.get()
    L = [va.get(2, 2) for _ in range(2)]
    Q = [[va.get(4, 2) for j in range(2)] for qb in range(2)]
    NM = [va.get(16, 2) for _ in range(2)]
    S = [va.get(16, 2) for _ in range(2)]
    O = [va.get(16, 2) for _ in range(2)]
    P = [va.get(8, 2) for _ in range(2)]
    K = [[va.get(4, 2) for j in range(2)] for b in range(2)]
    V = [[va.get(4, 2) for j in range(2)] for b in range(2)]
    srd = sa.get(4, 4)
    s_h = sa.get(); s_sb = sa.get(); s_q = sa.get(); s_kv = sa.get(); s_t = sa.get(); s_fb = sa.get()
    s_cnt = sa.get(); s_one = sa.get()
    a.I(f"s_lshl_b32 s{s_h}, s4, 2")
    a.I(f"s_lshr_b32 s{s_t}, s5, 3")
    a.I(f"s_add_u32 s{s_h}, s{s_h}, s{s_t}")
    a.I(f"s_and_b32 s{s_sb}, s5, 7")
    a.I(f"s_lshl_b32 s{s_sb}, s{s_sb}, 3")
    a.I(f"s_lshl_b32 s{s_t}, s{S_WAVE}, 1")
    a.I(f"s_add_u32 s{s_sb}, s{s_sb}, s{s_t}")
    a.I(f"s_lshl_b32 s{s_q}, s{s_h}, 6")
    a.I(f"s_add_u32 s{s_q}, s{s_q}, s{s_sb}")
    a.I(f"s_lshl_b32 s{s_q}, s{s_q}, 11")
    a.I(f"s_add_u32 s{s_q}, s{s_q}, {WS_QF}")
    a.I(f"s_mul_i32 s{s_kv}, s{s_h}, {KV_HSTRIDE}")
    a.I(f"s_add_u32 s{s_kv}, s{s_kv}, {WS_KV}")
    a.I(f"v_lshlrev_b32 {v(vl16)}, 4, v0")
    a.I(f"s_mov_b32 s{srd+2}, {WS_PF}")
    a.I(f"s_mov_b32 s{srd+3}, 0x00020000")
    a.I("s_waitcnt lgkmcnt(0)")
    a.I(f"s_mov_b64 s[{srd}:{srd+1}], s[{P_WS}:{P_WS+1}]")
    for j in range(2):
        a.I(f"buffer_load_dwordx4 {v(K[0][j],4)}, {v(vl16)}, {s(srd,4)}, s{s_kv} offen offset:{j*1024}")
    for qb in range(2):
        for j in range(2):
            a.I(f"buffer_load_dwordx4 {v(Q[qb][j],4)}, {v(vl16)}, {s(srd,4)}, s{s_q} offen offset:{qb*2048+j*1024}")
    a.I(f"v_add_u32 {v(vkv)}, {kvoff}, {v(vl16)}")
    a.I(f"s_mov_b32 s{s_fb}, 0")
    a.I(f"s_mov_b32 s{s_one}, 0x3f803f80")
    def zero_state():
        for qb in range(2):
            for i in range(16): a.I(f"v_mov_b32 {v(O[qb]+i)}, 0")
            for i in range(2): a.I(f"v_mov_b32 {v(L[qb]+i)}, 0")
    zero_state()
    for i in range(8): a.I(f"v_mov_b32 {v(P[1]+i)}, 0")
    for j in range(2):
        for i in range(4): a.I(f"v_mov_b32 {v(V[0][j]+i)}, 0")
    def s_mfma(qb, kbuf, c):
        return [f"{MF} {v(S[qb],16)}, {v(K[kbuf][0],4)}, {v(Q[qb][0],4)}, {c}",
                f"{MF} {v(S[qb],16)}, {v(K[kbuf][1],4)}, {v(Q[qb][1],4)}, {v(S[qb],16)}"]
    def pv_mfma(qb, vbuf):
        return [f"{MF} {v(O[qb],16)}, {v(V[vbuf][j],4)}, {v(P[qb]+4*j,4)}, {v(O[qb],16)}" for j in range(2)]
    def set_negm(qb, mreg, t1, bias):
        a.I(f"v_mov_b32 {v(t1)}, {v(mreg)}")
        a.I(f"v_permlane32_swap_b32 {v(mreg)}, {v(t1)}")
        a.I(f"v_max_f32 {v(mreg)}, {v(mreg)}, {v(t1)}")
        a.I(f"v_sub_f32 {v(NM[qb])}, {f32hex(-bias)}, {v(mreg)}")
        for i in range(1, 16): a.I(f"v_mov_b32 {v(NM[qb]+i)}, {v(NM[qb])}")
    def max16(dst, sreg, first):
        i = 0
        if first:
            a.I(f"v_max3_f32 {v(dst)}, {v(sreg)}, {v(sreg+1)}, {v(sreg+2)}"); i = 3
        while i < 16:
            if i + 1 < 16:
                a.I(f"v_max3_f32 {v(dst)}, {v(dst)}, {v(sreg+i)}, {v(sreg+i+1)}"); i += 2
            else:
                a.I(f"v_max_f32 {v(dst)}, {v(dst)}, {v(sreg+i)}"); i += 1
    def valu_groups(qb):
        gs = []
        for g in range(4):
            r = S[qb] + 4 * g
            x = [f"v_exp_f32 {v(r+i)}, {v(r+i)}" for i in range(4)]
            for h in range(2):
                x.append(f"v_cvt_pk_bf16_f32 {v(P[qb]+2*g+h)}, {v(r+2*h)}, {v(r+2*h+1)}")
                if summode == "pk":
                    x.append(f"v_pk_add_f32 {v(L[qb],2)}, {v(L[qb],2)}, {v(r+2*h,2)}")
                elif summode == "add":
                    x.append(f"v_add_f32 {v(L[qb])}, {v(L[qb])}, {v(r+2*h)}")
                    x.append(f"v_add_f32 {v(L[qb]+1)}, {v(L[qb]+1)}, {v(r+2*h+1)}")
                elif summode == "dot":
                    x.append(f"v_dot2_f32_bf16 {v(L[qb]+h)}, {v(P[qb]+2*g+h)}, s{s_one}, {v(L[qb]+h)}")
            gs.append(x)
        return gs
    tmp = P[0]
    a.I("s_waitcnt vmcnt(0)")
    for qb in range(2):
        for t in s_mfma(qb, 0, "0"): a.I(t)
    for qb in range(2):
        max16(tmp, S[qb], True)
        set_negm(qb, tmp, tmp + 1, MBIAS)
        if qb == 0:
            for t in s_mfma(0, 0, v(NM[0], 16)): a.I(t)
    a.I(f"s_mov_b32 s{s_cnt}, {32 // N}")
    a.I("s_barrier")
    stamp(a, 2)
    a.L("att_loop")
    for buf in range(N):
        for sl in range(4):
            qb = sl % 2; o = 1 - qb
            kbuf = ((sl + 1) // 2) % 2
            vbuf = (((sl - 1) // 2) + 1) % 2
            m = s_mfma(o, kbuf, v(NM[o], 16)) + pv_mfma(o, vbuf)
            gs = valu_groups(qb)
            if sl % 2 == 1: a.I("s_waitcnt lgkmcnt(0)")
            extra = [[], [], [], []]
            if sl == 3: extra[0] = ["s_barrier"]
            if sl % 2 == 0:
                rb = (sl // 2 + 1) % 2
                ro = (sl // 2) * 4096 + buf * SUB
                extra[0] = [f"ds_read_b128 {v(K[rb][j],4)}, {v(vkv)} offset:{ro + j*1024}" for j in range(2)]
                extra[1] = [f"ds_read_b128 {v(V[rb][j],4)}, {v(vkv)} offset:{ro + 2048 + j*1024}" for j in range(2)]
            if sl == 3 and buf == N - 1:
                extra[1] = [f"s_sub_u32 s{s_cnt}, s{s_cnt}, 1", f"s_cmp_lg_u32 s{s_cnt}, 0"]
            for g in range(4):
                if not cfg.get("attoff", 0) & 1: a.I(m[g])
                for t in extra[g]:
                    if not (cfg.get("attoff", 0) & 4 and t.startswith("ds_read")): a.I(t)
                if not cfg.get("attoff", 0) & 2:
                    for t in gs[g]: a.I(t)
    a.I("s_cbranch_scc1 att_loop")
    stamp(a, 3)
    for t in pv_mfma(1, 0): a.I(t)
    tmp = S[0]
    a.L("att_fin")
    for qb in range(2):
        a.I(f"v_add_f32 {v(L[qb])}, {v(L[qb])}, {v(L[qb]+1)}")
        a.I(f"v_mov_b32 {v(L[qb]+1)}, {v(L[qb])}")
        a.I(f"v_permlane32_swap_b32 {v(L[qb])}, {v(L[qb]+1)}")
        a.I(f"v_add_f32 {v(L[qb])}, {v(L[qb])}, {v(L[qb]+1)}")
    a.I(f"s_lshl_b32 s{s_t}, s{s_sb}, 16")
    a.I(f"s_lshl_b32 s{s_q}, s{s_h}, 11")
    a.I(f"s_add_u32 s{s_t}, s{s_t}, s{s_q}")
    a.I(f"s_add_u32 s{s_t}, s{s_t}, {WS_OF}")
    a.I(f"v_add_u32 {v(tmp+4)}, 0x10000, {v(vl16)}")
    a.I(f"v_rcp_f32 {v(tmp+2)}, {v(L[0])}")
    a.I(f"v_rcp_f32 {v(tmp+3)}, {v(L[1])}")
    a.I(f"s_cmp_lg_u32 s{s_fb}, 0")
    a.I("s_cbranch_scc1 att_store")
    a.I(f"v_max_f32 {v(tmp)}, {v(L[0])}, {v(L[1])}")
    a.I(f"v_mul_f32 {v(tmp+1)}, 0, {v(L[0])}")
    a.I(f"v_mul_f32 {v(tmp+5)}, 0, {v(L[1])}")
    for i in range(16):
        a.I(f"v_fmac_f32 {v(tmp+1)}, 0, {v(O[0]+i)}")
        a.I(f"v_fmac_f32 {v(tmp+5)}, 0, {v(O[1]+i)}")
    a.I(f"v_add_f32 {v(tmp)}, {v(tmp)}, {v(tmp+1)}")
    a.I(f"v_add_f32 {v(tmp)}, {v(tmp)}, {v(tmp+5)}")
    a.I(f"v_cmp_ngt_f32 vcc, {f32hex(2.0**120)}, {v(tmp)}")
    if not cfg.get("attoff", 0): a.I("s_cbranch_vccnz att_fallback")
    a.L("att_store")
    for qb in range(2):
        for i in range(16): a.I(f"v_mul_f32 {v(O[qb]+i)}, {v(tmp+2+qb)}, {v(O[qb]+i)}")
        for t in pack_ops(O[qb], P[qb]): a.I(t)
        for j in range(2):
            a.I(f"buffer_store_dwordx4 {v(P[qb]+4*j,4)}, {v(vl16 if qb == 0 else tmp+4)}, {s(srd,4)}, s{s_t} offen offset:{j*1024}{stm}")
    stamp_out(a, 1)
    a.I("s_endpgm")
    tmp = P[0]
    a.L("att_fallback")
    a.I(f"s_mov_b32 s{s_fb}, 1")
    a.I(f"s_mov_b32 s{s_t}, s{s_kv}")
    a.I(f"s_mov_b32 s{s_cnt}, 0")
    a.I(f"v_mov_b32 {v(tmp+2)}, 0xff800000")
    a.I(f"v_mov_b32 {v(tmp+3)}, 0xff800000")
    a.L("att_fb1")
    for j in range(2):
        a.I(f"buffer_load_dwordx4 {v(K[0][j],4)}, {v(vl16)}, {s(srd,4)}, s{s_t} offen offset:{j*1024}")
    a.I("s_waitcnt vmcnt(0)")
    for qb in range(2):
        for t in s_mfma(qb, 0, "0"): a.I(t)
    for qb in range(2): max16(tmp + 2 + qb, S[qb], False)
    a.I(f"s_add_u32 s{s_t}, s{s_t}, 4096")
    a.I(f"s_add_u32 s{s_cnt}, s{s_cnt}, 1")
    a.I(f"s_cmp_lt_u32 s{s_cnt}, 64")
    a.I("s_cbranch_scc1 att_fb1")
    for qb in range(2): set_negm(qb, tmp + 2 + qb, tmp + 1, 0.0)
    zero_state()
    a.I(f"s_mov_b32 s{s_t}, s{s_kv}")
    a.I(f"s_mov_b32 s{s_cnt}, 0")
    va2 = K[1][0]
    a.I(f"v_add_u32 {v(va2)}, 4096, {v(vl16)}")
    a.L("att_fb2")
    for j in range(2):
        a.I(f"buffer_load_dwordx4 {v(K[0][j],4)}, {v(vl16)}, {s(srd,4)}, s{s_t} offen offset:{j*1024}")
        a.I(f"buffer_load_dwordx4 {v(V[0][j],4)}, {v(va2)}, {s(srd,4)}, s{s_t} offen offset:{2048+j*1024}")
    a.I("s_waitcnt vmcnt(0)")
    for qb in range(2):
        for t in s_mfma(qb, 0, v(NM[qb], 16)): a.I(t)
    for qb in range(2):
        for g in valu_groups(qb):
            for t in g: a.I(t)
        for t in pv_mfma(qb, 0): a.I(t)
    a.I(f"s_add_u32 s{s_t}, s{s_t}, 4096")
    a.I(f"s_add_u32 s{s_cnt}, s{s_cnt}, 1")
    a.I(f"s_cmp_lt_u32 s{s_cnt}, 64")
    a.I("s_cbranch_scc1 att_fb2")
    a.I("s_branch att_fin")
    return va.hi, sa.hi

def gen_k2(a, cfg):
    name = "k2_kernel"
    N = 4; T = 32
    stm = cfg.get("st2", " sc1")
    RB = 0; CB = 2 * N * SUB; KB = 4 * N * SUB
    kernel_head(a, name, 256)
    a.I(f"s_cmp_ge_u32 s{S_WAVE}, 4")
    a.I(f"s_cbranch_scc1 {name}_g3")
    if cfg.get("prio_att"): a.I(f"s_setprio {cfg['prio_att']}")
    hv, hs = att_role(a, cfg, N, KB)
    a.L(f"{name}_g3")
    sa = Alloc(S_FREE0, 76)
    s_tb = sa.get(); s_eb = sa.get(); s_t = sa.get(); s_t2 = sa.get()
    a.I("s_and_b32 s7, s4, 1")
    a.I(f"s_lshr_b32 s{s_tb}, s4, 1")
    a.I(f"s_lshl_b32 s{s_tb}, s{s_tb}, 2")
    a.I(f"s_and_b32 s{s_t}, s5, 3")
    a.I(f"s_add_u32 s{s_tb}, s{s_tb}, s{s_t}")
    a.I(f"s_lshr_b32 s{s_eb}, s5, 2")
    a.I(f"s_cmp_lt_u32 s{S_WAVE}, 8")
    a.I(f"s_cbranch_scc1 {name}_comp")
    save_s = sa.n
    va = Alloc(1, 168)
    tmp = va.get(4)
    srdc = sa.get(4, 4); srdw = sa.get(4, 4); srdx = sa.get(4, 4)
    s_lw = sa.get(); s_row = sa.get(); s_wbr = sa.get(); s_wbc = sa.get(); s_wbk = sa.get(); s_kv = sa.get()
    a.I(f"s_sub_u32 s{s_lw}, s{S_WAVE}, 8")
    a.I(f"s_lshl_b32 s{s_row}, s{s_tb}, 7")
    a.I(f"s_lshl_b32 s{s_t}, s{s_lw}, 5")
    a.I(f"s_add_u32 s{s_row}, s{s_row}, s{s_t}")
    a.I(f"s_lshr_b32 s{s_t}, s{s_lw}, 1")
    a.I(f"s_mul_i32 s{s_wbr}, s{s_t}, {N*SUB}")
    a.I(f"s_and_b32 s{s_t2}, s{s_lw}, 1")
    a.I(f"s_lshl_b32 s{s_t2}, s{s_t2}, 12")
    a.I(f"s_add_u32 s{s_wbr}, s{s_wbr}, s{s_t2}")
    a.I(f"s_add_u32 s{s_wbc}, s{s_wbr}, {CB}")
    a.I(f"s_lshl_b32 s{s_wbk}, s{s_lw}, 11")
    a.I(f"s_lshl_b32 s{s_kv}, s4, 2")
    a.I(f"s_lshr_b32 s6, s5, 3")
    a.I(f"s_add_u32 s{s_kv}, s{s_kv}, s6")
    a.I(f"s_mul_i32 s{s_kv}, s{s_kv}, {KV_HSTRIDE}")
    a.I(f"s_add_u32 s{s_kv}, s{s_kv}, s{s_wbk}")
    a.I(f"s_add_u32 s{s_kv}, s{s_kv}, {WS_KV + 4096}")
    a.I(f"s_add_u32 s{s_wbk}, s{s_wbk}, {KB}")
    gK = lset_lin(a, va, sa, srdw, s_kv, 2, 8192, s_wbk)
    gR = lset_rm(a, va, sa, srdc, s_row, 4, 4096, s_wbr, tmp)
    rot = cfg.get("rot", 0) & 1
    s_sh4 = sa.get(); s_sh8 = sa.get()
    a.I(f"s_and_b32 s{s_sh4}, s5, 3")
    a.I(f"s_and_b32 s{s_sh8}, s5, 7")
    gK.set_pf_lin(a, sa, cfg, s_kv, s_sh8, 256)
    if rot: gR.s_base = sa.get()
    else: gR.set_pf_rm(a, sa, cfg, s_row, s_eb, 4, 4096); gR.pflim = 2048*4096
    a.I(f"s_mov_b32 s{srdc+2}, {2048*4096}")
    a.I(f"s_mov_b32 s{srdc+3}, 0x00020000")
    a.I(f"s_mov_b32 s{srdw+2}, {WS_OF}")
    a.I(f"s_mov_b32 s{srdw+3}, 0x00020000")
    a.I("s_cmp_eq_u32 s7, 1")
    a.I(f"s_cbranch_scc1 {name}_ldv")
    save = (va.n, sa.n)
    s_g = sa.get()
    a.I(f"s_lshl_b32 s{s_g}, s{s_eb}, 2")
    a.I(f"s_add_u32 s{s_g}, s{s_g}, s{s_lw}")
    a.I(f"s_lshl_b32 s{s_g}, s{s_g}, 17")
    if WS_AF: a.I(f"s_add_u32 s{s_g}, s{s_g}, {WS_AF}")
    gC = lset_lin(a, va, sa, srdw, s_g, 4, 4096, s_wbc)
    if rot: gC.s_base = sa.get()
    else: gC.set_pf_lin(a, sa, cfg, s_g, s_sh4, 1024)
    a.I("s_waitcnt lgkmcnt(0)")
    a.I(f"s_mov_b64 s[{srdc}:{srdc+1}], s[{P_CR}:{P_CR+1}]")
    a.I(f"s_mov_b64 s[{srdw}:{srdw+1}], s[{P_WS}:{P_WS+1}]")
    gm = cfg.get("gmask", 7)
    loader_main(a, "k2p", sa, [g for i, g in enumerate([gK, gR, gC]) if gm >> i & 1], T, N, T + 1, cfg, 1)
    hv = max(hv, va.hi); hs = max(hs, sa.hi)
    a.L(f"{name}_ldv")
    va.n, sa.n = save
    s_col = sa.get(); s_kr = sa.get()
    a.I(f"s_lshl_b32 s{s_col}, s{s_eb}, 8")
    a.I(f"s_lshl_b32 s{s_t}, s{s_t}, 7")
    a.I(f"s_add_u32 s{s_col}, s{s_col}, s{s_t}")
    a.I(f"s_lshr_b32 s{s_kr}, s{s_t2}, 7")
    gC = lset_tr(a, va, sa, srdx, s_kr, s_col, 2048, s_wbc, tmp)
    if rot: gC.s_base = sa.get()
    else:
        a.I(f"s_lshl_b32 s{s_t}, s{s_eb}, 8")
        gC.set_pf_tr(a, sa, cfg, s_t, s_lw, s_sh4, 2048); gC.pflim = 2048*2048
    a.I(f"s_mov_b32 s{srdx+2}, {2048*2048}")
    a.I(f"s_mov_b32 s{srdx+3}, 0x00020000")
    a.I("s_waitcnt lgkmcnt(0)")
    a.I(f"s_mov_b64 s[{srdc}:{srdc+1}], s[{P_CI}:{P_CI+1}]")
    a.I(f"s_mov_b64 s[{srdw}:{srdw+1}], s[{P_WS}:{P_WS+1}]")
    a.I(f"s_mov_b64 s[{srdx}:{srdx+1}], s[{P_AX}:{P_AX+1}]")
    loader_main(a, "k2v", sa, [g for i, g in enumerate([gK, gR, gC]) if gm >> i & 1], T, N, T + 1, cfg, 1)
    hv = max(hv, va.hi); hs = max(hs, sa.hi)
    a.L(f"{name}_comp")
    if cfg.get("prio_g3"): a.I(f"s_setprio {cfg['prio_g3']}")
    sa.n = save_s
    va = Alloc(1, 168)
    tmp = va.get(3); vst = va.get(2)
    srdo = sa.get(4, 4)
    s_wm = sa.get(); s_wn = sa.get(); s_b = sa.get(); s_o = sa.get()
    a.I(f"s_bfe_u32 s{s_wm}, s{S_WAVE}, 0x10001")
    a.I(f"s_and_b32 s{s_wn}, s{S_WAVE}, 1")
    a.I(f"s_mul_i32 s{s_b}, s{s_wm}, {N*SUB}")
    R = RdRM(a, va, s_b, lambda m: m * 4096, tmp)
    regs = ([[va.get(16, 4) for n in range(2)] for m in range(2)],
            [[va.get(4, 4) for m in range(2)] for _ in range(2)],
            [[va.get(4, 4) for n in range(2)] for _ in range(2)])
    a.I(f"s_lshl_b32 s{s_o}, s{s_tb}, 1")
    a.I(f"s_add_u32 s{s_o}, s{s_o}, s{s_wm}")
    a.I(f"s_lshl_b32 s{s_o}, s{s_o}, 6")
    a.I(f"s_lshl_b32 s{s_t}, s{s_eb}, 2")
    a.I(f"s_add_u32 s{s_o}, s{s_o}, s{s_t}")
    a.I(f"s_add_u32 s{s_o}, s{s_o}, s{s_wn}")
    a.I(f"s_lshl_b32 s{s_o}, s{s_o}, 11")
    a.I(f"s_mul_i32 s{s_t}, s7, {WS_VF - WS_PF}")
    a.I(f"s_add_u32 s{s_o}, s{s_o}, s{s_t}")
    a.I(f"s_add_u32 s{s_o}, s{s_o}, {WS_PF}")
    a.I(f"s_add_u32 s{s_t2}, s{s_o}, 4096")
    a.I(f"v_lshlrev_b32 {v(vst)}, 4, v0")
    a.I(f"v_add_u32 {v(vst+1)}, 0x10000, {v(vst)}")
    a.I(f"s_mov_b32 s{srdo+2}, {WS_END}")
    a.I(f"s_mov_b32 s{srdo+3}, 0x00020000")
    def mk_last(isv):
        def last(acc, mf, fr, fc):
            a.I(f"s_mov_b64 s[{srdo}:{srdo+1}], s[{P_WS}:{P_WS+1}]")
            pk = fr[0][0]; i = 0
            for m in range(2):
                for n in range(2):
                    d = pk + 8 * i; i += 1
                    for t in pack_ops(acc[m][n], d, neg=isv, swap=isv): a.I(t)
                    for g in range(2):
                        a.I(f"buffer_store_dwordx4 {v(d+4*g,4)}, {v(vst+m)}, {s(srdo,4)}, s{s_o if n == 0 else s_t2} offen offset:{g*1024}{stm}")
            stamp_out(a, 1)
            a.I("s_endpgm")
        return last
    pace = cfg.get("pace", 10)
    a.I("s_cmp_eq_u32 s7, 1")
    a.I(f"s_cbranch_scc1 {name}_cv")
    save = (va.n, sa.n)
    a.I(f"s_lshl_b32 s{s_b}, s{s_wn}, 12")
    a.I(f"s_add_u32 s{s_b}, s{s_b}, {CB}")
    C = RdFM(a, va, s_b, lambda n: n * N * SUB, tmp)
    a.I("s_waitcnt lgkmcnt(0)")
    gemm_compute(a, "k2p", va, sa, R, C, 2, 2, True, T, N, zero_acc(a), mk_last(False), peel=False, pace=pace, regs=regs, off=cfg.get("g3off", 0))
    hv = max(hv, va.hi); hs = max(hs, sa.hi)
    a.L(f"{name}_cv")
    va.n, sa.n = save
    a.I(f"s_mov_b32 s{s_b}, {CB}")
    C = RdTR(a, va, sa, s_b, N * SUB, False, "parts", s_wn, tmp)
    a.I("s_waitcnt lgkmcnt(0)")
    gemm_compute(a, "k2v", va, sa, R, C, 2, 2, True, T, N, zero_acc(a), mk_last(True), peel=False, pace=max(0, pace - cfg.get("pacev", 1)), regs=regs, off=cfg.get("g3off", 0))
    hv = max(hv, va.hi); hs = max(hs, sa.hi)
    kernel_tail(a, name)
    return dict(name=name, grid=256, block=768, lds=5*N*SUB, vgpr=hv, sgpr=hs)

def gen_k3(a, cfg):
    name = "k3_kernel"
    N = 5; T = 16
    stm = cfg.get("st3", "")
    RB = 0; CB = 2 * N * SUB
    kernel_head(a, name, 256)
    a.I("s_lshr_b32 s7, s4, 2")
    a.I("s_and_b32 s6, s4, 3")
    a.I("s_lshl_b32 s6, s6, 2")
    a.I("s_and_b32 s4, s5, 3")
    a.I("s_add_u32 s6, s6, s4")
    a.I("s_lshr_b32 s5, s5, 2")
    a.I(f"s_cmp_lt_u32 s{S_WAVE}, 4")
    a.I(f"s_cbranch_scc1 {name}_comp")
    va = Alloc(1, 256); sa = Alloc(S_FREE0, 76)
    tmp = va.get(4)
    srdw = sa.get(4, 4); srdb = sa.get(4, 4)
    s_lw = sa.get(); s_wbr = sa.get(); s_wbc = sa.get(); s_t = sa.get(); s_t2 = sa.get(); s_g = sa.get()
    a.I(f"s_sub_u32 s{s_lw}, s{S_WAVE}, 4")
    a.I(f"s_lshr_b32 s{s_t}, s{s_lw}, 1")
    a.I(f"s_mul_i32 s{s_wbr}, s{s_t}, {N*SUB}")
    a.I(f"s_and_b32 s{s_t2}, s{s_lw}, 1")
    a.I(f"s_lshl_b32 s{s_t2}, s{s_t2}, 12")
    a.I(f"s_add_u32 s{s_wbr}, s{s_wbr}, s{s_t2}")
    a.I(f"s_add_u32 s{s_wbc}, s{s_wbr}, {CB}")
    a.I(f"s_lshl_b32 s{s_g}, s6, 2")
    a.I(f"s_add_u32 s{s_g}, s{s_g}, s{s_lw}")
    a.I(f"s_lshl_b32 s{s_g}, s{s_g}, 16")
    a.I(f"s_mul_i32 s4, s7, {WS_VF - WS_OF}")
    a.I(f"s_add_u32 s{s_g}, s{s_g}, s4")
    a.I(f"s_add_u32 s{s_g}, s{s_g}, {WS_OF}")
    gR = lset_lin(a, va, sa, srdw, s_g, 4, 4096, s_wbr)
    a.I(f"s_mov_b32 s{srdw+2}, {WS_END}")
    a.I(f"s_mov_b32 s{srdw+3}, 0x00020000")
    a.I(f"s_mov_b32 s{srdb+2}, {1024*2048}")
    a.I(f"s_mov_b32 s{srdb+3}, 0x00020000")
    a.I("s_cmp_eq_u32 s7, 1")
    a.I(f"s_cbranch_scc1 {name}_ldy")
    save = (va.n, sa.n)
    s_col = sa.get(); s_kr = sa.get()
    a.I(f"s_lshl_b32 s{s_col}, s5, 8")
    a.I(f"s_lshl_b32 s{s_t}, s{s_t}, 7")
    a.I(f"s_add_u32 s{s_col}, s{s_col}, s{s_t}")
    a.I(f"s_lshr_b32 s{s_kr}, s{s_t2}, 7")
    gC = lset_tr(a, va, sa, srdb, s_kr, s_col, 2048, s_wbc, tmp)
    a.I("s_waitcnt lgkmcnt(0)")
    a.I(f"s_mov_b64 s[{srdw}:{srdw+1}], s[{P_WS}:{P_WS+1}]")
    a.I(f"s_mov_b64 s[{srdb}:{srdb+1}], s[{P_WO}:{P_WO+1}]")
    loader_main(a, "k3o", sa, [gR, gC], T, N, T, cfg, 2)
    hv = va.hi; hs = sa.hi
    a.L(f"{name}_ldy")
    va.n, sa.n = save
    s_r2 = sa.get()
    a.I(f"s_lshl_b32 s{s_r2}, s5, 7")
    a.I(f"s_lshl_b32 s{s_t}, s{s_lw}, 5")
    a.I(f"s_add_u32 s{s_r2}, s{s_r2}, s{s_t}")
    gC = lset_rm(a, va, sa, srdb, s_r2, 4, 2048, s_wbc, tmp)
    a.I("s_waitcnt lgkmcnt(0)")
    a.I(f"s_mov_b64 s[{srdw}:{srdw+1}], s[{P_WS}:{P_WS+1}]")
    a.I(f"s_mov_b64 s[{srdb}:{srdb+1}], s[{P_WI}:{P_WI+1}]")
    loader_main(a, "k3y", sa, [gR, gC], T, N, T, cfg, 2)
    hv = max(hv, va.hi); hs = max(hs, sa.hi)
    a.L(f"{name}_comp")
    va = Alloc(1, 256); sa = Alloc(S_FREE0, 76)
    tmp = va.get(3); vst = va.get(2); vtw = va.get(); vtr = va.get()
    srdo = sa.get(4, 4); srdw = sa.get(4, 4)
    s_wm = sa.get(); s_wn = sa.get(); s_b = sa.get(); s_o = sa.get(); s_t = sa.get(); s_tb = sa.get()
    a.I(f"s_lshr_b32 s{s_wm}, s{S_WAVE}, 1")
    a.I(f"s_and_b32 s{s_wn}, s{S_WAVE}, 1")
    a.I(f"s_mul_i32 s{s_b}, s{s_wm}, {N*SUB}")
    R = RdFM(a, va, s_b, lambda m: m * 4096, tmp)
    regs = ([[va.get(16, 4) for n in range(2)] for m in range(2)],
            [[va.get(4, 4) for m in range(2)] for _ in range(2)],
            [[va.get(4, 4) for n in range(2)] for _ in range(2)])
    pk = va.get(32, 4)
    a.I(f"s_lshl_b32 s{s_tb}, s6, 1")
    a.I(f"s_add_u32 s{s_tb}, s{s_tb}, s{s_wm}")
    a.I(f"s_lshl_b32 s{s_o}, s{s_tb}, 18")
    a.I(f"s_lshl_b32 s{s_t}, s5, 8")
    a.I(f"s_add_u32 s{s_o}, s{s_o}, s{s_t}")
    a.I(f"s_lshl_b32 s{s_t}, s{s_wn}, 7")
    a.I(f"s_add_u32 s{s_o}, s{s_o}, s{s_t}")
    a.I(f"s_xor_b32 s{s_t}, s7, 1")
    a.I(f"s_lshl_b32 s{s_t}, s{s_t}, 11")
    a.I(f"s_add_u32 s{s_o}, s{s_o}, s{s_t}")
    a.I(f"s_mov_b32 s{srdo+2}, {2048*4096}")
    a.I(f"s_mov_b32 s{srdo+3}, 0x00020000")
    lt = cfg.get("ldst", 1)
    if lt:
        a.I(f"s_mul_i32 s{s_t}, s{S_WAVE}, {N*SUB}")
        a.I(f"s_add_u32 s{s_t}, s{s_t}, {2*SUB}")
        a.I(f"v_and_b32 {v(tmp)}, 31, v0")
        a.I(f"v_lshrrev_b32 {v(tmp+1)}, 5, v0")
        a.I(f"v_xor_b32 {v(tmp+1)}, {v(tmp+1)}, v0")
        a.I(f"v_and_b32 {v(tmp+1)}, 7, {v(tmp+1)}")
        a.I(f"v_lshlrev_b32 {v(tmp+1)}, 4, {v(tmp+1)}")
        a.I(f"v_lshl_add_u32 {v(tmp)}, {v(tmp)}, 7, {v(tmp+1)}")
        a.I(f"v_add_u32 {v(vtw)}, s{s_t}, {v(tmp)}")
        a.I(f"v_lshrrev_b32 {v(tmp)}, 3, v0")
        a.I(f"v_xor_b32 {v(tmp+1)}, {v(tmp)}, v0")
        a.I(f"v_and_b32 {v(tmp+1)}, 7, {v(tmp+1)}")
        a.I(f"v_lshlrev_b32 {v(vtr)}, 4, v0")
        a.I(f"v_add_u32 {v(vtr)}, s{s_t}, {v(vtr)}")
        a.I(f"v_lshlrev_b32 {v(vst)}, 12, {v(tmp)}")
        a.I(f"v_lshl_add_u32 {v(vst)}, {v(tmp+1)}, 4, {v(vst)}")
        vtw2 = [vtw] + [va.get() for _ in range(3)]
        for c in range(1, 4): a.I(f"v_xor_b32 {v(vtw2[c])}, {c*32}, {v(vtw)}")
    else:
        a.I(f"v_and_b32 {v(vst)}, 31, v0")
        a.I(f"v_lshlrev_b32 {v(vst)}, 12, {v(vst)}")
        a.I(f"v_lshrrev_b32 {v(tmp)}, 5, v0")
        a.I(f"v_lshl_add_u32 {v(vst)}, {v(tmp)}, 4, {v(vst)}")
        a.I(f"v_add_u32 {v(vst+1)}, {1<<17}, {v(vst)}")
    def last(acc, mf, fr, fc):
        a.I(f"s_mov_b64 s[{srdo}:{srdo+1}], s[{P_OUT}:{P_OUT+1}]")
        blocks = []; i = 0
        for m in range(2):
            for n in range(2):
                d = pk + 8 * i; i += 1
                ops = pack_ops(acc[m][n], d, swap=True)
                for g in range(2):
                    if lt: ops.append(f"ds_write_b128 {v(vtw2[2*n+g])}, {v(d+4*g,4)} offset:{m*4096}")
                    else: ops.append(f"buffer_store_dwordx4 {v(d+4*g,4)}, {v(vst+m)}, {s(srdo,4)}, s{s_o} offen offset:{n*64+g*32}{stm}")
                blocks.append(ops)
        tail_interleave(a, mf, blocks)
        if lt:
            t0 = acc[0][0]
            a.I("s_waitcnt lgkmcnt(0)")
            for j in range(8):
                a.I(f"ds_read_b128 {v(t0+4*j,4)}, {v(vtr)} offset:{j*1024}")
            for j in range(8):
                a.I(f"s_waitcnt lgkmcnt({7-j})")
                a.I(f"buffer_store_dwordx4 {v(t0+4*j,4)}, {v(vst)}, {s(srdo,4)}, s{s_o} offen{stm}")
                if j < 7: a.I(f"s_add_u32 s{s_o}, s{s_o}, {8*4096}")
        stamp_out(a, 2)
        a.I("s_endpgm")
    a.I(f"s_mul_i32 s{s_b}, s{s_wn}, {N*SUB}")
    a.I(f"s_add_u32 s{s_b}, s{s_b}, {CB}")
    a.I("s_cmp_eq_u32 s7, 1")
    a.I(f"s_cbranch_scc1 {name}_cy")
    save = (va.n, sa.n)
    C = RdTR(a, va, sa, s_b, 0, True, "halves", None, tmp)
    a.I("s_waitcnt lgkmcnt(0)")
    gemm_compute(a, "k3o", va, sa, R, C, 2, 2, True, T, N, zero_acc(a), last, regs=regs)
    hv = max(hv, va.hi); hs = max(hs, sa.hi)
    a.L(f"{name}_cy")
    va.n, sa.n = save
    s_p = sa.get(); vp = va.get(2)
    a.I(f"s_lshl_b32 s{s_p}, s{s_tb}, 6")
    a.I(f"s_lshl_b32 s{s_t}, s5, 2")
    a.I(f"s_add_u32 s{s_p}, s{s_p}, s{s_t}")
    a.I(f"s_lshl_b32 s{s_t}, s{s_wn}, 1")
    a.I(f"s_add_u32 s{s_p}, s{s_p}, s{s_t}")
    a.I(f"s_lshl_b32 s{s_p}, s{s_p}, 11")
    a.I(f"s_add_u32 s{s_p}, s{s_p}, {WS_PF}")
    a.I(f"v_lshlrev_b32 {v(vp)}, 4, v0")
    a.I(f"v_add_u32 {v(vp+1)}, 0x10000, {v(vp)}")
    a.I(f"s_mov_b32 s{srdw+2}, {WS_END}")
    a.I(f"s_mov_b32 s{srdw+3}, 0x00020000")
    a.I("s_waitcnt lgkmcnt(0)")
    a.I(f"s_mov_b64 s[{srdw}:{srdw+1}], s[{P_WS}:{P_WS+1}]")
    for m in range(2):
        for n in range(2):
            for g in range(2):
                a.I(f"buffer_load_dwordx4 {v(pk+16*m+8*n+4*g,4)}, {v(vp+m)}, {s(srdw,4)}, s{s_p} offen offset:{n*2048+g*1024}")
    C = RdRM(a, va, s_b, lambda n: n * 4096, tmp)
    def initp(acc):
        a.I("s_waitcnt vmcnt(0)")
        for m in range(2):
            for n in range(2):
                for i in range(8):
                    src = pk + 16*m + 8*n + i
                    a.I(f"v_lshlrev_b32 {v(acc[m][n]+2*i)}, 16, {v(src)}")
                    a.I(f"v_and_b32 {v(acc[m][n]+2*i+1)}, 0xffff0000, {v(src)}")
    gemm_compute(a, "k3y", va, sa, R, C, 2, 2, True, T, N, initp, last, regs=regs)
    hv = max(hv, va.hi); hs = max(hs, sa.hi)
    kernel_tail(a, name)
    return dict(name=name, grid=256, block=512, lds=4*N*SUB, vgpr=hv, sgpr=hs)

def emit(kernels, a):
    head = []
    for k in kernels:
        head.append(f"; @launch kernel={k['name']} grid=({k['grid']},1,1) block=({k['block']},1,1) lds={k['lds']}")
    head.append('.amdgcn_target "amdgcn-amd-amdhsa--gfx950"')
    head.append(".text")
    body = a.finalize()
    tail = ['.section .rodata,"a"']
    for k in kernels:
        vg = (k['vgpr'] + 7) // 8 * 8
        tail += [".p2align 6", f".amdhsa_kernel {k['name']}",
                 f"  .amdhsa_next_free_vgpr {vg}", f"  .amdhsa_next_free_sgpr {100 if STAMP else max(k['sgpr'], 32)}",
                 f"  .amdhsa_accum_offset {vg}", "  .amdhsa_group_segment_fixed_size 0", "  .amdhsa_kernarg_size 88",
                 "  .amdhsa_user_sgpr_count 2", "  .amdhsa_user_sgpr_kernarg_segment_ptr 1",
                 "  .amdhsa_system_sgpr_workgroup_id_x 1", ".end_amdhsa_kernel"]
    return "\n".join(head) + "\n" + body + "\n".join(tail) + "\n"

if __name__ == "__main__":
    a = Asm()
    cfg = {}
    for kv in sys.argv[2:]:
        k_, v_ = kv.split("=")
        if k_.startswith("st"): cfg[k_] = (" " + v_.replace("_", " ")) if v_ else ""
        else: cfg[k_] = int(v_) if v_.lstrip("-").isdigit() else v_
    ks = [gen_k1(a, cfg), gen_k2(a, cfg), gen_k3(a, cfg)]
    out = sys.argv[1] if len(sys.argv) > 1 else "concat_heads__spectral_fnet__mha_block__prompt.s"
    open(out, "w").write(emit(ks, a))
    print(ks)
```

```python
import sys, os, struct
sys.path.insert(0, os.path.dirname(os.path.abspath(__file__)))
from asmlib import Asm

MB_ = 1 << 20
WSB = MB_ * int(([x.split("=")[1] for x in sys.argv if x.startswith("wsb=")] + ["0"])[0])
WS_AF = WSB
WS_QF = WSB + 4 * MB_
WS_KV = WSB + 8 * MB_
KV_HSTRIDE = 65 * 4096
WS_OF = WSB + 17 * MB_
WS_PF = WSB + 21 * MB_
WS_VF = WSB + 25 * MB_
WS_END = WSB + 29 * MB_
BIG = 0x80000000
QSCALE = 1.4426950408889634 / (32 ** 0.5)
SUB = 8192

def f32hex(x): return "0x%08x" % struct.unpack("<I", struct.pack("<f", x))[0]
def v(i, n=1): return f"v{i}" if n == 1 else f"v[{i}:{i+n-1}]"
def s(i, n=1): return f"s{i}" if n == 1 else f"s[{i}:{i+n-1}]"

class Alloc:
    def __init__(self, start, limit): self.n = start; self.limit = limit; self.hi = start
    def get(self, cnt=1, align=1):
        self.n = (self.n + align - 1) // align * align
        r = self.n; self.n += cnt
        assert self.n <= self.limit, ("register overflow", self.n, self.limit)
        self.hi = max(self.hi, self.n)
        return r

P_AX, P_CR, P_CI, P_WR, P_WI, P_BX, P_WQKV, P_WO = [8 + 2 * i for i in range(8)]
P_OUT = 24; P_WS = 26
S_WAVE = 3
S_FREE0 = 28
MF = "v_mfma_f32_32x32x16_bf16"

STAMP = os.environ.get("STAMP") == "1"
WS_STAMP = 40 * MB_
S_ST = 84
def stamp(a, i):
    if STAMP: a.I(f"s_memtime s[{S_ST+2*i}:{S_ST+2*i+1}]")
def stamp_rt(a, i):
    if STAMP: a.I(f"s_memrealtime s[{S_ST+2*i}:{S_ST+2*i+1}]")
def stamp_out(a, kidx):
    if not STAMP: return
    a.I("s_waitcnt vmcnt(0) lgkmcnt(0)")
    stamp(a, 6); stamp_rt(a, 7)
    a.I("s_waitcnt lgkmcnt(0)")
    a.I(f"s_mov_b32 s76, s{P_WS}")
    a.I(f"s_mov_b32 s77, s{P_WS+1}")
    a.I(f"s_mov_b32 s78, {WS_STAMP + 8*MB_}")
    a.I(f"s_mov_b32 s79, 0x00020000")
    a.I(f"s_lshl_b32 s80, s2, 4")
    a.I(f"s_add_u32 s80, s80, s{S_WAVE}")
    a.I(f"s_lshl_b32 s80, s80, 5")
    a.I(f"s_add_u32 s80, s80, {WS_STAMP + kidx*MB_}")
    for i in range(8): a.I(f"v_mov_b32 v{8+i}, s{S_ST+2*i}")
    a.I("v_mov_b32 v1, 0")
    a.I("buffer_store_dwordx4 v[8:11], v1, s[76:79], s80 offen")
    a.I("buffer_store_dwordx4 v[12:15], v1, s[76:79], s80 offen offset:16")

def kernel_head(a, name, grid):
    a.R(".p2align 8")
    a.R(f".globl {name}")
    a.R(f".type {name},@function")
    a.L(name)
    a.I(f"s_cmp_ge_u32 s2, {grid}")
    a.I(f"s_cbranch_scc1 {name}_end")
    a.I("s_load_dwordx16 s[8:23], s[0:1], 0")
    a.I("s_load_dwordx2 s[24:25], s[0:1], 64")
    a.I("s_load_dwordx2 s[26:27], s[0:1], 80")
    a.I("v_lshrrev_b32 v1, 6, v0")
    a.I("v_and_b32 v0, 63, v0")
    a.I(f"v_readfirstlane_b32 s{S_WAVE}, v1")
    if STAMP:
        for i in (2, 3, 4, 5): a.I(f"s_mov_b64 s[{S_ST+2*i}:{S_ST+2*i+1}], 0")
    stamp(a, 0); stamp_rt(a, 1)
    a.I("s_and_b32 s4, s2, 7")
    a.I("s_lshr_b32 s5, s2, 3")

def kernel_tail(a, name):
    a.L(f"{name}_end")
    a.I("s_endpgm")

def make_srd(a, sr, ptr, nbytes):
    a.I(f"s_mov_b32 s{sr}, s{ptr}")
    a.I(f"s_mov_b32 s{sr+1}, s{ptr+1}")
    a.I(f"s_mov_b32 s{sr+2}, {nbytes}")
    a.I(f"s_mov_b32 s{sr+3}, 0x00020000")

def interleave(main, fill, lead=0, span=None):
    out = list(fill[:lead]); rest = fill[lead:]
    n = span or len(main)
    for i, m in enumerate(main):
        out.append(m)
        if i < n:
            lo = len(rest) * i // n; hi = len(rest) * (i + 1) // n
            out += rest[lo:hi]
    return out

class LGroup:
    def __init__(self, srd, voffs, s_wb, s_k, kstep, one=False):
        self.srd = srd; self.voffs = voffs; self.s_wb = s_wb; self.s_k = s_k; self.kstep = kstep
        self.per = len(voffs)
        self.s_base = None
        self.pf = None
        self.pfalt = None
        self.pflim = None
    def issue(self, s_boff, mod="", s_si=None, s_dummy=None):
        out = []
        if self.s_base is not None:
            out.append(f"s_mul_i32 s{self.s_k}, s{s_si}, {self.kstep}")
            out.append(f"s_add_u32 s{self.s_k}, s{self.s_k}, s{self.s_base}")
        for p in range(self.per):
            if p % 4 == 0:
                out.append(f"s_add_u32 m0, s{self.s_wb}, s{s_boff}" if p == 0 else "s_add_u32 m0, m0, 4096")
            out.append(f"buffer_load_dwordx4 {v(self.voffs[p])}, {s(self.srd,4)}, s{self.s_k} offen offset:{(p%4)*1024} lds{mod}")
        if self.s_base is None:
            out.append(f"s_add_u32 s{self.s_k}, s{self.s_k}, {self.kstep}")
        return out
    def prefetch(self, s_dummy):
        out = []
        if self.pf is not None:
            s_pf, imms, wide = self.pf
            for im in imms:
                if wide: out.append(f"s_buffer_load_dwordx2 {s(s_dummy,2)}, {s(self.srd,4)}, s{s_pf} offset:{im}")
                else: out.append(f"s_buffer_load_dword s{s_dummy}, {s(self.srd,4)}, s{s_pf} offset:{im}")
            if self.pfalt is None:
                out.append(f"s_add_u32 s{s_pf}, s{s_pf}, {self.kstep}")
            else:
                out.append(f"s_add_u32 s{s_pf}, s{s_pf}, s{self.pfalt}")
                out.append(f"s_sub_u32 s{self.pfalt}, {2*self.kstep}, s{self.pfalt}")
            if self.pflim is not None:
                out.append(f"s_min_u32 s{s_pf}, s{s_pf}, {self.pflim - max(imms) - 8}")
        return out
    def set_pf_rm(self, a, sa, cfg, s_row, s_share, nrow, pitch):
        d = cfg.get("spf", 0); mode = cfg.get("spfm", 1)
        if not d: return
        s_pf = sa.get()
        a.I(f"s_mul_i32 s{s_pf}, s{s_share}, {nrow}")
        a.I(f"s_add_u32 s{s_pf}, s{s_pf}, s{s_row}")
        a.I(f"s_mul_i32 s{s_pf}, s{s_pf}, {pitch}")
        a.I(f"s_add_u32 s{s_pf}, s{s_pf}, {d*128}")
        if mode == 1: self.pf = (s_pf, [j*pitch for j in range(nrow)], False)
        elif mode == 3: self.pf = (s_pf, [j*pitch + 60 for j in range(nrow)], True)
        else:
            assert d % 2 == 0
            self.pf = (s_pf, [j*pitch + 124 for j in range(nrow//2)], True)
            self.pfalt = sa.get()
            a.I(f"s_mov_b32 s{self.pfalt}, {nrow//2*pitch}")
    def set_pf_lin(self, a, sa, cfg, s_gbase, s_share, nbytes):
        d = cfg.get("spf", 0); mode = cfg.get("spfm", 1)
        if not d: return
        s_pf = sa.get()
        a.I(f"s_mul_i32 s{s_pf}, s{s_share}, {nbytes}")
        a.I(f"s_add_u32 s{s_pf}, s{s_pf}, s{s_gbase}")
        a.I(f"s_add_u32 s{s_pf}, s{s_pf}, {d*self.kstep}")
        n = nbytes // 128
        if mode == 1: self.pf = (s_pf, [j*128 for j in range(n)], False)
        elif mode == 3: self.pf = (s_pf, [j*128 + 60 for j in range(n)], True)
        else: self.pf = (s_pf, [j*256 + 124 for j in range(n//2)], True)
    def set_pf_tr(self, a, sa, cfg, s_col0, s_lw, s_share, pitch):
        d = cfg.get("spf", 0); mode = cfg.get("spfm", 1)
        if not d: return
        s_pf = sa.get()
        a.I(f"s_lshl_b32 s{s_pf}, s{s_share}, 2")
        a.I(f"s_add_u32 s{s_pf}, s{s_pf}, s{s_lw}")
        a.I(f"s_mul_i32 s{s_pf}, s{s_pf}, {4*pitch}")
        a.I(f"s_add_u32 s{s_pf}, s{s_pf}, s{s_col0}")
        a.I(f"s_add_u32 s{s_pf}, s{s_pf}, {d*self.kstep}")
        if mode == 1: self.pf = (s_pf, [j*pitch + h*128 for j in range(4) for h in range(2)], False)
        elif mode == 3: self.pf = (s_pf, [j*pitch + h*128 + 60 for j in range(4) for h in range(2)], True)
        else: self.pf = (s_pf, [j*pitch + 124 for j in range(4)], True)

def lset_rm(a, va, sa, srd, s_row, per, pitch, s_wb, tmp):
    t0, t1, t2 = tmp, tmp + 1, tmp + 2
    st = sa.get(); sk = sa.get()
    a.I(f"v_lshrrev_b32 {v(t0)}, 3, v0")
    a.I(f"v_add_u32 {v(t0)}, s{s_row}, {v(t0)}")
    a.I(f"v_lshlrev_b32 {v(t0)}, {pitch.bit_length()-1}, {v(t0)}")
    a.I(f"v_lshrrev_b32 {v(t1)}, 4, v0")
    a.I(f"v_xor_b32 {v(t1)}, {v(t1)}, v0")
    a.I(f"v_and_b32 {v(t1)}, 7, {v(t1)}")
    a.I(f"v_xor_b32 {v(t2)}, 4, {v(t1)}")
    a.I(f"v_lshl_add_u32 {v(t1)}, {v(t1)}, 4, {v(t0)}")
    a.I(f"v_lshl_add_u32 {v(t2)}, {v(t2)}, 4, {v(t0)}")
    voffs = []
    for p in range(per):
        r = va.get()
        a.I(f"v_add_u32 {v(r)}, {p*8*pitch - (p%4)*1024}, {v(t1 if p % 2 == 0 else t2)}")
        voffs.append(r)
    a.I(f"s_mov_b32 s{sk}, 0")
    return LGroup(srd, voffs, s_wb, sk, 128)

def lset_lin(a, va, sa, srd, s_gbase, per, kstep, s_wb):
    assert per <= 4
    r = va.get(); sk = sa.get()
    a.I(f"v_lshlrev_b32 {v(r)}, 4, v0")
    a.I(f"s_mov_b32 s{sk}, s{s_gbase}")
    return LGroup(srd, [r] * per, s_wb, sk, kstep)

def lset_tr(a, va, sa, srd, s_krow, s_colb, pitch, s_wb, tmp):
    t0, t1 = tmp, tmp + 1
    st = sa.get(); sk = sa.get()
    a.I(f"v_lshrrev_b32 {v(t0)}, 3, v0")
    a.I(f"v_add_u32 {v(t0)}, s{s_krow}, {v(t0)}")
    a.I(f"v_mul_u32_u24 {v(t0)}, {pitch}, {v(t0)}")
    a.I(f"v_lshrrev_b32 {v(t1)}, 2, v0")
    a.I(f"v_and_b32 {v(t1)}, 4, {v(t1)}")
    a.I(f"v_xor_b32 {v(t1)}, {v(t1)}, v0")
    a.I(f"v_and_b32 {v(t1)}, 7, {v(t1)}")
    a.I(f"v_lshl_add_u32 {v(t0)}, {v(t1)}, 4, {v(t0)}")
    voffs = []
    for p in range(4):
        r = va.get()
        a.I(f"v_add_u32 {v(r)}, {p*8*pitch - p*1024}, {v(t0)}")
        voffs.append(r)
    a.I(f"s_mov_b32 s{sk}, s{s_colb}")
    return LGroup(srd, voffs, s_wb, sk, 64 * pitch)

def warm_next(a, va, sa, cfg, kidx, s_lw):
    if kidx == 0 and cfg.get("w2", 0):
        n = cfg["w2"]
        def f():
            srd = 4; so = sa.get(); st = sa.get(); vo = va.get(); vd = va.get(4, 4)
            a.I("s_bitcmp1_b32 s2, 0")
            a.I(f"s_cselect_b32 s{srd}, s{P_CI}, s{P_CR}")
            a.I(f"s_cselect_b32 s{srd+1}, s{P_CI+1}, s{P_CR+1}")
            a.I(f"s_mov_b32 s{srd+2}, {2048*4096}")
            a.I(f"s_mov_b32 s{srd+3}, 0x00020000")
            a.I(f"s_bfe_u32 s{so}, s2, 0x20001")
            a.I(f"s_lshl_b32 s{so}, s{so}, 2")
            a.I(f"s_bfe_u32 s{st}, s2, 0x20003")
            a.I(f"s_add_u32 s{so}, s{so}, s{st}")
            a.I(f"s_lshl_b32 s{so}, s{so}, 2")
            a.I(f"s_add_u32 s{so}, s{so}, s{s_lw}")
            a.I(f"s_lshl_b32 s{so}, s{so}, 17")
            a.I(f"s_lshr_b32 s{st}, s2, 5")
            a.I(f"s_lshl_b32 s{st}, s{st}, 7")
            a.I(f"s_add_u32 s{so}, s{so}, s{st}")
            a.I(f"v_lshrrev_b32 {v(vo)}, 3, v0")
            a.I(f"v_lshlrev_b32 {v(vo)}, 12, {v(vo)}")
            a.I(f"v_and_b32 {v(vd)}, 7, v0")
            a.I(f"v_lshl_add_u32 {v(vo)}, {v(vd)}, 4, {v(vo)}")
            for j in range(n):
                for p in range(4):
                    a.I(f"s_add_u32 s{st}, s{so}, {p*8*4096}")
                    a.I(f"buffer_load_dwordx4 {v(vd,4)}, {v(vo)}, {s(srd,4)}, s{st} offen offset:{j*1024}")
        return f, 4 * n
    if kidx == 1 and cfg.get("w3", 0):
        def f():
            srd = 4; so = sa.get(); st = sa.get(); vo = va.get(); vd = va.get(4, 4)
            a.I("s_bitcmp1_b32 s2, 2")
            a.I(f"s_cselect_b32 s{srd}, s{P_WI}, s{P_WO}")
            a.I(f"s_cselect_b32 s{srd+1}, s{P_WI+1}, s{P_WO+1}")
            a.I(f"s_mov_b32 s{srd+2}, {1024*2048}")
            a.I(f"s_mov_b32 s{srd+3}, 0x00020000")
            a.I(f"s_and_b32 s{so}, s2, 3")
            a.I(f"s_lshl_b32 s{so}, s{so}, 5")
            a.I(f"s_lshr_b32 s{st}, s2, 3")
            a.I(f"s_add_u32 s{so}, s{so}, s{st}")
            a.I(f"s_lshl_b32 s{so}, s{so}, 2")
            a.I(f"s_add_u32 s{so}, s{so}, s{s_lw}")
            a.I(f"s_lshl_b32 s{so}, s{so}, 12")
            a.I(f"v_lshlrev_b32 {v(vo)}, 4, v0")
            for p in range(4):
                a.I(f"buffer_load_dwordx4 {v(vd,4)}, {v(vo)}, {s(srd,4)}, s{so} offen offset:{p*1024}")
        return f, 4
    return None, 0

def loader_main(a, pfx, sa, groups, T, N, nbar, cfg, kidx, tail=(None, 0)):
    nd = sum(g.per for g in groups)
    if cfg.get("k0", 0) >> kidx & 1:
        for g in groups: g.kstep = 0
    s_boff = sa.get(); s_cnt = sa.get()
    a.I(f"s_mov_b32 s{s_boff}, 0")
    if cfg.get("rot", 0) >> {0: 1, 1: 8, 2: 2}[kidx] & 1:
        for g in groups:
            g.s_base = sa.get()
    rot = any(g.s_base is not None for g in groups)
    s_dummy = sa.get(2, 2)
    if rot:
        s_t = sa.get(); s_si = sa.get(); s_r = sa.get()
        a.I(f"s_mov_b32 s{s_t}, 0")
        a.I(f"s_lshr_b32 s{s_r}, s2, 3")
        a.I(f"s_lshr_b32 s{s_si}, s2, 5")
        a.I(f"s_add_u32 s{s_r}, s{s_r}, s{s_si}")
        for g in groups:
            if g.s_base is not None: a.I(f"s_mov_b32 s{g.s_base}, s{g.s_k}")
    else: s_si = None
    npf0 = cfg.get("spf", 0)
    rot0 = cfg.get("rot0", 0) and rot
    cnt = [0]
    def issue(wrap):
        t_ = cnt[0]; cnt[0] += 1
        if rot0 and t_ == 0:
            a.I(f"s_mov_b32 s{s_si}, 0")
        elif rot0 and t_ < 4:
            if t_ == 1:
                a.I(f"s_and_b32 s{s_si}, s{s_r}, 3")
                a.I(f"s_mov_b32 s{s_t}, 4")
            a.I(f"s_cmp_eq_u32 s{s_si}, 3")
            a.I(f"s_cselect_b32 s{s_si}, 0, s{s_si}")
            a.I(f"s_add_u32 s{s_si}, s{s_si}, 1")
        elif rot:
            a.I(f"s_add_u32 s{s_si}, s{s_t}, s{s_r}")
            a.I(f"s_and_b32 s{s_si}, s{s_si}, 3")
            a.I(f"s_andn2_b32 s{s_dummy}, s{s_t}, 3")
            a.I(f"s_or_b32 s{s_si}, s{s_si}, s{s_dummy}")
            a.I(f"s_add_u32 s{s_t}, s{s_t}, 1")
        for g in groups:
            for t in g.issue(s_boff, s_si=s_si): a.I(t)
        for g in groups:
            for t in g.prefetch(s_dummy2): a.I(t)
        a.I(f"s_add_u32 s{s_boff}, s{s_boff}, {SUB}")
        if wrap:
            a.I(f"s_cmp_eq_u32 s{s_boff}, {N*SUB}")
            a.I(f"s_cselect_b32 s{s_boff}, 0, s{s_boff}")
    s_dummy2 = sa.get(2, 2)
    stamp(a, 4)
    issued = 0
    first = cfg.get("first", 2)
    for _ in range(first): issue(True); issued += 1
    for _ in range(cfg.get("spf0", 0)):
        for g in groups:
            for t in g.prefetch(s_dummy2): a.I(t)
    stamp(a, 5)
    k = 0
    while True:
        a.I(f"s_waitcnt vmcnt({(issued - 1 - k) * nd})")
        a.I("s_barrier")
        if k == 0: stamp(a, 2)
        allowed = min(k - 1 + N, T - 1)
        n = min(cfg.get("ramp", 2), allowed + 1 - issued)
        for _ in range(n): issue(True); issued += 1
        k += 1
        if issued == k - 1 + N and issued >= 4: break
    nloop = T - N - k + 1
    if nloop > 0:
        a.I(f"s_mov_b32 s{s_cnt}, {nloop}")
        a.L(f"{pfx}_lloop")
        a.I(f"s_waitcnt vmcnt({(N-2)*nd})")
        a.I("s_barrier")
        issue(True)
        a.I(f"s_sub_u32 s{s_cnt}, s{s_cnt}, 1")
        a.I(f"s_cmp_lg_u32 s{s_cnt}, 0")
        a.I(f"s_cbranch_scc1 {pfx}_lloop")
        k += nloop; issued += nloop
    assert issued == T
    if tail[0]: tail[0]()
    while k < nbar:
        if k < T: a.I(f"s_waitcnt vmcnt({(T - 1 - k) * nd + tail[1]})")
        a.I("s_barrier")
        k += 1
    stamp(a, 3)
    stamp_out(a, kidx)
    a.I("s_endpgm")

class RdRM:
    def __init__(self, a, va, s_base, blkoff, tmp):
        t0, t1, t2 = tmp, tmp + 1, tmp + 2
        self.blkoff = blkoff
        self.rb = [va.get() for _ in range(4)]
        a.I(f"v_and_b32 {v(t0)}, 31, v0")
        a.I(f"v_lshlrev_b32 {v(t0)}, 7, {v(t0)}")
        a.I(f"v_add_u32 {v(t0)}, s{s_base}, {v(t0)}")
        a.I(f"v_bfe_u32 {v(t1)}, v0, 1, 3")
        a.I(f"v_lshrrev_b32 {v(t2)}, 5, v0")
        a.I(f"v_xor_b32 {v(t1)}, {v(t1)}, {v(t2)}")
        for g in range(4):
            a.I(f"v_xor_b32 {v(t2)}, {2*g}, {v(t1)}")
            a.I(f"v_lshl_add_u32 {v(self.rb[g])}, {v(t2)}, 4, {v(t0)}")
    def read(self, blk, g, buf, dst):
        off = self.blkoff(blk) + buf * SUB
        assert off < 65536
        return [f"ds_read_b128 {v(dst,4)}, {v(self.rb[g])} offset:{off}"]

class RdFM:
    def __init__(self, a, va, s_base, blkoff, tmp):
        self.blkoff = blkoff
        self.rb = va.get()
        a.I(f"v_lshlrev_b32 {v(tmp)}, 4, v0")
        a.I(f"v_add_u32 {v(self.rb)}, s{s_base}, {v(tmp)}")
    def read(self, blk, g, buf, dst):
        off = self.blkoff(blk) + buf * SUB + g * 1024
        assert off < 65536
        return [f"ds_read_b128 {v(dst,4)}, {v(self.rb)} offset:{off}"]

class RdTR:
    def __init__(self, a, va, sa, s_base, partoff, perm, mode, s_half, tmp):
        t0, t1 = tmp, tmp + 1
        self.partoff = partoff; self.perm = perm; self.mode = mode
        a.I(f"v_bfe_u32 {v(t0)}, v0, 4, 1")
        a.I(f"v_bfe_u32 {v(t1)}, v0, 1, 1")
        a.I(f"v_lshl_add_u32 {v(t0)}, {v(t0)}, 1, {v(t1)}")
        if mode == "parts":
            st = sa.get()
            a.I(f"s_lshl_b32 s{st}, s{s_half}, 2")
            a.I(f"v_add_u32 {v(t0)}, s{st}, {v(t0)}")
        a.I(f"v_bfe_u32 {v(t1)}, v0, 3, 1")
        a.I(f"v_lshlrev_b32 {v(t1)}, 2, {v(t1)}")
        a.I(f"v_xor_b32 {v(t0)}, {v(t0)}, {v(t1)}")
        a.I(f"v_lshlrev_b32 {v(t0)}, 4, {v(t0)}")
        a.I(f"v_bfe_u32 {v(t1)}, v0, 2, 2")
        a.I(f"v_lshl_add_u32 {v(t0)}, {v(t1)}, 7, {v(t0)}")
        a.I(f"v_and_b32 {v(t1)}, 1, v0")
        a.I(f"v_lshl_add_u32 {v(t0)}, {v(t1)}, 3, {v(t0)}")
        a.I(f"v_lshrrev_b32 {v(t1)}, 5, v0")
        a.I(f"v_lshl_add_u32 {v(t0)}, {v(t1)}, {9 if perm else 10}, {v(t0)}")
        self.rb = [va.get()]
        a.I(f"v_add_u32 {v(self.rb[0])}, s{s_base}, {v(t0)}")
        if mode == "halves":
            self.rb.append(va.get())
            a.I(f"v_xor_b32 {v(self.rb[1])}, 64, {v(self.rb[0])}")
    def read(self, blk, g, buf, dst):
        out = []
        for t in range(2):
            off = (2*g + t) * 1024 if self.perm else 2*g * 1024 + t * 512
            off += buf * SUB
            if self.mode == "parts": off += self.partoff * blk; rb = self.rb[0]
            else: rb = self.rb[blk]
            assert off < 65536
            out.append(f"ds_read_b64_tr_b16 {v(dst+2*t,2)}, {v(rb)} offset:{off}")
        return out

def gemm_compute(a, pfx, va, sa, R, C, MB, NB, swap, T, N, init_acc, last_cb, peel=True, pace=0, pre_bar=1, stage_hook=None, regs=None, off=0):
    if regs is None:
        acc = [[va.get(16, 4) for n in range(NB)] for m in range(MB)]
        fr = [[va.get(4, 4) for m in range(MB)] for _ in range(2)]
        fc = [[va.get(4, 4) for n in range(NB)] for _ in range(2)]
    else:
        acc, fr, fc = regs
    s_cnt = sa.get()
    def reads(g, buf, st):
        out = []
        rl = [R.read(m, g, buf, fr[st][m]) for m in range(MB)]
        cl = [C.read(n, g, buf, fc[st][n]) for n in range(NB)]
        for i in range(max(MB, NB)):
            if i < MB: out += rl[i]
            if i < NB: out += cl[i]
        return out
    def mfmas(st):
        out = []
        for m in range(MB):
            for n in range(NB):
                A_, B_ = (fc[st][n], fr[st][m]) if swap else (fr[st][m], fc[st][n])
                out.append(f"{MF} {v(acc[m][n],16)}, {v(A_,4)}, {v(B_,4)}, {v(acc[m][n],16)}")
        return out
    def emit_seq(mf, fill, span=None):
        seq = interleave(mf, fill, span=span)
        for i, t in enumerate(seq):
            if off & 1 and t.startswith("v_mfma"): continue
            if off & 2 and t.startswith("ds_read"): continue
            if pace and t.startswith("v_mfma"):
                p = pace
                while p > 0:
                    q = min(p, 16); a.I(f"s_nop {q-1}"); p -= q
            a.I(t)
    init_acc(acc)
    a.I("s_barrier")
    stamp(a, 2)
    for t in reads(0, 0, 0): a.I(t)
    nmf = MB * NB
    def stage(buf, last, sidx):
        for g in range(4):
            st = g % 2
            a.I("s_waitcnt lgkmcnt(0)")
            mf = mfmas(st)
            if g < 3:
                fill = reads(g + 1, buf, 1 - st)
                if stage_hook: fill = fill + stage_hook(sidx, g)
                emit_seq(mf, fill, span=max(1, nmf - 1))
            elif not last:
                emit_seq(mf[:pre_bar], [])
                a.I("s_barrier")
                fill = reads(0, (buf + 1) % N, 0)
                rest = mf[pre_bar:]
                lead = min(2, len(fill))
                for t in fill[:lead]:
                    if not off & 2: a.I(t)
                emit_seq(rest, fill[lead:], span=max(1, len(rest) - 1))
            else:
                stamp(a, 3)
                last_cb(acc, mf, fr, fc)
    nfull = T - 1 if peel else T
    niter = nfull // N
    assert niter * N == nfull, (T, N, peel)
    a.I(f"s_mov_b32 s{s_cnt}, {niter}")
    a.L(f"{pfx}_loop")
    for b in range(N):
        stage(b, False, b)
    a.I(f"s_sub_u32 s{s_cnt}, s{s_cnt}, 1")
    a.I(f"s_cmp_lg_u32 s{s_cnt}, 0")
    a.I(f"s_cbranch_scc1 {pfx}_loop")
    if peel:
        stage(0, True, None)
    else:
        stamp(a, 3)
        a.I("s_waitcnt lgkmcnt(0)")
        last_cb(acc, [], fr, fc)
    return acc, fr, fc

def zero_acc(a):
    def f(acc):
        for row in acc:
            for r in row:
                for i in range(16): a.I(f"v_mov_b32 {v(r+i)}, 0")
    return f

def pack_ops(accr, dst, scale_s=None, neg=False, swap=False):
    out = []
    if scale_s is not None:
        for i in range(16): out.append(f"v_mul_f32 {v(accr+i)}, s{scale_s}, {v(accr+i)}")
    n = "-" if neg else ""
    for i in range(8):
        out.append(f"v_cvt_pk_bf16_f32 {v(dst+i)}, {n}{v(accr+2*i)}, {n}{v(accr+2*i+1)}")
    if swap:
        for g in range(2):
            out.append(f"v_permlane32_swap_b32 {v(dst+4*g)}, {v(dst+4*g+2)}")
            out.append(f"v_permlane32_swap_b32 {v(dst+4*g+1)}, {v(dst+4*g+3)}")
    return out

def tail_interleave(a, mf, blocks, lag=2):
    n = len(blocks)
    for i, m in enumerate(mf):
        a.I(m)
        if i - lag >= 0:
            for t in blocks[i - lag]: a.I(t)
    for i in range(max(0, len(mf) - lag), n):
        for t in blocks[i]: a.I(t)

def gen_k1(a, cfg):
    name = "k1_kernel"
    N = 3; T = 16
    stm = cfg.get("st1", " sc1")
    RB = 0; CB = 4 * N * SUB
    kernel_head(a, name, 256)
    a.I("s_lshr_b32 s7, s4, 1")
    a.I("s_and_b32 s6, s4, 1")
    a.I("s_lshl_b32 s6, s6, 2")
    a.I("s_and_b32 s4, s5, 3")
    a.I("s_add_u32 s6, s6, s4")
    a.I("s_lshr_b32 s5, s5, 2")
    a.I(f"s_cmp_lt_u32 s{S_WAVE}, 4")
    a.I(f"s_cbranch_scc1 {name}_comp")
    va = Alloc(1, 256); sa = Alloc(S_FREE0, 76)
    tmp = va.get(4)
    srdx = sa.get(4, 4); srdw = sa.get(4, 4)
    s_lw = sa.get(); s_row = sa.get(); s_wbr = sa.get(); s_wbc = sa.get(); s_t = sa.get(); s_t2 = sa.get()
    a.I(f"s_sub_u32 s{s_lw}, s{S_WAVE}, 4")
    a.I(f"s_lshl_b32 s{s_row}, s6, 8")
    a.I(f"s_lshl_b32 s{s_t}, s{s_lw}, 6")
    a.I(f"s_add_u32 s{s_row}, s{s_row}, s{s_t}")
    a.I(f"s_mul_i32 s{s_wbr}, s{s_lw}, {N*SUB}")
    a.I(f"s_lshr_b32 s{s_t}, s{s_lw}, 1")
    a.I(f"s_mul_i32 s{s_wbc}, s{s_t}, {N*SUB}")
    a.I(f"s_and_b32 s{s_t2}, s{s_lw}, 1")
    a.I(f"s_lshl_b32 s{s_t2}, s{s_t2}, 12")
    a.I(f"s_add_u32 s{s_wbc}, s{s_wbc}, s{s_t2}")
    a.I(f"s_add_u32 s{s_wbc}, s{s_wbc}, {CB}")
    gR = lset_rm(a, va, sa, srdx, s_row, 8, 2048, s_wbr, tmp)
    a.I(f"s_mov_b32 s{srdx+2}, {2048*2048}")
    a.I(f"s_mov_b32 s{srdx+3}, 0x00020000")
    a.I(f"s_mov_b32 s{srdw+3}, 0x00020000")
    a.I("s_cmp_eq_u32 s7, 3")
    a.I(f"s_cbranch_scc1 {name}_lda")
    save = (va.n, sa.n)
    s_col = sa.get(); s_kr = sa.get()
    a.I(f"s_lshl_b32 s{s_col}, s7, 11")
    a.I(f"s_lshl_b32 s{s_kr}, s5, 8")
    a.I(f"s_add_u32 s{s_col}, s{s_col}, s{s_kr}")
    a.I(f"s_lshl_b32 s{s_t}, s{s_t}, 7")
    a.I(f"s_add_u32 s{s_col}, s{s_col}, s{s_t}")
    a.I(f"s_lshr_b32 s{s_kr}, s{s_t2}, 7")
    gC = lset_tr(a, va, sa, srdw, s_kr, s_col, 6144, s_wbc, tmp)
    a.I(f"s_mov_b32 s{srdw+2}, {1024*6144}")
    a.I("s_waitcnt lgkmcnt(0)")
    a.I(f"s_mov_b64 s[{srdx}:{srdx+1}], s[{P_BX}:{P_BX+1}]")
    a.I(f"s_mov_b64 s[{srdw}:{srdw+1}], s[{P_WQKV}:{P_WQKV+1}]")
    loader_main(a, "k1q", sa, [gR, gC], T, N, T, cfg, 0, warm_next(a, va, sa, cfg, 0, s_lw))
    hv = va.hi; hs = sa.hi
    a.L(f"{name}_lda")
    va.n, sa.n = save
    s_r2 = sa.get()
    a.I(f"s_lshl_b32 s{s_r2}, s5, 7")
    a.I(f"s_lshl_b32 s{s_t}, s{s_lw}, 5")
    a.I(f"s_add_u32 s{s_r2}, s{s_r2}, s{s_t}")
    gC = lset_rm(a, va, sa, srdw, s_r2, 4, 2048, s_wbc, tmp)
    a.I(f"s_mov_b32 s{srdw+2}, {1024*2048}")
    a.I("s_waitcnt lgkmcnt(0)")
    a.I(f"s_mov_b64 s[{srdx}:{srdx+1}], s[{P_AX}:{P_AX+1}]")
    a.I(f"s_mov_b64 s[{srdw}:{srdw+1}], s[{P_WR}:{P_WR+1}]")
    loader_main(a, "k1a", sa, [gR, gC], T, N, T, cfg, 0, warm_next(a, va, sa, cfg, 0, s_lw))
    hv = max(hv, va.hi); hs = max(hs, sa.hi)
    a.L(f"{name}_comp")
    va = Alloc(1, 256); sa = Alloc(S_FREE0, 76)
    tmp = va.get(3)
    vst = va.get(2)
    srdo = sa.get(4, 4)
    s_wm = sa.get(); s_wn = sa.get(); s_b = sa.get(); s_o = sa.get(); s_t = sa.get(); s_sc = sa.get(); s_sb = sa.get()
    a.I(f"s_lshr_b32 s{s_wm}, s{S_WAVE}, 1")
    a.I(f"s_and_b32 s{s_wn}, s{S_WAVE}, 1")
    a.I(f"s_mul_i32 s{s_b}, s{s_wm}, {2*N*SUB}")
    R = RdRM(a, va, s_b, lambda m: (m >> 1) * N * SUB + (m & 1) * 4096, tmp)
    regs = ([[va.get(16, 4) for n in range(2)] for m in range(4)],
            [[va.get(4, 4) for m in range(4)] for _ in range(2)],
            [[va.get(4, 4) for n in range(2)] for _ in range(2)])
    pk = va.get(24, 4)
    a.I(f"s_lshl_b32 s{s_sb}, s6, 3")
    a.I(f"s_lshl_b32 s{s_t}, s{s_wm}, 2")
    a.I(f"s_add_u32 s{s_sb}, s{s_sb}, s{s_t}")
    a.I(f"v_lshlrev_b32 {v(vst)}, 4, v0")
    a.I(f"s_mov_b32 s{srdo+2}, {WS_OF}")
    a.I(f"s_mov_b32 s{srdo+3}, 0x00020000")
    a.I("s_cmp_eq_u32 s7, 3")
    a.I(f"s_cbranch_scc1 {name}_ca")
    save = (va.n, sa.n)
    a.I(f"s_mov_b32 s{s_b}, {CB}")
    C = RdTR(a, va, sa, s_b, N * SUB, False, "parts", s_wn, tmp)
    s_h = sa.get()
    a.I(f"s_lshl_b32 s{s_h}, s5, 2")
    a.I(f"s_add_u32 s{s_h}, s{s_h}, s{s_wn}")
    a.I("s_cmp_eq_u32 s7, 0")
    a.I(f"s_cbranch_scc1 {name}_cq")
    a.I(f"s_mul_i32 s{s_o}, s{s_h}, {KV_HSTRIDE}")
    a.I(f"s_lshl_b32 s{s_t}, s{s_sb}, 12")
    a.I(f"s_add_u32 s{s_o}, s{s_o}, s{s_t}")
    a.I(f"s_add_u32 s{s_o}, s{s_o}, {WS_KV}")
    a.I(f"v_add_u32 {v(vst+1)}, {2*KV_HSTRIDE}, {v(vst)}")
    s_mstep = sa.get()
    a.I(f"s_mov_b32 s{s_mstep}, 4096")
    a.I("s_cmp_eq_u32 s7, 2")
    a.I(f"s_cbranch_scc1 {name}_cv")
    a.I(f"s_branch {name}_cqk")
    a.L(f"{name}_cq")
    a.I(f"s_lshl_b32 s{s_o}, s{s_h}, 6")
    a.I(f"s_add_u32 s{s_o}, s{s_o}, s{s_sb}")
    a.I(f"s_lshl_b32 s{s_o}, s{s_o}, 11")
    a.I(f"s_add_u32 s{s_o}, s{s_o}, {WS_QF}")
    a.I(f"v_add_u32 {v(vst+1)}, {2*64*2048}, {v(vst)}")
    a.I(f"s_mov_b32 s{s_sc}, {f32hex(QSCALE)}")
    a.I(f"s_mov_b32 s{s_mstep}, 2048")
    vdum = va.get()
    def tlbw():
        if cfg.get("tlb", 0) & 1:
            a.I(f"s_mov_b64 s[{srdo}:{srdo+1}], s[{P_WS}:{P_WS+1}]")
            for n in range(2): a.I(f"buffer_load_dword {v(vdum)}, {v(vst+n)}, {s(srdo,4)}, s{s_o} offen")
    def mk_last(scale, swp, off0, mstep_s=None, mimm=None):
        def last(acc, mf, fr, fc):
            a.I(f"s_mov_b64 s[{srdo}:{srdo+1}], s[{P_WS}:{P_WS+1}]")
            blocks = []
            i = 0
            for m in range(4):
                for n in range(2):
                    d = pk + 8 * (i % 3); i += 1
                    ops = pack_ops(acc[m][n], d, scale, swap=swp)
                    for j in range(2):
                        off = off0 + j * 1024 + (mimm * m if mimm else 0)
                        ops.append(f"buffer_store_dwordx4 {v(d+4*j,4)}, {v(vst+n)}, {s(srdo,4)}, s{s_o} offen offset:{off}{stm}")
                    if n == 1 and mstep_s is not None:
                        ops.append(f"s_add_u32 s{s_o}, s{s_o}, s{mstep_s}")
                    blocks.append(ops)
            tail_interleave(a, mf, blocks)
            stamp_out(a, 0)
            a.I("s_endpgm")
        return last
    a.L(f"{name}_cqk")
    a.I("s_waitcnt lgkmcnt(0)")
    tlbw()
    def last_qk(acc, mf, fr, fc):
        a.I("s_cmp_eq_u32 s7, 0")
        a.I(f"s_cbranch_scc0 {name}_tk")
        mk_last(s_sc, False, 0, s_mstep)(acc, mf, fr, fc)
        a.L(f"{name}_tk")
        mk_last(None, False, 0, s_mstep)(acc, mf, fr, fc)
    gemm_compute(a, "k1qk", va, sa, R, C, 4, 2, True, T, N, zero_acc(a), last_qk, regs=regs)
    a.L(f"{name}_cv")
    a.I(f"s_add_u32 s{s_o}, s{s_o}, 4096")
    a.I("s_waitcnt lgkmcnt(0)")
    tlbw()
    gemm_compute(a, "k1v", va, sa, R, C, 4, 2, False, T, N, zero_acc(a), mk_last(None, False, 2048, s_mstep), regs=regs)
    hv = max(hv, va.hi); hs = max(hs, sa.hi)
    a.L(f"{name}_ca")
    va.n, sa.n = save
    a.I(f"s_lshl_b32 s{s_b}, s{s_wn}, 12")
    a.I(f"s_add_u32 s{s_b}, s{s_b}, {CB}")
    C = RdRM(a, va, s_b, lambda n: n * N * SUB, tmp)
    a.I(f"s_lshl_b32 s{s_o}, s5, 2")
    a.I(f"s_add_u32 s{s_o}, s{s_o}, s{s_wn}")
    a.I(f"s_lshl_b32 s{s_o}, s{s_o}, 17")
    a.I(f"s_lshl_b32 s{s_t}, s{s_sb}, 11")
    a.I(f"s_add_u32 s{s_o}, s{s_o}, s{s_t}")
    if WS_AF: a.I(f"s_add_u32 s{s_o}, s{s_o}, {WS_AF}")
    a.I(f"v_add_u32 {v(vst+1)}, {2<<17}, {v(vst)}")
    s_mstep = sa.get()
    a.I(f"s_mov_b32 s{s_mstep}, 2048")
    a.I("s_waitcnt lgkmcnt(0)")
    vdum = va.get()
    tlbw()
    gemm_compute(a, "k1a", va, sa, R, C, 4, 2, False, T, N, zero_acc(a), mk_last(None, True, 0, s_mstep), regs=regs)
    hv = max(hv, va.hi); hs = max(hs, sa.hi)
    kernel_tail(a, name)
    return dict(name=name, grid=256, block=512, lds=6*N*SUB, vgpr=hv, sgpr=hs)

MBIAS = 96.0
def att_role(a, cfg, N, kvoff):
    summode = cfg.get("sum", "pk")
    stm = cfg.get("st2", " sc1")
    va = Alloc(1, 168); sa = Alloc(S_FREE0, 76)
    vl16 = 0
    vkv = va.get()
    L = [va.get(2, 2) for _ in range(2)]
    Q = [[va.get(4, 2) for j in range(2)] for qb in range(2)]
    NM = [va.get(16, 2) for _ in range(2)]
    S = [va.get(16, 2) for _ in range(2)]
    O = [va.get(16, 2) for _ in range(2)]
    P = [va.get(8, 2) for _ in range(2)]
    K = [[va.get(4, 2) for j in range(2)] for b in range(2)]
    V = [[va.get(4, 2) for j in range(2)] for b in range(2)]
    srd = sa.get(4, 4)
    s_h = sa.get(); s_sb = sa.get(); s_q = sa.get(); s_kv = sa.get(); s_t = sa.get(); s_fb = sa.get()
    s_cnt = sa.get(); s_one = sa.get()
    a.I(f"s_lshl_b32 s{s_h}, s4, 2")
    a.I(f"s_lshr_b32 s{s_t}, s5, 3")
    a.I(f"s_add_u32 s{s_h}, s{s_h}, s{s_t}")
    a.I(f"s_and_b32 s{s_sb}, s5, 7")
    a.I(f"s_lshl_b32 s{s_sb}, s{s_sb}, 3")
    a.I(f"s_lshl_b32 s{s_t}, s{S_WAVE}, 1")
    a.I(f"s_add_u32 s{s_sb}, s{s_sb}, s{s_t}")
    a.I(f"s_lshl_b32 s{s_q}, s{s_h}, 6")
    a.I(f"s_add_u32 s{s_q}, s{s_q}, s{s_sb}")
    a.I(f"s_lshl_b32 s{s_q}, s{s_q}, 11")
    a.I(f"s_add_u32 s{s_q}, s{s_q}, {WS_QF}")
    a.I(f"s_mul_i32 s{s_kv}, s{s_h}, {KV_HSTRIDE}")
    a.I(f"s_add_u32 s{s_kv}, s{s_kv}, {WS_KV}")
    a.I(f"v_lshlrev_b32 {v(vl16)}, 4, v0")
    a.I(f"s_mov_b32 s{srd+2}, {WS_PF}")
    a.I(f"s_mov_b32 s{srd+3}, 0x00020000")
    a.I("s_waitcnt lgkmcnt(0)")
    a.I(f"s_mov_b64 s[{srd}:{srd+1}], s[{P_WS}:{P_WS+1}]")
    for j in range(2):
        a.I(f"buffer_load_dwordx4 {v(K[0][j],4)}, {v(vl16)}, {s(srd,4)}, s{s_kv} offen offset:{j*1024}")
    for qb in range(2):
        for j in range(2):
            a.I(f"buffer_load_dwordx4 {v(Q[qb][j],4)}, {v(vl16)}, {s(srd,4)}, s{s_q} offen offset:{qb*2048+j*1024}")
    a.I(f"v_add_u32 {v(vkv)}, {kvoff}, {v(vl16)}")
    a.I(f"s_mov_b32 s{s_fb}, 0")
    a.I(f"s_mov_b32 s{s_one}, 0x3f803f80")
    def zero_state():
        for qb in range(2):
            for i in range(16): a.I(f"v_mov_b32 {v(O[qb]+i)}, 0")
            for i in range(2): a.I(f"v_mov_b32 {v(L[qb]+i)}, 0")
    zero_state()
    for i in range(8): a.I(f"v_mov_b32 {v(P[1]+i)}, 0")
    for j in range(2):
        for i in range(4): a.I(f"v_mov_b32 {v(V[0][j]+i)}, 0")
    def s_mfma(qb, kbuf, c):
        return [f"{MF} {v(S[qb],16)}, {v(K[kbuf][0],4)}, {v(Q[qb][0],4)}, {c}",
                f"{MF} {v(S[qb],16)}, {v(K[kbuf][1],4)}, {v(Q[qb][1],4)}, {v(S[qb],16)}"]
    def pv_mfma(qb, vbuf):
        return [f"{MF} {v(O[qb],16)}, {v(V[vbuf][j],4)}, {v(P[qb]+4*j,4)}, {v(O[qb],16)}" for j in range(2)]
    def set_negm(qb, mreg, t1, bias):
        a.I(f"v_mov_b32 {v(t1)}, {v(mreg)}")
        a.I(f"v_permlane32_swap_b32 {v(mreg)}, {v(t1)}")
        a.I(f"v_max_f32 {v(mreg)}, {v(mreg)}, {v(t1)}")
        a.I(f"v_sub_f32 {v(NM[qb])}, {f32hex(-bias)}, {v(mreg)}")
        for i in range(1, 16): a.I(f"v_mov_b32 {v(NM[qb]+i)}, {v(NM[qb])}")
    def max16(dst, sreg, first):
        i = 0
        if first:
            a.I(f"v_max3_f32 {v(dst)}, {v(sreg)}, {v(sreg+1)}, {v(sreg+2)}"); i = 3
        while i < 16:
            if i + 1 < 16:
                a.I(f"v_max3_f32 {v(dst)}, {v(dst)}, {v(sreg+i)}, {v(sreg+i+1)}"); i += 2
            else:
                a.I(f"v_max_f32 {v(dst)}, {v(dst)}, {v(sreg+i)}"); i += 1
    def valu_groups(qb):
        gs = []
        for g in range(4):
            r = S[qb] + 4 * g
            x = [f"v_exp_f32 {v(r+i)}, {v(r+i)}" for i in range(4)]
            for h in range(2):
                x.append(f"v_cvt_pk_bf16_f32 {v(P[qb]+2*g+h)}, {v(r+2*h)}, {v(r+2*h+1)}")
                if summode == "pk":
                    x.append(f"v_pk_add_f32 {v(L[qb],2)}, {v(L[qb],2)}, {v(r+2*h,2)}")
                elif summode == "add":
                    x.append(f"v_add_f32 {v(L[qb])}, {v(L[qb])}, {v(r+2*h)}")
                    x.append(f"v_add_f32 {v(L[qb]+1)}, {v(L[qb]+1)}, {v(r+2*h+1)}")
                elif summode == "dot":
                    x.append(f"v_dot2_f32_bf16 {v(L[qb]+h)}, {v(P[qb]+2*g+h)}, s{s_one}, {v(L[qb]+h)}")
            gs.append(x)
        return gs
    tmp = P[0]
    a.I("s_waitcnt vmcnt(0)")
    for qb in range(2):
        for t in s_mfma(qb, 0, "0"): a.I(t)
    for qb in range(2):
        max16(tmp, S[qb], True)
        set_negm(qb, tmp, tmp + 1, MBIAS)
        if qb == 0:
            for t in s_mfma(0, 0, v(NM[0], 16)): a.I(t)
    a.I(f"s_mov_b32 s{s_cnt}, {32 // N}")
    a.I("s_barrier")
    stamp(a, 2)
    a.L("att_loop")
    for buf in range(N):
        for sl in range(4):
            qb = sl % 2; o = 1 - qb
            kbuf = ((sl + 1) // 2) % 2
            vbuf = (((sl - 1) // 2) + 1) % 2
            m = s_mfma(o, kbuf, v(NM[o], 16)) + pv_mfma(o, vbuf)
            gs = valu_groups(qb)
            if sl % 2 == 1: a.I("s_waitcnt lgkmcnt(0)")
            extra = [[], [], [], []]
            if sl == 3: extra[0] = ["s_barrier"]
            if sl % 2 == 0:
                rb = (sl // 2 + 1) % 2
                ro = (sl // 2) * 4096 + buf * SUB
                extra[0] = [f"ds_read_b128 {v(K[rb][j],4)}, {v(vkv)} offset:{ro + j*1024}" for j in range(2)]
                extra[1] = [f"ds_read_b128 {v(V[rb][j],4)}, {v(vkv)} offset:{ro + 2048 + j*1024}" for j in range(2)]
            if sl == 3 and buf == N - 1:
                extra[1] = [f"s_sub_u32 s{s_cnt}, s{s_cnt}, 1", f"s_cmp_lg_u32 s{s_cnt}, 0"]
            for g in range(4):
                if not cfg.get("attoff", 0) & 1: a.I(m[g])
                for t in extra[g]:
                    if not (cfg.get("attoff", 0) & 4 and t.startswith("ds_read")): a.I(t)
                if not cfg.get("attoff", 0) & 2:
                    for t in gs[g]: a.I(t)
    a.I("s_cbranch_scc1 att_loop")
    stamp(a, 3)
    for t in pv_mfma(1, 0): a.I(t)
    tmp = S[0]
    a.L("att_fin")
    for qb in range(2):
        a.I(f"v_add_f32 {v(L[qb])}, {v(L[qb])}, {v(L[qb]+1)}")
        a.I(f"v_mov_b32 {v(L[qb]+1)}, {v(L[qb])}")
        a.I(f"v_permlane32_swap_b32 {v(L[qb])}, {v(L[qb]+1)}")
        a.I(f"v_add_f32 {v(L[qb])}, {v(L[qb])}, {v(L[qb]+1)}")
    a.I(f"s_lshl_b32 s{s_t}, s{s_sb}, 16")
    a.I(f"s_lshl_b32 s{s_q}, s{s_h}, 11")
    a.I(f"s_add_u32 s{s_t}, s{s_t}, s{s_q}")
    a.I(f"s_add_u32 s{s_t}, s{s_t}, {WS_OF}")
    a.I(f"v_add_u32 {v(tmp+4)}, 0x10000, {v(vl16)}")
    a.I(f"v_rcp_f32 {v(tmp+2)}, {v(L[0])}")
    a.I(f"v_rcp_f32 {v(tmp+3)}, {v(L[1])}")
    a.I(f"s_cmp_lg_u32 s{s_fb}, 0")
    a.I("s_cbranch_scc1 att_store")
    a.I(f"v_max_f32 {v(tmp)}, {v(L[0])}, {v(L[1])}")
    a.I(f"v_mul_f32 {v(tmp+1)}, 0, {v(L[0])}")
    a.I(f"v_mul_f32 {v(tmp+5)}, 0, {v(L[1])}")
    for i in range(16):
        a.I(f"v_fmac_f32 {v(tmp+1)}, 0, {v(O[0]+i)}")
        a.I(f"v_fmac_f32 {v(tmp+5)}, 0, {v(O[1]+i)}")
    a.I(f"v_add_f32 {v(tmp)}, {v(tmp)}, {v(tmp+1)}")
    a.I(f"v_add_f32 {v(tmp)}, {v(tmp)}, {v(tmp+5)}")
    a.I(f"v_cmp_ngt_f32 vcc, {f32hex(2.0**120)}, {v(tmp)}")
    if not cfg.get("attoff", 0): a.I("s_cbranch_vccnz att_fallback")
    a.L("att_store")
    for qb in range(2):
        for i in range(16): a.I(f"v_mul_f32 {v(O[qb]+i)}, {v(tmp+2+qb)}, {v(O[qb]+i)}")
        for t in pack_ops(O[qb], P[qb]): a.I(t)
        for j in range(2):
            a.I(f"buffer_store_dwordx4 {v(P[qb]+4*j,4)}, {v(vl16 if qb == 0 else tmp+4)}, {s(srd,4)}, s{s_t} offen offset:{j*1024}{stm}")
    stamp_out(a, 1)
    a.I("s_endpgm")
    tmp = P[0]
    a.L("att_fallback")
    a.I(f"s_mov_b32 s{s_fb}, 1")
    a.I(f"s_mov_b32 s{s_t}, s{s_kv}")
    a.I(f"s_mov_b32 s{s_cnt}, 0")
    a.I(f"v_mov_b32 {v(tmp+2)}, 0xff800000")
    a.I(f"v_mov_b32 {v(tmp+3)}, 0xff800000")
    a.L("att_fb1")
    for j in range(2):
        a.I(f"buffer_load_dwordx4 {v(K[0][j],4)}, {v(vl16)}, {s(srd,4)}, s{s_t} offen offset:{j*1024}")
    a.I("s_waitcnt vmcnt(0)")
    for qb in range(2):
        for t in s_mfma(qb, 0, "0"): a.I(t)
    for qb in range(2): max16(tmp + 2 + qb, S[qb], False)
    a.I(f"s_add_u32 s{s_t}, s{s_t}, 4096")
    a.I(f"s_add_u32 s{s_cnt}, s{s_cnt}, 1")
    a.I(f"s_cmp_lt_u32 s{s_cnt}, 64")
    a.I("s_cbranch_scc1 att_fb1")
    for qb in range(2): set_negm(qb, tmp + 2 + qb, tmp + 1, 0.0)
    zero_state()
    a.I(f"s_mov_b32 s{s_t}, s{s_kv}")
    a.I(f"s_mov_b32 s{s_cnt}, 0")
    va2 = K[1][0]
    a.I(f"v_add_u32 {v(va2)}, 4096, {v(vl16)}")
    a.L("att_fb2")
    for j in range(2):
        a.I(f"buffer_load_dwordx4 {v(K[0][j],4)}, {v(vl16)}, {s(srd,4)}, s{s_t} offen offset:{j*1024}")
        a.I(f"buffer_load_dwordx4 {v(V[0][j],4)}, {v(va2)}, {s(srd,4)}, s{s_t} offen offset:{2048+j*1024}")
    a.I("s_waitcnt vmcnt(0)")
    for qb in range(2):
        for t in s_mfma(qb, 0, v(NM[qb], 16)): a.I(t)
    for qb in range(2):
        for g in valu_groups(qb):
            for t in g: a.I(t)
        for t in pv_mfma(qb, 0): a.I(t)
    a.I(f"s_add_u32 s{s_t}, s{s_t}, 4096")
    a.I(f"s_add_u32 s{s_cnt}, s{s_cnt}, 1")
    a.I(f"s_cmp_lt_u32 s{s_cnt}, 64")
    a.I("s_cbranch_scc1 att_fb2")
    a.I("s_branch att_fin")
    return va.hi, sa.hi

def gen_k2(a, cfg):
    name = "k2_kernel"
    N = 4; T = 32
    stm = cfg.get("st2", " sc1")
    RB = 0; CB = 2 * N * SUB; KB = 4 * N * SUB
    kernel_head(a, name, 256)
    a.I(f"s_cmp_ge_u32 s{S_WAVE}, 4")
    a.I(f"s_cbranch_scc1 {name}_g3")
    if cfg.get("prio_att"): a.I(f"s_setprio {cfg['prio_att']}")
    hv, hs = att_role(a, cfg, N, KB)
    a.L(f"{name}_g3")
    sa = Alloc(S_FREE0, 76)
    s_tb = sa.get(); s_eb = sa.get(); s_t = sa.get(); s_t2 = sa.get()
    a.I("s_and_b32 s7, s4, 1")
    a.I(f"s_lshr_b32 s{s_tb}, s4, 1")
    a.I(f"s_lshl_b32 s{s_tb}, s{s_tb}, 2")
    a.I(f"s_and_b32 s{s_t}, s5, 3")
    a.I(f"s_add_u32 s{s_tb}, s{s_tb}, s{s_t}")
    a.I(f"s_lshr_b32 s{s_eb}, s5, 2")
    a.I(f"s_cmp_lt_u32 s{S_WAVE}, 8")
    a.I(f"s_cbranch_scc1 {name}_comp")
    save_s = sa.n
    va = Alloc(1, 168)
    tmp = va.get(4)
    srdc = sa.get(4, 4); srdw = sa.get(4, 4); srdx = sa.get(4, 4)
    s_lw = sa.get(); s_row = sa.get(); s_wbr = sa.get(); s_wbc = sa.get(); s_wbk = sa.get(); s_kv = sa.get()
    a.I(f"s_sub_u32 s{s_lw}, s{S_WAVE}, 8")
    a.I(f"s_lshl_b32 s{s_row}, s{s_tb}, 7")
    a.I(f"s_lshl_b32 s{s_t}, s{s_lw}, 5")
    a.I(f"s_add_u32 s{s_row}, s{s_row}, s{s_t}")
    a.I(f"s_lshr_b32 s{s_t}, s{s_lw}, 1")
    a.I(f"s_mul_i32 s{s_wbr}, s{s_t}, {N*SUB}")
    a.I(f"s_and_b32 s{s_t2}, s{s_lw}, 1")
    a.I(f"s_lshl_b32 s{s_t2}, s{s_t2}, 12")
    a.I(f"s_add_u32 s{s_wbr}, s{s_wbr}, s{s_t2}")
    a.I(f"s_add_u32 s{s_wbc}, s{s_wbr}, {CB}")
    a.I(f"s_lshl_b32 s{s_wbk}, s{s_lw}, 11")
    a.I(f"s_lshl_b32 s{s_kv}, s4, 2")
    a.I(f"s_lshr_b32 s6, s5, 3")
    a.I(f"s_add_u32 s{s_kv}, s{s_kv}, s6")
    a.I(f"s_mul_i32 s{s_kv}, s{s_kv}, {KV_HSTRIDE}")
    a.I(f"s_add_u32 s{s_kv}, s{s_kv}, s{s_wbk}")
    a.I(f"s_add_u32 s{s_kv}, s{s_kv}, {WS_KV + 4096}")
    a.I(f"s_add_u32 s{s_wbk}, s{s_wbk}, {KB}")
    gK = lset_lin(a, va, sa, srdw, s_kv, 2, 8192, s_wbk)
    gR = lset_rm(a, va, sa, srdc, s_row, 4, 4096, s_wbr, tmp)
    rot = cfg.get("rot", 0) & 1
    s_sh4 = sa.get(); s_sh8 = sa.get()
    a.I(f"s_and_b32 s{s_sh4}, s5, 3")
    a.I(f"s_and_b32 s{s_sh8}, s5, 7")
    gK.set_pf_lin(a, sa, cfg, s_kv, s_sh8, 256)
    if rot: gR.s_base = sa.get()
    else: gR.set_pf_rm(a, sa, cfg, s_row, s_eb, 4, 4096); gR.pflim = 2048*4096
    a.I(f"s_mov_b32 s{srdc+2}, {2048*4096}")
    a.I(f"s_mov_b32 s{srdc+3}, 0x00020000")
    a.I(f"s_mov_b32 s{srdw+2}, {WS_OF}")
    a.I(f"s_mov_b32 s{srdw+3}, 0x00020000")
    a.I("s_cmp_eq_u32 s7, 1")
    a.I(f"s_cbranch_scc1 {name}_ldv")
    save = (va.n, sa.n)
    s_g = sa.get()
    a.I(f"s_lshl_b32 s{s_g}, s{s_eb}, 2")
    a.I(f"s_add_u32 s{s_g}, s{s_g}, s{s_lw}")
    a.I(f"s_lshl_b32 s{s_g}, s{s_g}, 17")
    if WS_AF: a.I(f"s_add_u32 s{s_g}, s{s_g}, {WS_AF}")
    gC = lset_lin(a, va, sa, srdw, s_g, 4, 4096, s_wbc)
    if rot: gC.s_base = sa.get()
    else: gC.set_pf_lin(a, sa, cfg, s_g, s_sh4, 1024)
    a.I("s_waitcnt lgkmcnt(0)")
    a.I(f"s_mov_b64 s[{srdc}:{srdc+1}], s[{P_CR}:{P_CR+1}]")
    a.I(f"s_mov_b64 s[{srdw}:{srdw+1}], s[{P_WS}:{P_WS+1}]")
    gm = cfg.get("gmask", 7)
    loader_main(a, "k2p", sa, [g for i, g in enumerate([gK, gR, gC]) if gm >> i & 1], T, N, T + 1, cfg, 1, warm_next(a, va, sa, cfg, 1, s_lw))
    hv = max(hv, va.hi); hs = max(hs, sa.hi)
    a.L(f"{name}_ldv")
    va.n, sa.n = save
    s_col = sa.get(); s_kr = sa.get()
    a.I(f"s_lshl_b32 s{s_col}, s{s_eb}, 8")
    a.I(f"s_lshl_b32 s{s_t}, s{s_t}, 7")
    a.I(f"s_add_u32 s{s_col}, s{s_col}, s{s_t}")
    a.I(f"s_lshr_b32 s{s_kr}, s{s_t2}, 7")
    gC = lset_tr(a, va, sa, srdx, s_kr, s_col, 2048, s_wbc, tmp)
    if rot: gC.s_base = sa.get()
    else:
        a.I(f"s_lshl_b32 s{s_t}, s{s_eb}, 8")
        gC.set_pf_tr(a, sa, cfg, s_t, s_lw, s_sh4, 2048); gC.pflim = 2048*2048
    a.I(f"s_mov_b32 s{srdx+2}, {2048*2048}")
    a.I(f"s_mov_b32 s{srdx+3}, 0x00020000")
    a.I("s_waitcnt lgkmcnt(0)")
    a.I(f"s_mov_b64 s[{srdc}:{srdc+1}], s[{P_CI}:{P_CI+1}]")
    a.I(f"s_mov_b64 s[{srdw}:{srdw+1}], s[{P_WS}:{P_WS+1}]")
    a.I(f"s_mov_b64 s[{srdx}:{srdx+1}], s[{P_AX}:{P_AX+1}]")
    loader_main(a, "k2v", sa, [g for i, g in enumerate([gK, gR, gC]) if gm >> i & 1], T, N, T + 1, cfg, 1, warm_next(a, va, sa, cfg, 1, s_lw))
    hv = max(hv, va.hi); hs = max(hs, sa.hi)
    a.L(f"{name}_comp")
    if cfg.get("prio_g3"): a.I(f"s_setprio {cfg['prio_g3']}")
    sa.n = save_s
    va = Alloc(1, 168)
    tmp = va.get(3); vst = va.get(2)
    srdo = sa.get(4, 4)
    s_wm = sa.get(); s_wn = sa.get(); s_b = sa.get(); s_o = sa.get()
    a.I(f"s_bfe_u32 s{s_wm}, s{S_WAVE}, 0x10001")
    a.I(f"s_and_b32 s{s_wn}, s{S_WAVE}, 1")
    a.I(f"s_mul_i32 s{s_b}, s{s_wm}, {N*SUB}")
    R = RdRM(a, va, s_b, lambda m: m * 4096, tmp)
    regs = ([[va.get(16, 4) for n in range(2)] for m in range(2)],
            [[va.get(4, 4) for m in range(2)] for _ in range(2)],
            [[va.get(4, 4) for n in range(2)] for _ in range(2)])
    a.I(f"s_lshl_b32 s{s_o}, s{s_tb}, 1")
    a.I(f"s_add_u32 s{s_o}, s{s_o}, s{s_wm}")
    a.I(f"s_lshl_b32 s{s_o}, s{s_o}, 6")
    a.I(f"s_lshl_b32 s{s_t}, s{s_eb}, 2")
    a.I(f"s_add_u32 s{s_o}, s{s_o}, s{s_t}")
    a.I(f"s_add_u32 s{s_o}, s{s_o}, s{s_wn}")
    a.I(f"s_lshl_b32 s{s_o}, s{s_o}, 11")
    a.I(f"s_mul_i32 s{s_t}, s7, {WS_VF - WS_PF}")
    a.I(f"s_add_u32 s{s_o}, s{s_o}, s{s_t}")
    a.I(f"s_add_u32 s{s_o}, s{s_o}, {WS_PF}")
    a.I(f"s_add_u32 s{s_t2}, s{s_o}, 4096")
    a.I(f"v_lshlrev_b32 {v(vst)}, 4, v0")
    a.I(f"v_add_u32 {v(vst+1)}, 0x10000, {v(vst)}")
    a.I(f"s_mov_b32 s{srdo+2}, {WS_END}")
    a.I(f"s_mov_b32 s{srdo+3}, 0x00020000")
    def mk_last(isv):
        def last(acc, mf, fr, fc):
            a.I(f"s_mov_b64 s[{srdo}:{srdo+1}], s[{P_WS}:{P_WS+1}]")
            pk = fr[0][0]; i = 0
            for m in range(2):
                for n in range(2):
                    d = pk + 8 * i; i += 1
                    for t in pack_ops(acc[m][n], d, neg=isv, swap=isv): a.I(t)
                    for g in range(2):
                        a.I(f"buffer_store_dwordx4 {v(d+4*g,4)}, {v(vst+m)}, {s(srdo,4)}, s{s_o if n == 0 else s_t2} offen offset:{g*1024}{stm}")
            stamp_out(a, 1)
            a.I("s_endpgm")
        return last
    pace = cfg.get("pace", 10)
    if cfg.get("tlb", 0) & 2:
        vdum = va.get()
        s_of = sa.get()
        a.I(f"s_and_b32 s{s_of}, s5, 7")
        a.I(f"s_lshl_b32 s{s_of}, s{s_of}, 19")
        a.I(f"s_add_u32 s{s_of}, s{s_of}, {WS_OF}")
        a.I("s_waitcnt lgkmcnt(0)")
        a.I(f"s_mov_b64 s[{srdo}:{srdo+1}], s[{P_WS}:{P_WS+1}]")
        a.I(f"buffer_load_dword {v(vdum)}, {v(vst)}, {s(srdo,4)}, s{s_o} offen")
        a.I(f"buffer_load_dword {v(vdum)}, {v(vst)}, {s(srdo,4)}, s{s_of} offen")
    a.I("s_cmp_eq_u32 s7, 1")
    a.I(f"s_cbranch_scc1 {name}_cv")
    save = (va.n, sa.n)
    a.I(f"s_lshl_b32 s{s_b}, s{s_wn}, 12")
    a.I(f"s_add_u32 s{s_b}, s{s_b}, {CB}")
    C = RdFM(a, va, s_b, lambda n: n * N * SUB, tmp)
    a.I("s_waitcnt lgkmcnt(0)")
    gemm_compute(a, "k2p", va, sa, R, C, 2, 2, True, T, N, zero_acc(a), mk_last(False), peel=False, pace=pace, regs=regs, off=cfg.get("g3off", 0))
    hv = max(hv, va.hi); hs = max(hs, sa.hi)
    a.L(f"{name}_cv")
    va.n, sa.n = save
    a.I(f"s_mov_b32 s{s_b}, {CB}")
    C = RdTR(a, va, sa, s_b, N * SUB, False, "parts", s_wn, tmp)
    a.I("s_waitcnt lgkmcnt(0)")
    gemm_compute(a, "k2v", va, sa, R, C, 2, 2, True, T, N, zero_acc(a), mk_last(True), peel=False, pace=max(0, pace - cfg.get("pacev", 1)), regs=regs, off=cfg.get("g3off", 0))
    hv = max(hv, va.hi); hs = max(hs, sa.hi)
    kernel_tail(a, name)
    return dict(name=name, grid=256, block=768, lds=5*N*SUB, vgpr=hv, sgpr=hs)

def gen_k3(a, cfg):
    name = "k3_kernel"
    N = 5; T = 16
    stm = cfg.get("st3", "")
    RB = 0; CB = 2 * N * SUB
    kernel_head(a, name, 256)
    a.I("s_lshr_b32 s7, s4, 2")
    a.I("s_and_b32 s6, s4, 3")
    a.I("s_lshl_b32 s6, s6, 2")
    a.I("s_and_b32 s4, s5, 3")
    a.I("s_add_u32 s6, s6, s4")
    a.I("s_lshr_b32 s5, s5, 2")
    a.I(f"s_cmp_lt_u32 s{S_WAVE}, 4")
    a.I(f"s_cbranch_scc1 {name}_comp")
    va = Alloc(1, 256); sa = Alloc(S_FREE0, 76)
    tmp = va.get(4)
    srdw = sa.get(4, 4); srdb = sa.get(4, 4)
    s_lw = sa.get(); s_wbr = sa.get(); s_wbc = sa.get(); s_t = sa.get(); s_t2 = sa.get(); s_g = sa.get()
    a.I(f"s_sub_u32 s{s_lw}, s{S_WAVE}, 4")
    a.I(f"s_lshr_b32 s{s_t}, s{s_lw}, 1")
    a.I(f"s_mul_i32 s{s_wbr}, s{s_t}, {N*SUB}")
    a.I(f"s_and_b32 s{s_t2}, s{s_lw}, 1")
    a.I(f"s_lshl_b32 s{s_t2}, s{s_t2}, 12")
    a.I(f"s_add_u32 s{s_wbr}, s{s_wbr}, s{s_t2}")
    a.I(f"s_add_u32 s{s_wbc}, s{s_wbr}, {CB}")
    a.I(f"s_lshl_b32 s{s_g}, s6, 2")
    a.I(f"s_add_u32 s{s_g}, s{s_g}, s{s_lw}")
    a.I(f"s_lshl_b32 s{s_g}, s{s_g}, 16")
    a.I(f"s_mul_i32 s4, s7, {WS_VF - WS_OF}")
    a.I(f"s_add_u32 s{s_g}, s{s_g}, s4")
    a.I(f"s_add_u32 s{s_g}, s{s_g}, {WS_OF}")
    gR = lset_lin(a, va, sa, srdw, s_g, 4, 4096, s_wbr)
    a.I(f"s_mov_b32 s{srdw+2}, {WS_END}")
    a.I(f"s_mov_b32 s{srdw+3}, 0x00020000")
    a.I(f"s_mov_b32 s{srdb+2}, {1024*2048}")
    a.I(f"s_mov_b32 s{srdb+3}, 0x00020000")
    a.I("s_cmp_eq_u32 s7, 1")
    a.I(f"s_cbranch_scc1 {name}_ldy")
    save = (va.n, sa.n)
    s_col = sa.get(); s_kr = sa.get()
    a.I(f"s_lshl_b32 s{s_col}, s5, 8")
    a.I(f"s_lshl_b32 s{s_t}, s{s_t}, 7")
    a.I(f"s_add_u32 s{s_col}, s{s_col}, s{s_t}")
    a.I(f"s_lshr_b32 s{s_kr}, s{s_t2}, 7")
    gC = lset_tr(a, va, sa, srdb, s_kr, s_col, 2048, s_wbc, tmp)
    a.I("s_waitcnt lgkmcnt(0)")
    a.I(f"s_mov_b64 s[{srdw}:{srdw+1}], s[{P_WS}:{P_WS+1}]")
    a.I(f"s_mov_b64 s[{srdb}:{srdb+1}], s[{P_WO}:{P_WO+1}]")
    loader_main(a, "k3o", sa, [gR, gC], T, N, T, cfg, 2)
    hv = va.hi; hs = sa.hi
    a.L(f"{name}_ldy")
    va.n, sa.n = save
    s_r2 = sa.get()
    a.I(f"s_lshl_b32 s{s_r2}, s5, 7")
    a.I(f"s_lshl_b32 s{s_t}, s{s_lw}, 5")
    a.I(f"s_add_u32 s{s_r2}, s{s_r2}, s{s_t}")
    gC = lset_rm(a, va, sa, srdb, s_r2, 4, 2048, s_wbc, tmp)
    a.I("s_waitcnt lgkmcnt(0)")
    a.I(f"s_mov_b64 s[{srdw}:{srdw+1}], s[{P_WS}:{P_WS+1}]")
    a.I(f"s_mov_b64 s[{srdb}:{srdb+1}], s[{P_WI}:{P_WI+1}]")
    loader_main(a, "k3y", sa, [gR, gC], T, N, T, cfg, 2)
    hv = max(hv, va.hi); hs = max(hs, sa.hi)
    a.L(f"{name}_comp")
    va = Alloc(1, 256); sa = Alloc(S_FREE0, 76)
    tmp = va.get(3); vst = va.get(2); vtw = va.get(); vtr = va.get()
    srdo = sa.get(4, 4); srdw = sa.get(4, 4)
    s_wm = sa.get(); s_wn = sa.get(); s_b = sa.get(); s_o = sa.get(); s_t = sa.get(); s_tb = sa.get()
    a.I(f"s_lshr_b32 s{s_wm}, s{S_WAVE}, 1")
    a.I(f"s_and_b32 s{s_wn}, s{S_WAVE}, 1")
    a.I(f"s_mul_i32 s{s_b}, s{s_wm}, {N*SUB}")
    R = RdFM(a, va, s_b, lambda m: m * 4096, tmp)
    regs = ([[va.get(16, 4) for n in range(2)] for m in range(2)],
            [[va.get(4, 4) for m in range(2)] for _ in range(2)],
            [[va.get(4, 4) for n in range(2)] for _ in range(2)])
    pk = va.get(32, 4)
    a.I(f"s_lshl_b32 s{s_tb}, s6, 1")
    a.I(f"s_add_u32 s{s_tb}, s{s_tb}, s{s_wm}")
    a.I(f"s_lshl_b32 s{s_o}, s{s_tb}, 18")
    a.I(f"s_lshl_b32 s{s_t}, s5, 8")
    a.I(f"s_add_u32 s{s_o}, s{s_o}, s{s_t}")
    a.I(f"s_lshl_b32 s{s_t}, s{s_wn}, 7")
    a.I(f"s_add_u32 s{s_o}, s{s_o}, s{s_t}")
    a.I(f"s_xor_b32 s{s_t}, s7, 1")
    a.I(f"s_lshl_b32 s{s_t}, s{s_t}, 11")
    a.I(f"s_add_u32 s{s_o}, s{s_o}, s{s_t}")
    a.I(f"s_mov_b32 s{srdo+2}, {2048*4096}")
    a.I(f"s_mov_b32 s{srdo+3}, 0x00020000")
    lt = cfg.get("ldst", 1)
    if lt:
        a.I(f"s_mul_i32 s{s_t}, s{S_WAVE}, {N*SUB}")
        a.I(f"s_add_u32 s{s_t}, s{s_t}, {2*SUB}")
        a.I(f"v_and_b32 {v(tmp)}, 31, v0")
        a.I(f"v_lshrrev_b32 {v(tmp+1)}, 5, v0")
        a.I(f"v_xor_b32 {v(tmp+1)}, {v(tmp+1)}, v0")
        a.I(f"v_and_b32 {v(tmp+1)}, 7, {v(tmp+1)}")
        a.I(f"v_lshlrev_b32 {v(tmp+1)}, 4, {v(tmp+1)}")
        a.I(f"v_lshl_add_u32 {v(tmp)}, {v(tmp)}, 7, {v(tmp+1)}")
        a.I(f"v_add_u32 {v(vtw)}, s{s_t}, {v(tmp)}")
        a.I(f"v_lshrrev_b32 {v(tmp)}, 3, v0")
        a.I(f"v_xor_b32 {v(tmp+1)}, {v(tmp)}, v0")
        a.I(f"v_and_b32 {v(tmp+1)}, 7, {v(tmp+1)}")
        a.I(f"v_lshlrev_b32 {v(vtr)}, 4, v0")
        a.I(f"v_add_u32 {v(vtr)}, s{s_t}, {v(vtr)}")
        a.I(f"v_lshlrev_b32 {v(vst)}, 12, {v(tmp)}")
        a.I(f"v_lshl_add_u32 {v(vst)}, {v(tmp+1)}, 4, {v(vst)}")
        vtw2 = [vtw] + [va.get() for _ in range(3)]
        for c in range(1, 4): a.I(f"v_xor_b32 {v(vtw2[c])}, {c*32}, {v(vtw)}")
    else:
        a.I(f"v_and_b32 {v(vst)}, 31, v0")
        a.I(f"v_lshlrev_b32 {v(vst)}, 12, {v(vst)}")
        a.I(f"v_lshrrev_b32 {v(tmp)}, 5, v0")
        a.I(f"v_lshl_add_u32 {v(vst)}, {v(tmp)}, 4, {v(vst)}")
        a.I(f"v_add_u32 {v(vst+1)}, {1<<17}, {v(vst)}")
    def last(acc, mf, fr, fc):
        a.I(f"s_mov_b64 s[{srdo}:{srdo+1}], s[{P_OUT}:{P_OUT+1}]")
        blocks = []; i = 0
        for m in range(2):
            for n in range(2):
                d = pk + 8 * i; i += 1
                ops = pack_ops(acc[m][n], d, swap=True)
                for g in range(2):
                    if lt: ops.append(f"ds_write_b128 {v(vtw2[2*n+g])}, {v(d+4*g,4)} offset:{m*4096}")
                    else: ops.append(f"buffer_store_dwordx4 {v(d+4*g,4)}, {v(vst+m)}, {s(srdo,4)}, s{s_o} offen offset:{n*64+g*32}{stm}")
                blocks.append(ops)
        tail_interleave(a, mf, blocks)
        if lt:
            t0 = acc[0][0]
            a.I("s_waitcnt lgkmcnt(0)")
            for j in range(8):
                a.I(f"ds_read_b128 {v(t0+4*j,4)}, {v(vtr)} offset:{j*1024}")
            for j in range(8):
                a.I(f"s_waitcnt lgkmcnt({7-j})")
                a.I(f"buffer_store_dwordx4 {v(t0+4*j,4)}, {v(vst)}, {s(srdo,4)}, s{s_o} offen{stm}")
                if j < 7: a.I(f"s_add_u32 s{s_o}, s{s_o}, {8*4096}")
        stamp_out(a, 2)
        a.I("s_endpgm")
    a.I(f"s_mul_i32 s{s_b}, s{s_wn}, {N*SUB}")
    a.I(f"s_add_u32 s{s_b}, s{s_b}, {CB}")
    if cfg.get("tlb", 0) & 4:
        vdum = va.get()
        a.I("s_waitcnt lgkmcnt(0)")
        a.I(f"s_mov_b64 s[{srdo}:{srdo+1}], s[{P_OUT}:{P_OUT+1}]")
        a.I(f"buffer_load_dword {v(vdum)}, {v(vst)}, {s(srdo,4)}, s{s_o} offen")
    a.I("s_cmp_eq_u32 s7, 1")
    a.I(f"s_cbranch_scc1 {name}_cy")
    save = (va.n, sa.n)
    C = RdTR(a, va, sa, s_b, 0, True, "halves", None, tmp)
    a.I("s_waitcnt lgkmcnt(0)")
    gemm_compute(a, "k3o", va, sa, R, C, 2, 2, True, T, N, zero_acc(a), last, regs=regs)
    hv = max(hv, va.hi); hs = max(hs, sa.hi)
    a.L(f"{name}_cy")
    va.n, sa.n = save
    s_p = sa.get(); vp = va.get(2)
    a.I(f"s_lshl_b32 s{s_p}, s{s_tb}, 6")
    a.I(f"s_lshl_b32 s{s_t}, s5, 2")
    a.I(f"s_add_u32 s{s_p}, s{s_p}, s{s_t}")
    a.I(f"s_lshl_b32 s{s_t}, s{s_wn}, 1")
    a.I(f"s_add_u32 s{s_p}, s{s_p}, s{s_t}")
    a.I(f"s_lshl_b32 s{s_p}, s{s_p}, 11")
    a.I(f"s_add_u32 s{s_p}, s{s_p}, {WS_PF}")
    a.I(f"v_lshlrev_b32 {v(vp)}, 4, v0")
    a.I(f"v_add_u32 {v(vp+1)}, 0x10000, {v(vp)}")
    a.I(f"s_mov_b32 s{srdw+2}, {WS_END}")
    a.I(f"s_mov_b32 s{srdw+3}, 0x00020000")
    a.I("s_waitcnt lgkmcnt(0)")
    a.I(f"s_mov_b64 s[{srdw}:{srdw+1}], s[{P_WS}:{P_WS+1}]")
    for m in range(2):
        for n in range(2):
            for g in range(2):
                a.I(f"buffer_load_dwordx4 {v(pk+16*m+8*n+4*g,4)}, {v(vp+m)}, {s(srdw,4)}, s{s_p} offen offset:{n*2048+g*1024}")
    C = RdRM(a, va, s_b, lambda n: n * 4096, tmp)
    def initp(acc):
        a.I("s_waitcnt vmcnt(0)")
        for m in range(2):
            for n in range(2):
                for i in range(8):
                    src = pk + 16*m + 8*n + i
                    a.I(f"v_lshlrev_b32 {v(acc[m][n]+2*i)}, 16, {v(src)}")
                    a.I(f"v_and_b32 {v(acc[m][n]+2*i+1)}, 0xffff0000, {v(src)}")
    gemm_compute(a, "k3y", va, sa, R, C, 2, 2, True, T, N, initp, last, regs=regs)
    hv = max(hv, va.hi); hs = max(hs, sa.hi)
    kernel_tail(a, name)
    return dict(name=name, grid=256, block=512, lds=4*N*SUB, vgpr=hv, sgpr=hs)

def emit(kernels, a):
    head = []
    for k in kernels:
        head.append(f"; @launch kernel={k['name']} grid=({k['grid']},1,1) block=({k['block']},1,1) lds={k['lds']}")
    head.append('.amdgcn_target "amdgcn-amd-amdhsa--gfx950"')
    head.append(".text")
    body = a.finalize()
    tail = ['.section .rodata,"a"']
    for k in kernels:
        vg = (k['vgpr'] + 7) // 8 * 8
        tail += [".p2align 6", f".amdhsa_kernel {k['name']}",
                 f"  .amdhsa_next_free_vgpr {vg}", f"  .amdhsa_next_free_sgpr {100 if STAMP else max(k['sgpr'], 32)}",
                 f"  .amdhsa_accum_offset {vg}", "  .amdhsa_group_segment_fixed_size 0", "  .amdhsa_kernarg_size 88",
                 "  .amdhsa_user_sgpr_count 2", "  .amdhsa_user_sgpr_kernarg_segment_ptr 1",
                 "  .amdhsa_system_sgpr_workgroup_id_x 1", ".end_amdhsa_kernel"]
    return "\n".join(head) + "\n" + body + "\n".join(tail) + "\n"

if __name__ == "__main__":
    a = Asm()
    cfg = {}
    for kv in sys.argv[2:]:
        k_, v_ = kv.split("=")
        if k_.startswith("st"): cfg[k_] = (" " + v_.replace("_", " ")) if v_ else ""
        else: cfg[k_] = int(v_) if v_.lstrip("-").isdigit() else v_
    ks = [gen_k1(a, cfg), gen_k2(a, cfg), gen_k3(a, cfg)]
    out = sys.argv[1] if len(sys.argv) > 1 else "concat_heads__spectral_fnet__mha_block__prompt.s"
    open(out, "w").write(emit(ks, a))
    print(ks)
```

```python
import re

TRANS = {"v_exp_f32","v_log_f32","v_rcp_f32","v_rsq_f32","v_sqrt_f32","v_sin_f32","v_cos_f32","v_exp_f16","v_rcp_iflag_f32"}
RMW = {"v_fmac_f32","v_dot2c_f32_bf16","v_pk_fmac_f16","v_fmac_f16"}
NODEST_S = ("s_cmp","s_waitcnt","s_barrier","s_branch","s_cbranch","s_nop","s_setprio","s_endpgm","s_sleep","s_bitcmp","s_sendmsg")

_reg_re = re.compile(r"^(-?)(?:abs\()?\|?([vas])(\d+)\)?\|?$")
_rng_re = re.compile(r"^(-?)([vas])\[(\d+):(\d+)\]$")

def regs_of(tok):
    tok = tok.strip()
    m = _reg_re.match(tok)
    if m: return [m.group(2)+m.group(3)]
    m = _rng_re.match(tok)
    if m: return [m.group(2)+str(i) for i in range(int(m.group(3)), int(m.group(4))+1)]
    if tok in ("vcc","exec"): return [tok]
    if tok in ("vcc_lo","vcc_hi"): return ["vcc"]
    if tok in ("exec_lo","exec_hi"): return ["exec"]
    if tok == "m0": return ["m0"]
    return []

class Ins:
    __slots__ = ("text","mn","reads","writes","cls","passes","dtuple","ctuple","ab","target","nopn","is_store_wide","lds_dma","dpp")
    def __init__(self, text):
        self.text = text
        body = text.split(";")[0].strip()
        parts = body.split(None, 1)
        mn = parts[0]
        for suf in ("_e32","_e64","_dpp","_sdwa"):
            if mn.endswith(suf): mn = mn[:-len(suf)]
        self.mn = mn
        rest = parts[1] if len(parts) > 1 else ""
        ops = [o.strip() for o in rest.split(",")] if rest else []
        mods = ""
        if ops:
            lp = ops[-1].split(None, 1)
            ops[-1] = lp[0]
            mods = lp[1] if len(lp) > 1 else ""
        self.reads = []; self.writes = []; self.passes = 0; self.dtuple=None; self.ctuple=None; self.ab=[]
        self.target=None; self.nopn=1; self.is_store_wide=False; self.lds_dma=False
        self.dpp = ("row_" in mods) or ("quad_perm" in mods) or ("wave_" in mods)
        R = lambda idxs: [r for i in idxs for r in regs_of(ops[i])]
        n = len(ops)
        if mn.startswith("v_mfma"):
            self.cls = "mfma"
            self.passes = 8 if ("32x32x16" in mn or "32x32x8" in mn) else 4
            assert "32x32x16" in mn or "16x16x32" in mn, mn
            self.writes = R([0]); self.ab = R([1,2]); c = R([3])
            self.reads = self.ab + c
            self.dtuple = tuple(self.writes); self.ctuple = tuple(c)
        elif mn.startswith("v_smfmac"):
            assert "16x16x64" in mn
            self.cls = "mfma"; self.passes = 4
            self.writes = R([0]); self.ab = R([1,2,3]); c = R([0])
            self.reads = self.ab + c
            self.dtuple = tuple(self.writes); self.ctuple = tuple(c)
        elif mn.startswith("v_cmp"):
            self.cls = "valu"; self.writes = R([0]); self.reads = R(range(1,n))
            if mn.startswith("v_cmpx"): self.writes.append("exec")
        elif mn.startswith("v_permlane") and "swap" in mn:
            self.cls = "valu"; self.writes = R([0,1]); self.reads = R([0,1])
        elif mn in ("v_add_co_u32","v_sub_co_u32","v_addc_co_u32","v_subb_co_u32"):
            self.cls = "valu"; self.writes = R([0,1]); self.reads = R(range(2,n))
        elif mn.startswith("v_"):
            self.cls = "trans" if mn in TRANS else "valu"
            if mn == "v_nop":
                pass
            else:
                self.writes = R([0]); self.reads = R(range(1,n))
                if mn in RMW: self.reads += self.writes
        elif mn.startswith("ds_read") or mn.startswith("ds_bpermute") or mn.startswith("ds_swizzle") or mn.startswith("ds_permute"):
            self.cls = "ds"; self.writes = R([0]); self.reads = R(range(1,n))
        elif mn.startswith("ds_"):
            self.cls = "ds"; self.reads = R(range(n))
            if "rtn" in mn: self.writes = R([0])
        elif mn.startswith("buffer_load") or mn.startswith("global_load"):
            self.cls = "vmem"
            if re.search(r"\blds\b", mods) or "load_lds" in mn:
                self.lds_dma = True; self.reads = R(range(n)) + ["m0"]
            else:
                self.writes = R([0]); self.reads = R(range(1,n))
        elif mn.startswith("buffer_store") or mn.startswith("global_store"):
            self.cls = "vmem"; self.reads = R(range(n))
            self.is_store_wide = mn.endswith("x4") or mn.endswith("x3")
            self.ab = R([0]) if mn.startswith("buffer") else R([1])
        elif mn.startswith("buffer_atomic") or mn.startswith("global_atomic"):
            self.cls = "vmem"; self.reads = R(range(n))
            if "sc0" in mods: self.writes = R([0])
        elif mn.startswith("buffer_") :
            self.cls = "vmem"
        elif mn.startswith("s_"):
            self.cls = "salu"
            if mn == "s_nop":
                self.nopn = int(ops[0], 0) + 1
            elif mn.startswith("s_branch") or mn.startswith("s_cbranch"):
                self.target = ops[0]
            elif mn.startswith(NODEST_S):
                self.reads = R(range(n))
            else:
                self.writes = R([0]); self.reads = R(range(1,n))
                if "saveexec" in mn: self.writes.append("exec")
        else:
            raise ValueError("unknown instr " + text)

class Asm:
    def __init__(self):
        self.items = []
    def I(self, text):
        for t in text.strip().split("\n"):
            t = t.strip()
            if t: self.items.append(("i", Ins(t)))
    def L(self, name): self.items.append(("l", name))
    def R(self, text): self.items.append(("r", text))
    def C(self, text): self.items.append(("r", "    ; " + text))

    @staticmethod
    def _need(ins, st):
        need = 0; why = None
        def chk(key, n):
            nonlocal need, why
            a = st.get(key)
            if a is not None and n - a > need:
                need = n - a; why = key
        c = ins.cls
        isv = c in ("valu","trans")
        for r in ins.reads:
            if r[0] in "va" and r not in ("vcc",):
                if c == "mfma":
                    chk(("vw", r), 2)
                    for p in (4, 8):
                        if r in ins.ab:
                            chk(("mw", r, p), 12 if p == 8 else 8)
                        if r in ins.ctuple:
                            d = st.get(("mwt", r, p))
                            if d is not None and not (d[1] == ins.ctuple and p == ins.passes):
                                chk(("mw", r, p), 10 if p == 8 else 6)
                else:
                    for p in (4, 8): chk(("mw", r, p), 12 if p == 8 else 8)
                    if isv:
                        if c == "valu": chk(("tw", r), 1)
                        if ins.mn.startswith("v_permlane") or ins.dpp: chk(("vw", r), 2)
                        if ins.mn in ("v_readfirstlane_b32","v_readlane_b32"): chk(("vw", r), 1)
            else:
                if isv or c == "mfma": chk(("sw", r), 2)
                if ins.mn in ("v_readlane_b32","v_writelane_b32"): chk(("sw", r), 4)
                if c == "vmem": chk(("sw", r), 5)
                if c == "salu": chk(("sw", r), 1)
                if r == "m0" and ins.lds_dma: chk(("m0w",), 1)
        for r in ins.writes:
            if r[0] in "va" and r != "vcc":
                if c != "mfma":
                    for p in (4, 8): chk(("mw", r, p), 12 if p == 8 else 8)
                    if isv:
                        for p in (4, 8): chk(("mc", r, p), 7 if p == 8 else 3)
                        chk(("sd", r), 2)
                    else:
                        chk(("sd", r), 1)
                else:
                    for p in (4, 8):
                        d = st.get(("mwt", r, p))
                        if d is not None and not (d[1] == ins.dtuple and p == ins.passes):
                            chk(("mw", r, p), 10 if p == 8 else 6)
                    chk(("sd", r), 2)
        if c == "mfma": chk(("execw",), 4)
        if ins.mn.startswith("v_permlane") or ins.mn in ("v_readfirstlane_b32","v_readlane_b32","v_writelane_b32"): chk(("execw",), 4)
        if ins.dpp: chk(("execw",), 5)
        return need, why

    @staticmethod
    def _age(st, n):
        out = {}
        for k, a in st.items():
            if k[0] == "mwt":
                if a[0] + n < 24: out[k] = (a[0] + n, a[1])
            elif a + n < 24: out[k] = a + n
        return out

    @staticmethod
    def _apply(ins, st):
        c = ins.cls
        st = Asm._age(st, ins.nopn)
        if c in ("valu","trans"):
            for r in ins.writes:
                if r[0] in "va" and r != "vcc":
                    st[("vw", r)] = 0
                    if c == "trans": st[("tw", r)] = 0
                    else: st.pop(("tw", r), None)
                elif r == "exec": st[("execw",)] = 0
                else: st[("sw", r)] = 0
        elif c == "mfma":
            for r in ins.writes:
                for p in (4,8):
                    st.pop(("mw", r, p), None); st.pop(("mwt", r, p), None)
                st[("mw", r, ins.passes)] = 0
                st[("mwt", r, ins.passes)] = (0, ins.dtuple)
            for r in ins.ctuple: st[("mc", r, ins.passes)] = 0
        elif c == "salu":
            if "m0" in ins.writes: st[("m0w",)] = 0
            for r in ins.writes: st.pop(("sw", r), None)
        elif c == "vmem" and ins.is_store_wide:
            for r in ins.ab: st[("sd", r)] = 0
        return st

    @staticmethod
    def _merge(a, b):
        if a is None: return dict(b)
        out = dict(a)
        for k, v in b.items():
            if k not in out: out[k] = v
            elif k[0] == "mwt":
                o = out[k]
                out[k] = (min(o[0], v[0]), o[1] if o[1] == v[1] else ("?",))
            else: out[k] = min(out[k], v)
        return out

    def finalize(self, verbose=True):
        saved = {}
        result = None
        for it in range(6):
            new_saved = {}
            out = []; st = {}; alive = True; nins = 0
            for kind, x in self.items:
                if kind == "l":
                    s = st if alive else None
                    for src in (saved.get(x), new_saved.get(x)):
                        if src is not None: s = Asm._merge(s, src)
                    st = s if s is not None else {}
                    alive = True
                    out.append(x + ":")
                elif kind == "r":
                    out.append(x)
                    if x.startswith(".p2align 8"): st = {}; alive = True
                else:
                    need, why = Asm._need(x, st)
                    while need > 0:
                        k = min(need, 16)
                        out.append(f"    s_nop {k-1}")
                        st = Asm._age(st, k); need -= k; nins += 1
                    out.append("    " + x.text)
                    st = Asm._apply(x, st)
                    if x.target is not None:
                        new_saved[x.target] = Asm._merge(new_saved.get(x.target), st)
                        if x.mn == "s_branch": alive = False
                    if x.mn == "s_endpgm": alive = False
            if result == out: break
            result = out; saved = new_saved
        if verbose: print(f"hazard pass: {nins} nops inserted, {it+1} iterations")
        return "\n".join(result) + "\n"
```

```python
import sys, os, struct
sys.path.insert(0, os.path.dirname(os.path.abspath(__file__)))
from asmlib import Asm

MB_ = 1 << 20
WSB = MB_ * int(([x.split("=")[1] for x in sys.argv if x.startswith("wsb=")] + ["0"])[0])
WS_AF = WSB
WS_QF = WSB + 4 * MB_
WS_KV = WSB + 8 * MB_
KV_HSTRIDE = 65 * 4096
WS_OF = WSB + 17 * MB_
WS_PF = WSB + 21 * MB_
WS_VF = WSB + 25 * MB_
WS_END = WSB + 29 * MB_
BIG = 0x80000000
QSCALE = 1.4426950408889634 / (32 ** 0.5)
SUB = 8192

def f32hex(x): return "0x%08x" % struct.unpack("<I", struct.pack("<f", x))[0]
def v(i, n=1): return f"v{i}" if n == 1 else f"v[{i}:{i+n-1}]"
def s(i, n=1): return f"s{i}" if n == 1 else f"s[{i}:{i+n-1}]"

class Alloc:
    def __init__(self, start, limit): self.n = start; self.limit = limit; self.hi = start
    def get(self, cnt=1, align=1):
        self.n = (self.n + align - 1) // align * align
        r = self.n; self.n += cnt
        assert self.n <= self.limit, ("register overflow", self.n, self.limit)
        self.hi = max(self.hi, self.n)
        return r

P_AX, P_CR, P_CI, P_WR, P_WI, P_BX, P_WQKV, P_WO = [8 + 2 * i for i in range(8)]
P_OUT = 24; P_WS = 26
S_WAVE = 3
S_FREE0 = 28
MF = "v_mfma_f32_32x32x16_bf16"
FAKE16 = int(([x.split("=")[1] for x in sys.argv if x.startswith("fake16=")] + ["0"])[0])

STAMP = os.environ.get("STAMP") == "1"
WS_STAMP = 40 * MB_
S_ST = 84
def stamp(a, i):
    if STAMP: a.I(f"s_memtime s[{S_ST+2*i}:{S_ST+2*i+1}]")
def stamp_rt(a, i):
    if STAMP: a.I(f"s_memrealtime s[{S_ST+2*i}:{S_ST+2*i+1}]")
def stamp_out(a, kidx):
    if not STAMP: return
    a.I("s_waitcnt vmcnt(0) lgkmcnt(0)")
    stamp(a, 6); stamp_rt(a, 7)
    a.I("s_waitcnt lgkmcnt(0)")
    a.I(f"s_mov_b32 s76, s{P_WS}")
    a.I(f"s_mov_b32 s77, s{P_WS+1}")
    a.I(f"s_mov_b32 s78, {WS_STAMP + 8*MB_}")
    a.I(f"s_mov_b32 s79, 0x00020000")
    a.I(f"s_lshl_b32 s80, s2, 4")
    a.I(f"s_add_u32 s80, s80, s{S_WAVE}")
    a.I(f"s_lshl_b32 s80, s80, 5")
    a.I(f"s_add_u32 s80, s80, {WS_STAMP + kidx*MB_}")
    for i in range(8): a.I(f"v_mov_b32 v{8+i}, s{S_ST+2*i}")
    a.I("v_mov_b32 v1, 0")
    a.I("buffer_store_dwordx4 v[8:11], v1, s[76:79], s80 offen")
    a.I("buffer_store_dwordx4 v[12:15], v1, s[76:79], s80 offen offset:16")

def kernel_head(a, name, grid):
    a.R(".p2align 8")
    a.R(f".globl {name}")
    a.R(f".type {name},@function")
    a.L(name)
    a.I(f"s_cmp_ge_u32 s2, {grid}")
    a.I(f"s_cbranch_scc1 {name}_end")
    a.I("s_load_dwordx16 s[8:23], s[0:1], 0")
    a.I("s_load_dwordx2 s[24:25], s[0:1], 64")
    a.I("s_load_dwordx2 s[26:27], s[0:1], 80")
    a.I("v_lshrrev_b32 v1, 6, v0")
    a.I("v_and_b32 v0, 63, v0")
    a.I(f"v_readfirstlane_b32 s{S_WAVE}, v1")
    if STAMP:
        for i in (2, 3, 4, 5): a.I(f"s_mov_b64 s[{S_ST+2*i}:{S_ST+2*i+1}], 0")
    stamp(a, 0); stamp_rt(a, 1)
    a.I("s_and_b32 s4, s2, 7")
    a.I("s_lshr_b32 s5, s2, 3")

def kernel_tail(a, name):
    a.L(f"{name}_end")
    a.I("s_endpgm")

def make_srd(a, sr, ptr, nbytes):
    a.I(f"s_mov_b32 s{sr}, s{ptr}")
    a.I(f"s_mov_b32 s{sr+1}, s{ptr+1}")
    a.I(f"s_mov_b32 s{sr+2}, {nbytes}")
    a.I(f"s_mov_b32 s{sr+3}, 0x00020000")

def interleave(main, fill, lead=0, span=None):
    out = list(fill[:lead]); rest = fill[lead:]
    n = span or len(main)
    for i, m in enumerate(main):
        out.append(m)
        if i < n:
            lo = len(rest) * i // n; hi = len(rest) * (i + 1) // n
            out += rest[lo:hi]
    return out

class LGroup:
    def __init__(self, srd, voffs, s_wb, s_k, kstep, one=False):
        self.srd = srd; self.voffs = voffs; self.s_wb = s_wb; self.s_k = s_k; self.kstep = kstep
        self.per = len(voffs)
        self.s_base = None
        self.pf = None
        self.pfalt = None
        self.pflim = None
    def issue(self, s_boff, mod="", s_si=None, s_dummy=None):
        out = []
        if self.s_base is not None:
            out.append(f"s_mul_i32 s{self.s_k}, s{s_si}, {self.kstep}")
            out.append(f"s_add_u32 s{self.s_k}, s{self.s_k}, s{self.s_base}")
        for p in range(self.per):
            if p % 4 == 0:
                out.append(f"s_add_u32 m0, s{self.s_wb}, s{s_boff}" if p == 0 else "s_add_u32 m0, m0, 4096")
            out.append(f"buffer_load_dwordx4 {v(self.voffs[p])}, {s(self.srd,4)}, s{self.s_k} offen offset:{(p%4)*1024} lds{mod}")
        if self.s_base is None:
            out.append(f"s_add_u32 s{self.s_k}, s{self.s_k}, {self.kstep}")
        return out
    def prefetch(self, s_dummy):
        out = []
        if self.pf is not None:
            s_pf, imms, wide = self.pf
            for im in imms:
                if wide: out.append(f"s_buffer_load_dwordx2 {s(s_dummy,2)}, {s(self.srd,4)}, s{s_pf} offset:{im}")
                else: out.append(f"s_buffer_load_dword s{s_dummy}, {s(self.srd,4)}, s{s_pf} offset:{im}")
            if self.pfalt is None:
                out.append(f"s_add_u32 s{s_pf}, s{s_pf}, {self.kstep}")
            else:
                out.append(f"s_add_u32 s{s_pf}, s{s_pf}, s{self.pfalt}")
                out.append(f"s_sub_u32 s{self.pfalt}, {2*self.kstep}, s{self.pfalt}")
            if self.pflim is not None:
                out.append(f"s_min_u32 s{s_pf}, s{s_pf}, {self.pflim - max(imms) - 8}")
        return out
    def set_pf_rm(self, a, sa, cfg, s_row, s_share, nrow, pitch):
        d = cfg.get("spf", 0); mode = cfg.get("spfm", 1)
        if not d: return
        s_pf = sa.get()
        a.I(f"s_mul_i32 s{s_pf}, s{s_share}, {nrow}")
        a.I(f"s_add_u32 s{s_pf}, s{s_pf}, s{s_row}")
        a.I(f"s_mul_i32 s{s_pf}, s{s_pf}, {pitch}")
        a.I(f"s_add_u32 s{s_pf}, s{s_pf}, {d*128}")
        if mode == 1: self.pf = (s_pf, [j*pitch for j in range(nrow)], False)
        elif mode == 3: self.pf = (s_pf, [j*pitch + 60 for j in range(nrow)], True)
        else:
            assert d % 2 == 0
            self.pf = (s_pf, [j*pitch + 124 for j in range(nrow//2)], True)
            self.pfalt = sa.get()
            a.I(f"s_mov_b32 s{self.pfalt}, {nrow//2*pitch}")
    def set_pf_lin(self, a, sa, cfg, s_gbase, s_share, nbytes):
        d = cfg.get("spf", 0); mode = cfg.get("spfm", 1)
        if not d: return
        s_pf = sa.get()
        a.I(f"s_mul_i32 s{s_pf}, s{s_share}, {nbytes}")
        a.I(f"s_add_u32 s{s_pf}, s{s_pf}, s{s_gbase}")
        a.I(f"s_add_u32 s{s_pf}, s{s_pf}, {d*self.kstep}")
        n = nbytes // 128
        if mode == 1: self.pf = (s_pf, [j*128 for j in range(n)], False)
        elif mode == 3: self.pf = (s_pf, [j*128 + 60 for j in range(n)], True)
        else: self.pf = (s_pf, [j*256 + 124 for j in range(n//2)], True)
    def set_pf_tr(self, a, sa, cfg, s_col0, s_lw, s_share, pitch):
        d = cfg.get("spf", 0); mode = cfg.get("spfm", 1)
        if not d: return
        s_pf = sa.get()
        a.I(f"s_lshl_b32 s{s_pf}, s{s_share}, 2")
        a.I(f"s_add_u32 s{s_pf}, s{s_pf}, s{s_lw}")
        a.I(f"s_mul_i32 s{s_pf}, s{s_pf}, {4*pitch}")
        a.I(f"s_add_u32 s{s_pf}, s{s_pf}, s{s_col0}")
        a.I(f"s_add_u32 s{s_pf}, s{s_pf}, {d*self.kstep}")
        if mode == 1: self.pf = (s_pf, [j*pitch + h*128 for j in range(4) for h in range(2)], False)
        elif mode == 3: self.pf = (s_pf, [j*pitch + h*128 + 60 for j in range(4) for h in range(2)], True)
        else: self.pf = (s_pf, [j*pitch + 124 for j in range(4)], True)

def lset_rm(a, va, sa, srd, s_row, per, pitch, s_wb, tmp):
    t0, t1, t2 = tmp, tmp + 1, tmp + 2
    sk = sa.get()
    a.I(f"v_lshrrev_b32 {v(t0)}, 3, v0")
    a.I(f"v_add_u32 {v(t0)}, s{s_row}, {v(t0)}")
    a.I(f"v_lshlrev_b32 {v(t0)}, {pitch.bit_length()-1}, {v(t0)}")
    a.I(f"v_lshrrev_b32 {v(t1)}, 4, v0")
    a.I(f"v_xor_b32 {v(t1)}, {v(t1)}, v0")
    a.I(f"v_and_b32 {v(t1)}, 7, {v(t1)}")
    a.I(f"v_lshl_add_u32 {v(t1)}, {v(t1)}, 4, {v(t0)}")
    voffs = [va.get() for p in range(per)]
    for p in range(min(per, 4)):
        c = ((p >> 1) & 1) * 2 + (p & 1) * 4
        a.I(f"v_xor_b32 {v(t2)}, {c*16}, {v(t1)}")
        for q in range(p, per, 4):
            a.I(f"v_add_u32 {v(voffs[q])}, {q*8*pitch - (q%4)*1024}, {v(t2)}")
    a.I(f"s_mov_b32 s{sk}, 0")
    return LGroup(srd, voffs, s_wb, sk, 128)

def lset_lin(a, va, sa, srd, s_gbase, per, kstep, s_wb):
    assert per <= 4
    r = va.get(); sk = sa.get()
    a.I(f"v_lshlrev_b32 {v(r)}, 4, v0")
    a.I(f"s_mov_b32 s{sk}, s{s_gbase}")
    return LGroup(srd, [r] * per, s_wb, sk, kstep)

def lset_tr(a, va, sa, srd, s_krow, s_colb, pitch, s_wb, tmp):
    t0, t1 = tmp, tmp + 1
    st = sa.get(); sk = sa.get()
    a.I(f"v_lshrrev_b32 {v(t0)}, 3, v0")
    a.I(f"v_add_u32 {v(t0)}, s{s_krow}, {v(t0)}")
    a.I(f"v_mul_u32_u24 {v(t0)}, {pitch}, {v(t0)}")
    a.I(f"v_lshrrev_b32 {v(t1)}, 2, v0")
    a.I(f"v_and_b32 {v(t1)}, 4, {v(t1)}")
    a.I(f"v_xor_b32 {v(t1)}, {v(t1)}, v0")
    a.I(f"v_and_b32 {v(t1)}, 7, {v(t1)}")
    a.I(f"v_lshl_add_u32 {v(t0)}, {v(t1)}, 4, {v(t0)}")
    a.I(f"v_xor_b32 {v(t1)}, 32, {v(t0)}")
    voffs = []
    for p in range(4):
        r = va.get()
        a.I(f"v_add_u32 {v(r)}, {p*8*pitch - p*1024}, {v(t0 if p % 2 == 0 else t1)}")
        voffs.append(r)
    a.I(f"s_mov_b32 s{sk}, s{s_colb}")
    return LGroup(srd, voffs, s_wb, sk, 64 * pitch)

def warm_next(a, va, sa, cfg, kidx, s_lw):
    if kidx == 0 and cfg.get("w2", 0):
        n = cfg["w2"]
        def f():
            srd = 4; so = sa.get(); st = sa.get(); vo = va.get(); vd = va.get(4, 4)
            a.I("s_bitcmp1_b32 s2, 0")
            a.I(f"s_cselect_b32 s{srd}, s{P_CI}, s{P_CR}")
            a.I(f"s_cselect_b32 s{srd+1}, s{P_CI+1}, s{P_CR+1}")
            a.I(f"s_mov_b32 s{srd+2}, {2048*4096}")
            a.I(f"s_mov_b32 s{srd+3}, 0x00020000")
            a.I(f"s_bfe_u32 s{so}, s2, 0x20001")
            a.I(f"s_lshl_b32 s{so}, s{so}, 2")
            a.I(f"s_bfe_u32 s{st}, s2, 0x20003")
            a.I(f"s_add_u32 s{so}, s{so}, s{st}")
            a.I(f"s_lshl_b32 s{so}, s{so}, 2")
            a.I(f"s_add_u32 s{so}, s{so}, s{s_lw}")
            a.I(f"s_lshl_b32 s{so}, s{so}, 17")
            a.I(f"s_lshr_b32 s{st}, s2, 5")
            a.I(f"s_lshl_b32 s{st}, s{st}, 7")
            a.I(f"s_add_u32 s{so}, s{so}, s{st}")
            a.I(f"v_lshrrev_b32 {v(vo)}, 3, v0")
            a.I(f"v_lshlrev_b32 {v(vo)}, 12, {v(vo)}")
            a.I(f"v_and_b32 {v(vd)}, 7, v0")
            a.I(f"v_lshl_add_u32 {v(vo)}, {v(vd)}, 4, {v(vo)}")
            for j in range(n):
                for p in range(4):
                    a.I(f"s_add_u32 s{st}, s{so}, {p*8*4096}")
                    a.I(f"buffer_load_dwordx4 {v(vd,4)}, {v(vo)}, {s(srd,4)}, s{st} offen offset:{j*1024}")
        return f, 4 * n
    if kidx == 1 and cfg.get("w3", 0):
        def f():
            srd = 4; so = sa.get(); st = sa.get(); vo = va.get(); vd = va.get(4, 4)
            a.I("s_bitcmp1_b32 s2, 2")
            a.I(f"s_cselect_b32 s{srd}, s{P_WI}, s{P_WO}")
            a.I(f"s_cselect_b32 s{srd+1}, s{P_WI+1}, s{P_WO+1}")
            a.I(f"s_mov_b32 s{srd+2}, {1024*2048}")
            a.I(f"s_mov_b32 s{srd+3}, 0x00020000")
            a.I(f"s_and_b32 s{so}, s2, 3")
            a.I(f"s_lshl_b32 s{so}, s{so}, 5")
            a.I(f"s_lshr_b32 s{st}, s2, 3")
            a.I(f"s_add_u32 s{so}, s{so}, s{st}")
            a.I(f"s_lshl_b32 s{so}, s{so}, 2")
            a.I(f"s_add_u32 s{so}, s{so}, s{s_lw}")
            a.I(f"s_lshl_b32 s{so}, s{so}, 12")
            a.I(f"v_lshlrev_b32 {v(vo)}, 4, v0")
            for p in range(4):
                a.I(f"buffer_load_dwordx4 {v(vd,4)}, {v(vo)}, {s(srd,4)}, s{so} offen offset:{p*1024}")
            t3 = cfg.get("t3", 0)
            if t3:
                a.I(f"s_and_b32 s{so}, s2, 3")
                a.I(f"s_lshl_b32 s{so}, s{so}, 2")
                a.I(f"s_bfe_u32 s{st}, s2, 0x20003")
                a.I(f"s_add_u32 s{so}, s{so}, s{st}")
                a.I(f"s_lshl_b32 s{so}, s{so}, 2")
                a.I(f"s_add_u32 s{so}, s{so}, s{s_lw}")
            if t3 & 1:
                a.I(f"s_mov_b64 s[{srd}:{srd+1}], s[{P_WS}:{P_WS+1}]")
                a.I(f"s_mov_b32 s{srd+2}, {WS_END}")
                a.I(f"s_lshl_b32 s{st}, s{so}, 16")
                a.I(f"s_add_u32 s{st}, s{st}, {WS_PF}")
                a.I(f"v_and_b32 {v(vo)}, 1, v0")
                a.I(f"v_lshlrev_b32 {v(vo)}, 22, {v(vo)}")
                a.I(f"buffer_load_dword {v(vd)}, {v(vo)}, {s(srd,4)}, s{st} offen")
            if t3 & 2:
                a.I(f"s_mov_b64 s[{srd}:{srd+1}], s[{P_OUT}:{P_OUT+1}]")
                a.I(f"s_mov_b32 s{srd+2}, {2048*4096}")
                a.I(f"s_lshl_b32 s{st}, s{so}, 17")
                a.I(f"v_and_b32 {v(vo)}, 1, v0")
                a.I(f"v_lshlrev_b32 {v(vo)}, 16, {v(vo)}")
                a.I(f"buffer_load_dword {v(vd)}, {v(vo)}, {s(srd,4)}, s{st} offen")
        return f, 4 + bin(cfg.get("t3", 0)).count("1")
    return None, 0

def loader_main(a, pfx, sa, groups, T, N, nbar, cfg, kidx, tail=(None, 0)):
    nd = sum(g.per for g in groups)
    if cfg.get("k0", 0) >> kidx & 1:
        for g in groups: g.kstep = 0
    s_boff = sa.get(); s_cnt = sa.get()
    a.I(f"s_mov_b32 s{s_boff}, 0")
    if cfg.get("rot", 0) >> {0: 1, 1: 8, 2: 2}[kidx] & 1:
        for g in groups:
            g.s_base = sa.get()
    rot = any(g.s_base is not None for g in groups)
    s_dummy = sa.get(2, 2)
    if rot:
        s_t = sa.get(); s_si = sa.get(); s_r = sa.get()
        a.I(f"s_mov_b32 s{s_t}, 0")
        a.I(f"s_lshr_b32 s{s_r}, s2, 3")
        a.I(f"s_lshr_b32 s{s_si}, s2, 5")
        a.I(f"s_add_u32 s{s_r}, s{s_r}, s{s_si}")
        for g in groups:
            if g.s_base is not None: a.I(f"s_mov_b32 s{g.s_base}, s{g.s_k}")
    else: s_si = None
    npf0 = cfg.get("spf", 0)
    rot0 = cfg.get("rot0", 0) and rot
    cnt = [0]
    def issue(wrap):
        t_ = cnt[0]; cnt[0] += 1
        if rot0 and t_ == 0:
            a.I(f"s_mov_b32 s{s_si}, 0")
        elif rot0 and t_ < 4:
            if t_ == 1:
                a.I(f"s_and_b32 s{s_si}, s{s_r}, 3")
                a.I(f"s_mov_b32 s{s_t}, 4")
            a.I(f"s_cmp_eq_u32 s{s_si}, 3")
            a.I(f"s_cselect_b32 s{s_si}, 0, s{s_si}")
            a.I(f"s_add_u32 s{s_si}, s{s_si}, 1")
        elif rot:
            a.I(f"s_add_u32 s{s_si}, s{s_t}, s{s_r}")
            a.I(f"s_and_b32 s{s_si}, s{s_si}, 3")
            a.I(f"s_andn2_b32 s{s_dummy}, s{s_t}, 3")
            a.I(f"s_or_b32 s{s_si}, s{s_si}, s{s_dummy}")
            a.I(f"s_add_u32 s{s_t}, s{s_t}, 1")
        for g in groups:
            for t in g.issue(s_boff, s_si=s_si): a.I(t)
        for g in groups:
            for t in g.prefetch(s_dummy2): a.I(t)
        a.I(f"s_add_u32 s{s_boff}, s{s_boff}, {SUB}")
        if wrap:
            a.I(f"s_cmp_eq_u32 s{s_boff}, {N*SUB}")
            a.I(f"s_cselect_b32 s{s_boff}, 0, s{s_boff}")
    s_dummy2 = sa.get(2, 2)
    stamp(a, 4)
    issued = 0
    first = cfg.get("first", 2)
    for _ in range(first): issue(True); issued += 1
    for _ in range(cfg.get("spf0", 0)):
        for g in groups:
            for t in g.prefetch(s_dummy2): a.I(t)
    stamp(a, 5)
    k = 0
    while True:
        a.I(f"s_waitcnt vmcnt({(issued - 1 - k) * nd})")
        a.I("s_barrier")
        if k == 0: stamp(a, 2)
        allowed = min(k - 1 + N, T - 1)
        n = min(cfg.get("ramp", 2), allowed + 1 - issued)
        for _ in range(n): issue(True); issued += 1
        k += 1
        if issued == k - 1 + N and issued >= 4: break
    nloop = T - N - k + 1
    if nloop > 0:
        a.I(f"s_mov_b32 s{s_cnt}, {nloop}")
        a.L(f"{pfx}_lloop")
        a.I(f"s_waitcnt vmcnt({(N-2)*nd})")
        a.I("s_barrier")
        issue(True)
        a.I(f"s_sub_u32 s{s_cnt}, s{s_cnt}, 1")
        a.I(f"s_cmp_lg_u32 s{s_cnt}, 0")
        a.I(f"s_cbranch_scc1 {pfx}_lloop")
        k += nloop; issued += nloop
    assert issued == T
    if tail[0]: tail[0]()
    while k < nbar:
        if k < T: a.I(f"s_waitcnt vmcnt({(T - 1 - k) * nd + tail[1]})")
        a.I("s_barrier")
        k += 1
    stamp(a, 3)
    stamp_out(a, kidx)
    a.I("s_endpgm")

M16 = "v_mfma_f32_16x16x32_bf16"
class RdRM:
    def __init__(self, a, va, s_base, blkoff, tmp, rho=False):
        t0, t1, t2 = tmp, tmp + 1, tmp + 2
        self.blkoff = blkoff
        self.rb = [[va.get() for u in range(2)] for t in range(2)]
        if rho:
            a.I(f"v_bfe_u32 {v(t0)}, v0, 2, 2")
            a.I(f"v_lshlrev_b32 {v(t0)}, 3, {v(t0)}")
            a.I(f"v_and_or_b32 {v(t0)}, v0, 3, {v(t0)}")
            a.I(f"v_bfe_u32 {v(t1)}, v0, 1, 1")
            a.I(f"v_bfe_u32 {v(t2)}, v0, 3, 1")
            a.I(f"v_lshl_or_b32 {v(t1)}, {v(t2)}, 1, {v(t1)}")
            a.I(f"v_and_or_b32 {v(t1)}, v0, 4, {v(t1)}")
        else:
            a.I(f"v_and_b32 {v(t0)}, 15, v0")
            a.I(f"v_bfe_u32 {v(t1)}, v0, 1, 3")
        a.I(f"v_lshlrev_b32 {v(t0)}, 7, {v(t0)}")
        a.I(f"v_add_u32 {v(t0)}, s{s_base}, {v(t0)}")
        a.I(f"v_lshrrev_b32 {v(t2)}, 4, v0")
        a.I(f"v_xor_b32 {v(t1)}, {v(t1)}, {v(t2)}")
        a.I(f"v_lshl_add_u32 {v(t0)}, {v(t1)}, 4, {v(t0)}")
        self.toff = 512 if rho else 2048
        for t in range(2):
            for u in range(2):
                a.I(f"v_xor_b32 {v(self.rb[t][u])}, {64*u + 32*t}, {v(t0)}")
    def read(self, blk, t, u, buf, dst):
        off = self.blkoff(blk) + buf * SUB + t * self.toff
        assert off < 65536
        return [f"ds_read_b128 {v(dst,4)}, {v(self.rb[t][u])} offset:{off}"]

class RdFM:
    def __init__(self, a, va, s_base, blkoff, tmp, kind="lin"):
        self.blkoff = blkoff; self.kind = kind
        self.rb = va.get()
        if kind == "lin":
            a.I(f"v_lshlrev_b32 {v(tmp)}, 4, v0")
        else:
            a.I(f"v_lshrrev_b32 {v(tmp)}, 4, v0")
            a.I(f"v_lshlrev_b32 {v(tmp)}, 5, {v(tmp)}")
            a.I(f"v_and_or_b32 {v(tmp)}, v0, 15, {v(tmp)}")
            a.I(f"v_lshlrev_b32 {v(tmp)}, 4, {v(tmp)}")
        a.I(f"v_add_u32 {v(self.rb)}, s{s_base}, {v(tmp)}")
    def read(self, blk, t, u, buf, dst):
        off = self.blkoff(blk) + buf * SUB + (t * 2048 + u * 1024 if self.kind == "lin" else t * 256 + u * 2048)
        assert off < 65536
        return [f"ds_read_b128 {v(dst,4)}, {v(self.rb)} offset:{off}"]

class RdTR:
    def __init__(self, a, va, sa, s_base, partoff, mode, s_half, tmp):
        t0, t1 = tmp, tmp + 1
        self.partoff = partoff; self.mode = mode
        a.I(f"v_bfe_u32 {v(t0)}, v0, 1, 1")
        a.I(f"v_bfe_u32 {v(t1)}, v0, 4, 1")
        a.I(f"v_lshl_or_b32 {v(t0)}, {v(t1)}, 1, {v(t0)}")
        a.I(f"v_bfe_u32 {v(t1)}, v0, 3, 1")
        a.I(f"v_lshl_or_b32 {v(t0)}, {v(t1)}, 2, {v(t0)}")
        if mode == "parts":
            st = sa.get()
            a.I(f"s_lshl_b32 s{st}, s{s_half}, 2")
            a.I(f"v_xor_b32 {v(t0)}, s{st}, {v(t0)}")
        a.I(f"v_lshlrev_b32 {v(t0)}, 4, {v(t0)}")
        a.I(f"v_bfe_u32 {v(t1)}, v0, 2, 2")
        a.I(f"v_lshl_add_u32 {v(t0)}, {v(t1)}, 7, {v(t0)}")
        a.I(f"v_and_b32 {v(t1)}, 1, v0")
        a.I(f"v_lshl_add_u32 {v(t0)}, {v(t1)}, 3, {v(t0)}")
        a.I(f"v_lshrrev_b32 {v(t1)}, 4, v0")
        a.I(f"v_lshl_add_u32 {v(t0)}, {v(t1)}, 10, {v(t0)}")
        n = 2 if mode == "parts" else 4
        self.rb = [va.get() for _ in range(n)]
        a.I(f"v_add_u32 {v(self.rb[0])}, s{s_base}, {v(t0)}")
        for c in range(1, n): a.I(f"v_xor_b32 {v(self.rb[c])}, {32*c}, {v(self.rb[0])}")
    def read(self, blk, t, u, buf, dst):
        out = []
        for hh in range(2):
            off = u * 4096 + hh * 512 + buf * SUB
            if self.mode == "parts": off += self.partoff * blk; rb = self.rb[t]
            else: rb = self.rb[2 * blk + t]
            assert off < 65536
            out.append(f"ds_read_b64_tr_b16 {v(dst+2*hh,2)}, {v(rb)} offset:{off}")
        return out

def gemm_regs(va, MB, NB):
    return ([[va.get(16, 4) for n in range(NB)] for m in range(MB)],
            [[[va.get(4, 4) for t in range(2)] for m in range(MB)] for _ in range(2)],
            [[[va.get(4, 4) for t in range(2)] for n in range(NB)] for _ in range(2)])

def gemm_compute(a, pfx, sa, R, C, MB, NB, swap, T, N, init_acc, regs, cfg, loop_top=None, off=0, pace=0):
    acc, fr, fc = regs
    s_cnt = sa.get()
    pre_bar = cfg.get("prebar", 2)
    def reads(u, buf):
        out = []
        rl = [R.read(m, t, u, buf, fr[u][m][t]) for m in range(MB) for t in range(2)]
        cl = [C.read(n, t, u, buf, fc[u][n][t]) for n in range(NB) for t in range(2)]
        order = [rl[0], cl[0], cl[1], rl[1], cl[2], cl[3]] + rl[2:]
        for x in order: out += x
        return out
    def blk_mf(m, n, u):
        out = []
        for i in range(4):
            tr, tc = (i >> 1, (i ^ (i >> 1)) & 1)
            if swap: A_, B_, o = fc[u][n][tc], fr[u][m][tr], 8 * tr + 4 * tc
            else: A_, B_, o = fr[u][m][tr], fc[u][n][tc], 8 * tc + 4 * tr
            d = acc[m][n] + o
            out.append(f"{M16} {v(d,4)}, {v(A_,4)}, {v(B_,4)}, {v(d,4)}")
        return out
    blist = [(m, n) for m in range(MB) for n in range(NB)]
    def mfmas(u):
        out = []
        for (m, n) in blist: out += blk_mf(m, n, u)
        return out
    def emit_seq(mf, fill, span=None):
        seq = interleave(mf, fill, span=span)
        for i, t in enumerate(seq):
            if off & 1 and t.startswith("v_mfma"): continue
            if off & 2 and t.startswith("ds_read"): continue
            if pace and t.startswith("v_mfma"): a.I(f"s_nop {pace-1}")
            a.I(t)
    init_acc(acc)
    a.I("s_barrier")
    stamp(a, 2)
    for t in reads(0, 0): a.I(t)
    nmf = 4 * MB * NB
    rspan = cfg.get("rspan", 70)
    def stage(buf):
        a.I("s_waitcnt lgkmcnt(0)")
        emit_seq(mfmas(0), reads(1, buf), span=nmf * rspan // 100)
        a.I("s_waitcnt lgkmcnt(0)")
        mf = mfmas(1)
        emit_seq(mf[:pre_bar], [])
        a.I("s_barrier")
        emit_seq(mf[pre_bar:], reads(0, (buf + 1) % N), span=(nmf - pre_bar) * rspan // 100)
    nfull = T - 1
    niter = nfull // N
    a.I(f"s_mov_b32 s{s_cnt}, {niter}")
    a.L(f"{pfx}_loop")
    if loop_top: loop_top(s_cnt)
    for b in range(N): stage(b)
    a.I(f"s_sub_u32 s{s_cnt}, s{s_cnt}, 1")
    a.I(f"s_cmp_lg_u32 s{s_cnt}, 0")
    a.I(f"s_cbranch_scc1 {pfx}_loop")
    for b in range(nfull - niter * N): stage(b)
    lbuf = (T - 1) % N
    def last(blocks, pre=(), lead=None, lag=None):
        nb = len(blist)
        if lead is None: lead = cfg.get("lead", 3 if nb > 4 else 2)
        if lag is None: lag = cfg.get("lag", 3)
        stamp(a, 3)
        a.I("s_waitcnt lgkmcnt(0)")
        mf = []
        for b in blist[:lead]: mf += blk_mf(*b, 0)
        rd = reads(1, lbuf)
        pre = list(pre)
        k = len(mf) * 2 // 3
        emit_seq(mf[:k], rd)
        npre = min(len(pre), 3 * (len(mf) - k))
        emit_seq(mf[k:], pre[:npre])
        pre = pre[npre:]
        a.I("s_waitcnt lgkmcnt(0)")
        seq = []; done = {}
        for i, b in enumerate(blist):
            if i >= lead: seq += blk_mf(*b, 0)
            seq += blk_mf(*b, 1)
            done[i] = len(seq)
        q = [(0, t) for t in pre]
        for i in range(nb): q += [(done[i] + lag, t) for t in blocks[i]]
        per = cfg.get("tper", 3)
        for i, m_ in enumerate(seq):
            if not off & 1: a.I(m_)
            k = 0
            while q and q[0][0] <= i + 1 and k < per:
                a.I(q.pop(0)[1]); k += 1
        for _, t in q: a.I(t)
    return last

def zero_acc(a):
    def f(acc):
        for row in acc:
            for r in row:
                for i in range(16): a.I(f"v_mov_b32 {v(r+i)}, 0")
    return f

def pack_ops(accr, dst, scale_s=None, neg=False, swap=False):
    out = []
    if scale_s is not None:
        for i in range(16): out.append(f"v_mul_f32 {v(accr+i)}, s{scale_s}, {v(accr+i)}")
    n = "-" if neg else ""
    for i in range(8):
        out.append(f"v_cvt_pk_bf16_f32 {v(dst+i)}, {n}{v(accr+2*i)}, {n}{v(accr+2*i+1)}")
    if swap:
        for g in range(2):
            out.append(f"v_permlane16_swap_b32 {v(dst+4*g)}, {v(dst+4*g+2)}")
            out.append(f"v_permlane16_swap_b32 {v(dst+4*g+1)}, {v(dst+4*g+3)}")
    return out

def gen_k1(a, cfg):
    name = "k1_kernel"
    N = 3; T = 16
    stm = cfg.get("st1", " sc1")
    RB = 0; CB = 4 * N * SUB
    kernel_head(a, name, 256)
    a.I("s_lshr_b32 s7, s4, 1")
    a.I("s_and_b32 s6, s4, 1")
    a.I("s_lshl_b32 s6, s6, 2")
    a.I("s_and_b32 s4, s5, 3")
    a.I("s_add_u32 s6, s6, s4")
    a.I("s_lshr_b32 s5, s5, 2")
    a.I(f"s_cmp_lt_u32 s{S_WAVE}, 4")
    a.I(f"s_cbranch_scc1 {name}_comp")
    va = Alloc(1, 256); sa = Alloc(S_FREE0, 76)
    tmp = va.get(4)
    srdx = sa.get(4, 4); srdw = sa.get(4, 4)
    s_lw = sa.get(); s_row = sa.get(); s_wbr = sa.get(); s_wbc = sa.get(); s_t = sa.get(); s_t2 = sa.get()
    a.I(f"s_sub_u32 s{s_lw}, s{S_WAVE}, 4")
    a.I(f"s_lshl_b32 s{s_row}, s6, 8")
    a.I(f"s_lshl_b32 s{s_t}, s{s_lw}, 6")
    a.I(f"s_add_u32 s{s_row}, s{s_row}, s{s_t}")
    a.I(f"s_mul_i32 s{s_wbr}, s{s_lw}, {N*SUB}")
    a.I(f"s_lshr_b32 s{s_t}, s{s_lw}, 1")
    a.I(f"s_mul_i32 s{s_wbc}, s{s_t}, {N*SUB}")
    a.I(f"s_and_b32 s{s_t2}, s{s_lw}, 1")
    a.I(f"s_lshl_b32 s{s_t2}, s{s_t2}, 12")
    a.I(f"s_add_u32 s{s_wbc}, s{s_wbc}, s{s_t2}")
    a.I(f"s_add_u32 s{s_wbc}, s{s_wbc}, {CB}")
    gR = lset_rm(a, va, sa, srdx, s_row, 8, 2048, s_wbr, tmp)
    a.I(f"s_mov_b32 s{srdx+2}, {2048*2048}")
    a.I(f"s_mov_b32 s{srdx+3}, 0x00020000")
    a.I(f"s_mov_b32 s{srdw+3}, 0x00020000")
    a.I("s_cmp_eq_u32 s7, 3")
    a.I(f"s_cbranch_scc1 {name}_lda")
    save = (va.n, sa.n)
    s_col = sa.get(); s_kr = sa.get()
    a.I(f"s_lshl_b32 s{s_col}, s7, 11")
    a.I(f"s_lshl_b32 s{s_kr}, s5, 8")
    a.I(f"s_add_u32 s{s_col}, s{s_col}, s{s_kr}")
    a.I(f"s_lshl_b32 s{s_t}, s{s_t}, 7")
    a.I(f"s_add_u32 s{s_col}, s{s_col}, s{s_t}")
    a.I(f"s_lshr_b32 s{s_kr}, s{s_t2}, 7")
    gC = lset_tr(a, va, sa, srdw, s_kr, s_col, 6144, s_wbc, tmp)
    a.I(f"s_mov_b32 s{srdw+2}, {1024*6144}")
    a.I("s_waitcnt lgkmcnt(0)")
    a.I(f"s_mov_b64 s[{srdx}:{srdx+1}], s[{P_BX}:{P_BX+1}]")
    a.I(f"s_mov_b64 s[{srdw}:{srdw+1}], s[{P_WQKV}:{P_WQKV+1}]")
    loader_main(a, "k1q", sa, [gR, gC], T, N, T, cfg, 0, warm_next(a, va, sa, cfg, 0, s_lw))
    hv = va.hi; hs = sa.hi
    a.L(f"{name}_lda")
    va.n, sa.n = save
    s_r2 = sa.get()
    a.I(f"s_lshl_b32 s{s_r2}, s5, 7")
    a.I(f"s_lshl_b32 s{s_t}, s{s_lw}, 5")
    a.I(f"s_add_u32 s{s_r2}, s{s_r2}, s{s_t}")
    gC = lset_rm(a, va, sa, srdw, s_r2, 4, 2048, s_wbc, tmp)
    a.I(f"s_mov_b32 s{srdw+2}, {1024*2048}")
    a.I("s_waitcnt lgkmcnt(0)")
    a.I(f"s_mov_b64 s[{srdx}:{srdx+1}], s[{P_AX}:{P_AX+1}]")
    a.I(f"s_mov_b64 s[{srdw}:{srdw+1}], s[{P_WR}:{P_WR+1}]")
    loader_main(a, "k1a", sa, [gR, gC], T, N, T, cfg, 0, warm_next(a, va, sa, cfg, 0, s_lw))
    hv = max(hv, va.hi); hs = max(hs, sa.hi)
    a.L(f"{name}_comp")
    va = Alloc(1, 256); sa = Alloc(S_FREE0, 76)
    tmp = va.get(3)
    vst = va.get(2)
    srdo = sa.get(4, 4)
    s_wm = sa.get(); s_wn = sa.get(); s_b = sa.get(); s_o = sa.get(); s_t = sa.get(); s_sc = sa.get(); s_sb = sa.get(); s_rb = sa.get()
    a.I(f"s_lshr_b32 s{s_wm}, s{S_WAVE}, 1")
    a.I(f"s_and_b32 s{s_wn}, s{S_WAVE}, 1")
    a.I(f"s_mul_i32 s{s_rb}, s{s_wm}, {2*N*SUB}")
    rblk = lambda m: (m >> 1) * N * SUB + (m & 1) * 4096
    regs = gemm_regs(va, 4, 2)
    acc = regs[0]
    a.I(f"s_lshl_b32 s{s_sb}, s6, 3")
    a.I(f"s_lshl_b32 s{s_t}, s{s_wm}, 2")
    a.I(f"s_add_u32 s{s_sb}, s{s_sb}, s{s_t}")
    a.I(f"v_lshlrev_b32 {v(vst)}, 4, v0")
    a.I(f"s_mov_b32 s{srdo+2}, {WS_OF}")
    a.I(f"s_mov_b32 s{srdo+3}, 0x00020000")
    def mk_blocks(scale, off_fn, mstep_s):
        blocks = []
        for m in range(4):
            for n in range(2):
                d = acc[m][n]
                ops = pack_ops(d, d, scale)
                for j in range(2):
                    ops.append(f"buffer_store_dwordx4 {v(d+4*j,4)}, {v(vst+n)}, {s(srdo,4)}, s{s_o} offen offset:{off_fn(m, j)}{stm}")
                if n == 1 and mstep_s(m) is not None:
                    ops.append(f"s_add_u32 s{s_o}, s{s_o}, {mstep_s(m)}")
                blocks.append(ops)
        return blocks
    def fin():
        stamp_out(a, 0)
        a.I("s_endpgm")
    a.I("s_cmp_eq_u32 s7, 3")
    a.I(f"s_cbranch_scc1 {name}_ca")
    save = (va.n, sa.n)
    a.I(f"s_mov_b32 s{s_b}, {CB}")
    C = RdTR(a, va, sa, s_b, N * SUB, "parts", s_wn, tmp)
    s_h = sa.get()
    a.I(f"s_lshl_b32 s{s_h}, s5, 2")
    a.I(f"s_add_u32 s{s_h}, s{s_h}, s{s_wn}")
    a.I("s_cmp_eq_u32 s7, 0")
    a.I(f"s_cbranch_scc1 {name}_cq")
    a.I(f"s_mul_i32 s{s_o}, s{s_h}, {KV_HSTRIDE}")
    a.I(f"s_lshl_b32 s{s_t}, s{s_sb}, 12")
    a.I(f"s_add_u32 s{s_o}, s{s_o}, s{s_t}")
    a.I(f"s_add_u32 s{s_o}, s{s_o}, {WS_KV}")
    a.I(f"v_add_u32 {v(vst+1)}, {2*KV_HSTRIDE}, {v(vst)}")
    a.I("s_cmp_eq_u32 s7, 2")
    a.I(f"s_cbranch_scc1 {name}_cv")
    a.I(f"s_branch {name}_cqk")
    a.L(f"{name}_cq")
    a.I(f"s_lshl_b32 s{s_o}, s{s_h}, 6")
    a.I(f"s_add_u32 s{s_o}, s{s_o}, s{s_sb}")
    a.I(f"s_lshl_b32 s{s_o}, s{s_o}, 11")
    a.I(f"s_add_u32 s{s_o}, s{s_o}, {WS_QF}")
    a.I(f"v_add_u32 {v(vst+1)}, {2*64*2048}, {v(vst)}")
    a.I(f"s_mov_b32 s{s_sc}, {f32hex(QSCALE)}")
    a.L(f"{name}_cqk")
    save2 = (va.n, sa.n)
    R = RdRM(a, va, s_rb, rblk, tmp)
    a.I("s_waitcnt lgkmcnt(0)")
    a.I(f"s_mov_b64 s[{srdo}:{srdo+1}], s[{P_WS}:{P_WS+1}]")
    last = gemm_compute(a, "k1qk", sa, R, C, 4, 2, True, T, N, zero_acc(a), regs, cfg)
    a.I("s_cmp_eq_u32 s7, 0")
    a.I(f"s_cbranch_scc0 {name}_tk")
    last(mk_blocks(s_sc, lambda m, j: j * 1024, lambda m: 2048)); fin()
    a.L(f"{name}_tk")
    last(mk_blocks(None, lambda m, j: j * 1024, lambda m: 4096)); fin()
    hv = max(hv, va.hi); hs = max(hs, sa.hi)
    a.L(f"{name}_cv")
    va.n, sa.n = save2
    R = RdRM(a, va, s_rb, rblk, tmp, rho=True)
    a.I(f"s_add_u32 s{s_o}, s{s_o}, 4096")
    a.I("s_waitcnt lgkmcnt(0)")
    a.I(f"s_mov_b64 s[{srdo}:{srdo+1}], s[{P_WS}:{P_WS+1}]")
    last = gemm_compute(a, "k1v", sa, R, C, 4, 2, False, T, N, zero_acc(a), regs, cfg)
    last(mk_blocks(None, lambda m, j: 2048 + j * 1024, lambda m: 4096)); fin()
    hv = max(hv, va.hi); hs = max(hs, sa.hi)
    a.L(f"{name}_ca")
    va.n, sa.n = save
    R = RdRM(a, va, s_rb, rblk, tmp, rho=True)
    a.I(f"s_lshl_b32 s{s_b}, s{s_wn}, 12")
    a.I(f"s_add_u32 s{s_b}, s{s_b}, {CB}")
    C = RdRM(a, va, s_b, lambda n: n * N * SUB, tmp)
    a.I(f"s_lshl_b32 s{s_o}, s5, 2")
    a.I(f"s_add_u32 s{s_o}, s{s_o}, s{s_wn}")
    a.I(f"s_lshl_b32 s{s_o}, s{s_o}, 17")
    a.I(f"s_lshl_b32 s{s_t}, s{s_sb}, 11")
    a.I(f"s_add_u32 s{s_o}, s{s_o}, s{s_t}")
    if WS_AF: a.I(f"s_add_u32 s{s_o}, s{s_o}, {WS_AF}")
    a.I(f"v_add_u32 {v(vst+1)}, {2<<17}, {v(vst)}")
    a.I("s_waitcnt lgkmcnt(0)")
    a.I(f"s_mov_b64 s[{srdo}:{srdo+1}], s[{P_WS}:{P_WS+1}]")
    last = gemm_compute(a, "k1a", sa, R, C, 4, 2, False, T, N, zero_acc(a), regs, cfg)
    last(mk_blocks(None, lambda m, j: j * 2048 + (m & 1) * 1024, lambda m: 4096 if m == 1 else None)); fin()
    hv = max(hv, va.hi); hs = max(hs, sa.hi)
    kernel_tail(a, name)
    return dict(name=name, grid=256, block=512, lds=6*N*SUB, vgpr=hv, sgpr=hs)

MBIAS = 96.0
def att_role(a, cfg, N, kvoff):
    stm = cfg.get("st2", " sc1")
    va = Alloc(1, 168); sa = Alloc(S_FREE0, 76)
    vl16 = 0
    vkv = va.get(); vkg = va.get()
    L = [va.get(4, 2) for _ in range(2)]
    Q = [[va.get(4, 2) for j in range(2)] for qb in range(2)]
    NM = va.get(16, 2)
    VA = va.get(4, 2); VI = va.get()
    S = [va.get(16, 2) for _ in range(2)]
    O = [va.get(16, 2) for _ in range(2)]
    P = [va.get(8, 2) for _ in range(2)]
    K = [[va.get(4, 2) for j in range(2)] for b in range(2)]
    V = [[va.get(4, 2) for j in range(2)] for b in range(2)]
    srd = sa.get(4, 4)
    s_h = sa.get(); s_sb = sa.get(); s_q = sa.get(); s_kv = sa.get(); s_t = sa.get(); s_fb = sa.get()
    s_cnt = sa.get()
    a.I(f"s_lshl_b32 s{s_h}, s4, 2")
    a.I(f"s_lshr_b32 s{s_t}, s5, 3")
    a.I(f"s_add_u32 s{s_h}, s{s_h}, s{s_t}")
    a.I(f"s_and_b32 s{s_sb}, s5, 7")
    a.I(f"s_lshl_b32 s{s_sb}, s{s_sb}, 3")
    a.I(f"s_lshl_b32 s{s_t}, s{S_WAVE}, 1")
    a.I(f"s_add_u32 s{s_sb}, s{s_sb}, s{s_t}")
    a.I(f"s_lshl_b32 s{s_q}, s{s_h}, 6")
    a.I(f"s_add_u32 s{s_q}, s{s_q}, s{s_sb}")
    a.I(f"s_lshl_b32 s{s_q}, s{s_q}, 11")
    a.I(f"s_add_u32 s{s_q}, s{s_q}, {WS_QF}")
    a.I(f"s_mul_i32 s{s_kv}, s{s_h}, {KV_HSTRIDE}")
    a.I(f"s_add_u32 s{s_kv}, s{s_kv}, {WS_KV}")
    vq = S[0]; t0 = S[0] + 1; t1 = S[0] + 2
    a.I(f"v_bfe_u32 {v(t0)}, v0, 4, 1")
    a.I(f"v_lshlrev_b32 {v(t0)}, 6, {v(t0)}")
    a.I(f"v_lshrrev_b32 {v(t1)}, 5, v0")
    a.I(f"v_lshl_or_b32 {v(t0)}, {v(t1)}, 4, {v(t0)}")
    a.I(f"v_and_or_b32 {v(vq)}, v0, 15, {v(t0)}")
    a.I(f"v_lshlrev_b32 {v(vq)}, 4, {v(vq)}")
    a.I(f"v_and_or_b32 {v(t0)}, v0, 3, {v(t0)}")
    a.I(f"v_bfe_u32 {v(t1)}, v0, 2, 1")
    a.I(f"v_lshl_or_b32 {v(t0)}, {v(t1)}, 3, {v(t0)}")
    a.I(f"v_bfe_u32 {v(t1)}, v0, 3, 1")
    a.I(f"v_lshl_or_b32 {v(t0)}, {v(t1)}, 2, {v(t0)}")
    a.I(f"v_lshlrev_b32 {v(vkg)}, 4, {v(t0)}")
    a.I(f"s_mov_b32 s{srd+2}, {WS_PF}")
    a.I(f"s_mov_b32 s{srd+3}, 0x00020000")
    a.I("s_waitcnt lgkmcnt(0)")
    a.I(f"s_mov_b64 s[{srd}:{srd+1}], s[{P_WS}:{P_WS+1}]")
    for j in range(2):
        a.I(f"buffer_load_dwordx4 {v(K[0][j],4)}, {v(vkg)}, {s(srd,4)}, s{s_kv} offen offset:{j*512}")
    for qb in range(2):
        for j in range(2):
            a.I(f"buffer_load_dwordx4 {v(Q[qb][j],4)}, {v(vq)}, {s(srd,4)}, s{s_q} offen offset:{qb*2048+j*512}")
    a.I(f"v_bfe_i32 {v(VI)}, v0, 2, 1")
    a.I(f"v_and_b32 {v(VA+2)}, 0x3f803f80, {v(VI)}")
    a.I(f"v_xor_b32 {v(VA)}, 0x3f803f80, {v(VA+2)}")
    a.I(f"v_mov_b32 {v(VA+3)}, {v(VA+2)}")
    a.I(f"v_mov_b32 {v(VA+1)}, {v(VA)}")
    a.I(f"v_and_b32 {v(VI)}, 1, v0")
    a.I(f"v_mul_u32_u24 {v(VI)}, 0xaaaa, {v(VI)}")
    a.I(f"v_add_u32 {v(VI)}, 0x4444, {v(VI)}")
    a.I(f"v_lshlrev_b32 {v(vl16)}, 4, v0")
    a.I(f"v_add_u32 {v(vkv)}, {kvoff}, {v(vkg)}")
    a.I(f"s_mov_b32 s{s_fb}, 0")
    def zero_state():
        for qb in range(2):
            for i in range(16): a.I(f"v_mov_b32 {v(O[qb]+i)}, 0")
            for i in range(4): a.I(f"v_mov_b32 {v(L[qb]+i)}, 0")
    zero_state()
    for i in range(8): a.I(f"v_mov_b32 {v(P[1]+i)}, 0")
    for j in range(2):
        for i in range(4): a.I(f"v_mov_b32 {v(V[0][j]+i)}, 0")
    def s_mfma(qb, kbuf, c):
        return [f"{MF} {v(S[qb],16)}, {v(K[kbuf][0],4)}, {v(Q[qb][0],4)}, {c}",
                f"{MF} {v(S[qb],16)}, {v(K[kbuf][1],4)}, {v(Q[qb][1],4)}, {v(S[qb],16)}"]
    def pv_mfma(qb, vbuf):
        return [f"{MF} {v(O[qb],16)}, {v(V[vbuf][j],4)}, {v(P[qb]+4*j,4)}, {v(O[qb],16)}" for j in range(2)]
    def sm_mfma(qb):
        return f"v_smfmac_f32_16x16x64_bf16 {v(L[qb],4)}, {v(VA,4)}, {v(P[qb],8)}, {v(VI)}"
    def max16(dst, sreg, first):
        i = 0
        if first:
            a.I(f"v_max3_f32 {v(dst)}, {v(sreg)}, {v(sreg+1)}, {v(sreg+2)}"); i = 3
        while i < 16:
            if i + 1 < 16:
                a.I(f"v_max3_f32 {v(dst)}, {v(dst)}, {v(sreg+i)}, {v(sreg+i+1)}"); i += 2
            else:
                a.I(f"v_max_f32 {v(dst)}, {v(dst)}, {v(sreg+i)}"); i += 1
    def valu_groups(qb):
        gs = []
        for g in range(4):
            r = S[qb] + 4 * g
            x = [f"v_exp_f32 {v(r+i)}, {v(r+i)}" for i in range(4)]
            for h in range(2):
                x.append(f"v_cvt_pk_bf16_f32 {v(P[qb]+2*g+h)}, {v(r+2*h)}, {v(r+2*h+1)}")
            gs.append(x)
        return gs
    tmp = P[0]
    a.I("s_waitcnt vmcnt(0)")
    for qb in range(2):
        for t in s_mfma(qb, 0, "0"): a.I(t)
    for qb in range(2): max16(tmp + qb, S[qb], True)
    a.I(f"v_permlane32_swap_b32 {v(tmp)}, {v(tmp+1)}")
    a.I(f"v_max_f32 {v(tmp)}, {v(tmp)}, {v(tmp+1)}")
    a.I(f"v_mov_b32 {v(tmp+1)}, {v(tmp)}")
    a.I(f"v_permlane32_swap_b32 {v(tmp)}, {v(tmp+1)}")
    a.I(f"v_min_f32 {v(tmp)}, {v(tmp)}, {v(tmp+1)}")
    a.I(f"v_sub_f32 {v(NM)}, {f32hex(-MBIAS)}, {v(tmp)}")
    for i in range(16): a.I(f"v_add_f32 {v(S[0]+i)}, {v(NM)}, {v(S[0]+i)}")
    for i in range(1, 16): a.I(f"v_mov_b32 {v(NM+i)}, {v(NM)}")
    a.I(f"s_mov_b32 s{s_cnt}, {32 // N}")
    a.I("s_barrier")
    stamp(a, 2)
    a.L("att_loop")
    for buf in range(N):
        for sl in range(4):
            qb = sl % 2; o = 1 - qb
            kbuf = ((sl + 1) // 2) % 2
            vbuf = (((sl - 1) // 2) + 1) % 2
            m = s_mfma(o, kbuf, v(NM, 16)) + pv_mfma(o, vbuf)
            gs = valu_groups(qb)
            gs[cfg.get("smpos", 3)].insert(cfg.get("smoff", 3), sm_mfma(o))
            if sl % 2 == 1: a.I("s_waitcnt lgkmcnt(0)")
            extra = [[], [], [], []]
            if sl == 3: extra[0] = ["s_barrier"] if buf < N - 1 else ["s_cbranch_scc0 att_nobar", "s_barrier", "att_nobar:"]
            if sl % 2 == 0:
                rb = (sl // 2 + 1) % 2
                ro = (sl // 2) * 4096 + buf * SUB
                kr = [f"ds_read_b128 {v(K[rb][j],4)}, {v(vkv)} offset:{ro + j*512}" for j in range(2)]
                vr = [f"ds_read_b128 {v(V[rb][j],4)}, {v(vkv)} offset:{ro + 2048 + j*512}" for j in range(2)]
                if cfg.get("rd1", 0): extra = [[kr[0]], [kr[1]], [vr[0]], [vr[1]]]
                else: extra[0] = kr; extra[1] = vr
            if sl == 1 and buf == N - 1:
                extra[1] = [f"s_sub_u32 s{s_cnt}, s{s_cnt}, 1"]
                extra[2] = [f"s_cmp_lg_u32 s{s_cnt}, 0"]
            for g in range(4):
                if not cfg.get("attoff", 0) & 1: a.I(m[g])
                for t in extra[g]:
                    if t.endswith(":"): a.L(t[:-1])
                    elif not (cfg.get("attoff", 0) & 4 and t.startswith("ds_read")): a.I(t)
                if not cfg.get("attoff", 0) & 2:
                    for t in gs[g]: a.I(t)
    a.I("s_cbranch_scc1 att_loop")
    stamp(a, 3)
    a.I(sm_mfma(1))
    for t in pv_mfma(1, 0): a.I(t)
    tmp = S[0]
    a.L("att_fin")
    a.I(f"s_lshl_b32 s{s_t}, s{s_sb}, 16")
    a.I(f"s_lshl_b32 s{s_q}, s{s_h}, 11")
    a.I(f"s_add_u32 s{s_t}, s{s_t}, s{s_q}")
    a.I(f"s_add_u32 s{s_t}, s{s_t}, {WS_OF}")
    for qb in range(2):
        a.I(f"v_add_f32 {v(L[qb])}, {v(L[qb])}, {v(L[qb]+1)}")
    a.I(f"v_add_u32 {v(tmp+4)}, 0x10000, {v(vl16)}")
    a.I(f"v_rcp_f32 {v(tmp+2)}, {v(L[0])}")
    a.I(f"v_rcp_f32 {v(tmp+3)}, {v(L[1])}")
    a.I(f"s_cmp_lg_u32 s{s_fb}, 0")
    a.I("s_cbranch_scc1 att_store")
    a.I(f"v_max_f32 {v(tmp)}, {v(L[0])}, {v(L[1])}")
    a.I(f"v_mul_f32 {v(tmp+1)}, 0, {v(L[0])}")
    a.I(f"v_mul_f32 {v(tmp+5)}, 0, {v(L[1])}")
    for i in range(16): a.I(f"v_fmac_f32 {v(tmp+1)}, 0, {v(O[0]+i)}")
    for i in range(16): a.I(f"v_fmac_f32 {v(tmp+5)}, 0, {v(O[1]+i)}")
    a.I(f"v_add_f32 {v(tmp)}, {v(tmp)}, {v(tmp+1)}")
    a.I(f"v_add_f32 {v(tmp)}, {v(tmp)}, {v(tmp+5)}")
    a.I(f"v_cmp_ngt_f32 vcc, {f32hex(2.0**120)}, {v(tmp)}")
    if not cfg.get("attoff", 0): a.I("s_cbranch_vccnz att_fallback")
    a.L("att_store")
    for qb in range(2):
        for i in range(16): a.I(f"v_mul_f32 {v(O[qb]+i)}, {v(tmp+2+qb)}, {v(O[qb]+i)}")
        for t in pack_ops(O[qb], P[qb]): a.I(t)
        for j in range(2):
            a.I(f"buffer_store_dwordx4 {v(P[qb]+4*j,4)}, {v(vl16 if qb == 0 else tmp+4)}, {s(srd,4)}, s{s_t} offen offset:{j*1024}{stm}")
    stamp_out(a, 1)
    a.I("s_endpgm")
    tmp = P[0]
    a.L("att_fallback")
    a.I(f"s_mov_b32 s{s_fb}, 1")
    a.I(f"s_mov_b32 s{s_t}, s{s_kv}")
    a.I(f"s_mov_b32 s{s_cnt}, 0")
    a.I(f"v_mov_b32 {v(tmp+2)}, 0xff800000")
    a.I(f"v_mov_b32 {v(tmp+3)}, 0xff800000")
    a.L("att_fb1")
    for j in range(2):
        a.I(f"buffer_load_dwordx4 {v(K[0][j],4)}, {v(vkg)}, {s(srd,4)}, s{s_t} offen offset:{j*512}")
    a.I("s_waitcnt vmcnt(0)")
    for qb in range(2):
        for t in s_mfma(qb, 0, "0"): a.I(t)
    for qb in range(2): max16(tmp + 2 + qb, S[qb], False)
    a.I(f"s_add_u32 s{s_t}, s{s_t}, 4096")
    a.I(f"s_add_u32 s{s_cnt}, s{s_cnt}, 1")
    a.I(f"s_cmp_lt_u32 s{s_cnt}, 64")
    a.I("s_cbranch_scc1 att_fb1")
    for qb in range(2):
        a.I(f"v_mov_b32 {v(NM+qb)}, {v(tmp+2+qb)}")
        a.I(f"v_permlane32_swap_b32 {v(NM+qb)}, {v(tmp+2+qb)}")
        a.I(f"v_max_f32 {v(NM+qb)}, {v(NM+qb)}, {v(tmp+2+qb)}")
    zero_state()
    a.I(f"s_mov_b32 s{s_t}, s{s_kv}")
    a.I(f"s_mov_b32 s{s_cnt}, 0")
    va2 = K[1][0]
    a.I(f"v_add_u32 {v(va2)}, 4096, {v(vkg)}")
    a.L("att_fb2")
    for j in range(2):
        a.I(f"buffer_load_dwordx4 {v(K[0][j],4)}, {v(vkg)}, {s(srd,4)}, s{s_t} offen offset:{j*512}")
        a.I(f"buffer_load_dwordx4 {v(V[0][j],4)}, {v(va2)}, {s(srd,4)}, s{s_t} offen offset:{2048+j*512}")
    a.I("s_waitcnt vmcnt(0)")
    for qb in range(2):
        for t in s_mfma(qb, 0, "0"): a.I(t)
    for qb in range(2):
        for i in range(16): a.I(f"v_sub_f32 {v(S[qb]+i)}, {v(S[qb]+i)}, {v(NM+qb)}")
        for g in valu_groups(qb):
            for t in g: a.I(t)
        for t in pv_mfma(qb, 0): a.I(t)
        a.I(sm_mfma(qb))
    a.I(f"s_add_u32 s{s_t}, s{s_t}, 4096")
    a.I(f"s_add_u32 s{s_cnt}, s{s_cnt}, 1")
    a.I(f"s_cmp_lt_u32 s{s_cnt}, 64")
    a.I("s_cbranch_scc1 att_fb2")
    a.I("s_branch att_fin")
    return va.hi, sa.hi

def gen_k2(a, cfg):
    name = "k2_kernel"
    N = 4; T = 32
    stm = cfg.get("st2", " sc1")
    RB = 0; CB = 2 * N * SUB; KB = 4 * N * SUB
    kernel_head(a, name, 256)
    a.I(f"s_cmp_ge_u32 s{S_WAVE}, 4")
    a.I(f"s_cbranch_scc1 {name}_g3")
    if cfg.get("prio_att"): a.I(f"s_setprio {cfg['prio_att']}")
    hv, hs = att_role(a, cfg, N, KB)
    a.L(f"{name}_g3")
    sa = Alloc(S_FREE0, 76)
    s_tb = sa.get(); s_eb = sa.get(); s_t = sa.get(); s_t2 = sa.get()
    a.I("s_and_b32 s7, s4, 1")
    a.I(f"s_lshr_b32 s{s_tb}, s4, 1")
    a.I(f"s_lshl_b32 s{s_tb}, s{s_tb}, 2")
    a.I(f"s_and_b32 s{s_t}, s5, 3")
    a.I(f"s_add_u32 s{s_tb}, s{s_tb}, s{s_t}")
    a.I(f"s_lshr_b32 s{s_eb}, s5, 2")
    a.I(f"s_cmp_lt_u32 s{S_WAVE}, 8")
    a.I(f"s_cbranch_scc1 {name}_comp")
    save_s = sa.n
    va = Alloc(1, 168)
    tmp = va.get(4)
    srdc = sa.get(4, 4); srdw = sa.get(4, 4); srdx = sa.get(4, 4)
    s_lw = sa.get(); s_row = sa.get(); s_wbr = sa.get(); s_wbc = sa.get(); s_wbk = sa.get(); s_kv = sa.get()
    a.I(f"s_sub_u32 s{s_lw}, s{S_WAVE}, 8")
    a.I(f"s_lshl_b32 s{s_row}, s{s_tb}, 7")
    a.I(f"s_lshl_b32 s{s_t}, s{s_lw}, 5")
    a.I(f"s_add_u32 s{s_row}, s{s_row}, s{s_t}")
    a.I(f"s_lshr_b32 s{s_t}, s{s_lw}, 1")
    a.I(f"s_mul_i32 s{s_wbr}, s{s_t}, {N*SUB}")
    a.I(f"s_and_b32 s{s_t2}, s{s_lw}, 1")
    a.I(f"s_lshl_b32 s{s_t2}, s{s_t2}, 12")
    a.I(f"s_add_u32 s{s_wbr}, s{s_wbr}, s{s_t2}")
    a.I(f"s_add_u32 s{s_wbc}, s{s_wbr}, {CB}")
    a.I(f"s_lshl_b32 s{s_wbk}, s{s_lw}, 11")
    a.I(f"s_lshl_b32 s{s_kv}, s4, 2")
    a.I(f"s_lshr_b32 s6, s5, 3")
    a.I(f"s_add_u32 s{s_kv}, s{s_kv}, s6")
    a.I(f"s_mul_i32 s{s_kv}, s{s_kv}, {KV_HSTRIDE}")
    a.I(f"s_add_u32 s{s_kv}, s{s_kv}, s{s_wbk}")
    a.I(f"s_add_u32 s{s_kv}, s{s_kv}, {WS_KV + 4096}")
    a.I(f"s_add_u32 s{s_wbk}, s{s_wbk}, {KB}")
    gK = lset_lin(a, va, sa, srdw, s_kv, 2, 8192, s_wbk)
    gR = lset_rm(a, va, sa, srdc, s_row, 4, 4096, s_wbr, tmp)
    rot = cfg.get("rot", 0) & 1
    s_sh4 = sa.get(); s_sh8 = sa.get()
    a.I(f"s_and_b32 s{s_sh4}, s5, 3")
    a.I(f"s_and_b32 s{s_sh8}, s5, 7")
    gK.set_pf_lin(a, sa, cfg, s_kv, s_sh8, 256)
    if rot: gR.s_base = sa.get()
    else: gR.set_pf_rm(a, sa, cfg, s_row, s_eb, 4, 4096); gR.pflim = 2048*4096
    a.I(f"s_mov_b32 s{srdc+2}, {2048*4096}")
    a.I(f"s_mov_b32 s{srdc+3}, 0x00020000")
    a.I(f"s_mov_b32 s{srdw+2}, {WS_OF}")
    a.I(f"s_mov_b32 s{srdw+3}, 0x00020000")
    a.I("s_cmp_eq_u32 s7, 1")
    a.I(f"s_cbranch_scc1 {name}_ldv")
    save = (va.n, sa.n)
    s_g = sa.get()
    a.I(f"s_lshl_b32 s{s_g}, s{s_eb}, 2")
    a.I(f"s_add_u32 s{s_g}, s{s_g}, s{s_lw}")
    a.I(f"s_lshl_b32 s{s_g}, s{s_g}, 17")
    if WS_AF: a.I(f"s_add_u32 s{s_g}, s{s_g}, {WS_AF}")
    gC = lset_lin(a, va, sa, srdw, s_g, 4, 4096, s_wbc)
    if rot: gC.s_base = sa.get()
    else: gC.set_pf_lin(a, sa, cfg, s_g, s_sh4, 1024)
    a.I("s_waitcnt lgkmcnt(0)")
    a.I(f"s_mov_b64 s[{srdc}:{srdc+1}], s[{P_CR}:{P_CR+1}]")
    a.I(f"s_mov_b64 s[{srdw}:{srdw+1}], s[{P_WS}:{P_WS+1}]")
    gm = cfg.get("gmask", 7)
    loader_main(a, "k2p", sa, [g for i, g in enumerate([gK, gR, gC]) if gm >> i & 1], T, N, T, cfg, 1, warm_next(a, va, sa, cfg, 1, s_lw))
    hv = max(hv, va.hi); hs = max(hs, sa.hi)
    a.L(f"{name}_ldv")
    va.n, sa.n = save
    s_col = sa.get(); s_kr = sa.get()
    a.I(f"s_lshl_b32 s{s_col}, s{s_eb}, 8")
    a.I(f"s_lshl_b32 s{s_t}, s{s_t}, 7")
    a.I(f"s_add_u32 s{s_col}, s{s_col}, s{s_t}")
    a.I(f"s_lshr_b32 s{s_kr}, s{s_t2}, 7")
    gC = lset_tr(a, va, sa, srdx, s_kr, s_col, 2048, s_wbc, tmp)
    if rot: gC.s_base = sa.get()
    else:
        a.I(f"s_lshl_b32 s{s_t}, s{s_eb}, 8")
        gC.set_pf_tr(a, sa, cfg, s_t, s_lw, s_sh4, 2048); gC.pflim = 2048*2048
    a.I(f"s_mov_b32 s{srdx+2}, {2048*2048}")
    a.I(f"s_mov_b32 s{srdx+3}, 0x00020000")
    a.I("s_waitcnt lgkmcnt(0)")
    a.I(f"s_mov_b64 s[{srdc}:{srdc+1}], s[{P_CI}:{P_CI+1}]")
    a.I(f"s_mov_b64 s[{srdw}:{srdw+1}], s[{P_WS}:{P_WS+1}]")
    a.I(f"s_mov_b64 s[{srdx}:{srdx+1}], s[{P_AX}:{P_AX+1}]")
    loader_main(a, "k2v", sa, [g for i, g in enumerate([gK, gR, gC]) if gm >> i & 1], T, N, T, cfg, 1, warm_next(a, va, sa, cfg, 1, s_lw))
    hv = max(hv, va.hi); hs = max(hs, sa.hi)
    a.L(f"{name}_comp")
    if cfg.get("prio_g3"): a.I(f"s_setprio {cfg['prio_g3']}")
    sa.n = save_s
    va = Alloc(1, 168)
    tmp = va.get(3); vst = va.get(2)
    srdo = sa.get(4, 4)
    s_wm = sa.get(); s_wn = sa.get(); s_b = sa.get(); s_o = sa.get()
    a.I(f"s_bfe_u32 s{s_wm}, s{S_WAVE}, 0x10001")
    a.I(f"s_and_b32 s{s_wn}, s{S_WAVE}, 1")
    a.I(f"s_mul_i32 s{s_b}, s{s_wm}, {N*SUB}")
    R = RdRM(a, va, s_b, lambda m: m * 4096, tmp)
    regs = gemm_regs(va, 2, 2)
    acc = regs[0]
    a.I(f"s_lshl_b32 s{s_o}, s{s_tb}, 1")
    a.I(f"s_add_u32 s{s_o}, s{s_o}, s{s_wm}")
    a.I(f"s_lshl_b32 s{s_o}, s{s_o}, 6")
    a.I(f"s_lshl_b32 s{s_t}, s{s_eb}, 2")
    a.I(f"s_add_u32 s{s_o}, s{s_o}, s{s_t}")
    a.I(f"s_lshl_b32 s{s_o}, s{s_o}, 11")
    a.I(f"s_mov_b32 s{srdo+2}, {WS_END}")
    a.I(f"s_mov_b32 s{srdo+3}, 0x00020000")
    def mk_blocks(isv):
        blocks = []
        for m in range(2):
            for n in range(2):
                d = acc[m][n]
                ops = pack_ops(d, d, neg=isv, swap=isv)
                for j in range(2):
                    ops.append(f"buffer_store_dwordx4 {v(d+4*j,4)}, {v(vst+m)}, {s(srdo,4)}, s{s_o if n == 0 else s_t2} offen offset:{j*(2048 if isv else 1024)}{stm}")
                blocks.append(ops)
        return blocks
    pace = cfg.get("pace", 0)
    a.I("s_cmp_eq_u32 s7, 1")
    a.I(f"s_cbranch_scc1 {name}_cv")
    save = (va.n, sa.n)
    a.I(f"s_lshl_b32 s{s_t}, s{s_wn}, 11")
    a.I(f"s_add_u32 s{s_o}, s{s_o}, s{s_t}")
    a.I(f"s_add_u32 s{s_o}, s{s_o}, {WS_PF}")
    a.I(f"s_add_u32 s{s_t2}, s{s_o}, 4096")
    a.I(f"v_lshlrev_b32 {v(vst)}, 4, v0")
    a.I(f"v_add_u32 {v(vst+1)}, 0x10000, {v(vst)}")
    a.I(f"s_lshl_b32 s{s_b}, s{s_wn}, 12")
    a.I(f"s_add_u32 s{s_b}, s{s_b}, {CB}")
    C = RdFM(a, va, s_b, lambda n: n * N * SUB, tmp)
    a.I("s_waitcnt lgkmcnt(0)")
    a.I(f"s_mov_b64 s[{srdo}:{srdo+1}], s[{P_WS}:{P_WS+1}]")
    last = gemm_compute(a, "k2p", sa, R, C, 2, 2, True, T, N, zero_acc(a), regs, cfg, off=cfg.get("g3off", 0), pace=pace)
    last(mk_blocks(False))
    stamp_out(a, 1)
    a.I("s_endpgm")
    hv = max(hv, va.hi); hs = max(hs, sa.hi)
    a.L(f"{name}_cv")
    va.n, sa.n = save
    a.I(f"s_lshl_b32 s{s_t}, s{s_wn}, 10")
    a.I(f"s_add_u32 s{s_o}, s{s_o}, s{s_t}")
    a.I(f"s_add_u32 s{s_o}, s{s_o}, {WS_VF}")
    a.I(f"s_add_u32 s{s_t2}, s{s_o}, 4096")
    a.I(f"v_bfe_u32 {v(tmp)}, v0, 4, 1")
    a.I(f"v_lshlrev_b32 {v(tmp)}, 5, {v(tmp)}")
    a.I(f"v_lshrrev_b32 {v(tmp+1)}, 5, v0")
    a.I(f"v_lshl_or_b32 {v(tmp)}, {v(tmp+1)}, 4, {v(tmp)}")
    a.I(f"v_and_or_b32 {v(tmp)}, v0, 15, {v(tmp)}")
    a.I(f"v_lshlrev_b32 {v(vst)}, 4, {v(tmp)}")
    a.I(f"v_add_u32 {v(vst+1)}, 0x10000, {v(vst)}")
    a.I(f"s_mov_b32 s{s_b}, {CB}")
    C = RdTR(a, va, sa, s_b, N * SUB, "parts", s_wn, tmp)
    a.I("s_waitcnt lgkmcnt(0)")
    a.I(f"s_mov_b64 s[{srdo}:{srdo+1}], s[{P_WS}:{P_WS+1}]")
    last = gemm_compute(a, "k2v", sa, R, C, 2, 2, True, T, N, zero_acc(a), regs, cfg, off=cfg.get("g3off", 0), pace=pace)
    last(mk_blocks(True))
    stamp_out(a, 1)
    a.I("s_endpgm")
    hv = max(hv, va.hi); hs = max(hs, sa.hi)
    kernel_tail(a, name)
    return dict(name=name, grid=256, block=768, lds=5*N*SUB, vgpr=hv, sgpr=hs)

def gen_k3(a, cfg):
    name = "k3_kernel"
    N = 5; T = 16
    stm = cfg.get("st3", "")
    RB = 0; CB = 2 * N * SUB
    kernel_head(a, name, 256)
    a.I("s_lshr_b32 s7, s4, 2")
    a.I("s_and_b32 s6, s4, 3")
    a.I("s_lshl_b32 s6, s6, 2")
    a.I("s_and_b32 s4, s5, 3")
    a.I("s_add_u32 s6, s6, s4")
    a.I("s_lshr_b32 s5, s5, 2")
    a.I(f"s_cmp_lt_u32 s{S_WAVE}, 4")
    a.I(f"s_cbranch_scc1 {name}_comp")
    va = Alloc(1, 256); sa = Alloc(S_FREE0, 76)
    tmp = va.get(4)
    srdw = sa.get(4, 4); srdb = sa.get(4, 4)
    s_lw = sa.get(); s_wbr = sa.get(); s_wbc = sa.get(); s_t = sa.get(); s_t2 = sa.get(); s_g = sa.get()
    a.I(f"s_sub_u32 s{s_lw}, s{S_WAVE}, 4")
    a.I(f"s_lshr_b32 s{s_t}, s{s_lw}, 1")
    a.I(f"s_mul_i32 s{s_wbr}, s{s_t}, {N*SUB}")
    a.I(f"s_and_b32 s{s_t2}, s{s_lw}, 1")
    a.I(f"s_lshl_b32 s{s_t2}, s{s_t2}, 12")
    a.I(f"s_add_u32 s{s_wbr}, s{s_wbr}, s{s_t2}")
    a.I(f"s_add_u32 s{s_wbc}, s{s_wbr}, {CB}")
    a.I(f"s_lshl_b32 s{s_g}, s6, 2")
    a.I(f"s_add_u32 s{s_g}, s{s_g}, s{s_lw}")
    a.I(f"s_lshl_b32 s{s_g}, s{s_g}, 16")
    a.I(f"s_mul_i32 s4, s7, {WS_VF - WS_OF}")
    a.I(f"s_add_u32 s{s_g}, s{s_g}, s4")
    a.I(f"s_add_u32 s{s_g}, s{s_g}, {WS_OF}")
    gR = lset_lin(a, va, sa, srdw, s_g, 4, 4096, s_wbr)
    a.I(f"s_mov_b32 s{srdw+2}, {WS_END}")
    a.I(f"s_mov_b32 s{srdw+3}, 0x00020000")
    a.I(f"s_mov_b32 s{srdb+2}, {1024*2048}")
    a.I(f"s_mov_b32 s{srdb+3}, 0x00020000")
    a.I("s_cmp_eq_u32 s7, 1")
    a.I(f"s_cbranch_scc1 {name}_ldy")
    save = (va.n, sa.n)
    s_col = sa.get(); s_kr = sa.get()
    a.I(f"s_lshl_b32 s{s_col}, s5, 8")
    a.I(f"s_lshl_b32 s{s_t}, s{s_t}, 7")
    a.I(f"s_add_u32 s{s_col}, s{s_col}, s{s_t}")
    a.I(f"s_lshr_b32 s{s_kr}, s{s_t2}, 7")
    gC = lset_tr(a, va, sa, srdb, s_kr, s_col, 2048, s_wbc, tmp)
    a.I("s_waitcnt lgkmcnt(0)")
    a.I(f"s_mov_b64 s[{srdw}:{srdw+1}], s[{P_WS}:{P_WS+1}]")
    a.I(f"s_mov_b64 s[{srdb}:{srdb+1}], s[{P_WO}:{P_WO+1}]")
    loader_main(a, "k3o", sa, [gR, gC], T, N, T, cfg, 2)
    hv = va.hi; hs = sa.hi
    a.L(f"{name}_ldy")
    va.n, sa.n = save
    s_r2 = sa.get()
    a.I(f"s_lshl_b32 s{s_r2}, s5, 7")
    a.I(f"s_lshl_b32 s{s_t}, s{s_lw}, 5")
    a.I(f"s_add_u32 s{s_r2}, s{s_r2}, s{s_t}")
    gC = lset_rm(a, va, sa, srdb, s_r2, 4, 2048, s_wbc, tmp)
    a.I("s_waitcnt lgkmcnt(0)")
    a.I(f"s_mov_b64 s[{srdw}:{srdw+1}], s[{P_WS}:{P_WS+1}]")
    a.I(f"s_mov_b64 s[{srdb}:{srdb+1}], s[{P_WI}:{P_WI+1}]")
    loader_main(a, "k3y", sa, [gR, gC], T, N, T, cfg, 2)
    hv = max(hv, va.hi); hs = max(hs, sa.hi)
    a.L(f"{name}_comp")
    va = Alloc(1, 256); sa = Alloc(S_FREE0, 76)
    tmp = va.get(3); vst = va.get(); vtw = va.get(2); vtr = va.get()
    srdo = sa.get(4, 4); srdw = sa.get(4, 4)
    s_wm = sa.get(); s_wn = sa.get(); s_b = sa.get(); s_o = sa.get(); s_t = sa.get(); s_tb = sa.get(); s_rb = sa.get()
    a.I(f"s_lshr_b32 s{s_wm}, s{S_WAVE}, 1")
    a.I(f"s_and_b32 s{s_wn}, s{S_WAVE}, 1")
    a.I(f"s_mul_i32 s{s_rb}, s{s_wm}, {N*SUB}")
    regs = gemm_regs(va, 2, 2)
    acc = regs[0]
    pk = va.get(64, 4)
    a.I(f"s_lshl_b32 s{s_tb}, s6, 1")
    a.I(f"s_add_u32 s{s_tb}, s{s_tb}, s{s_wm}")
    a.I(f"s_lshl_b32 s{s_o}, s{s_tb}, 18")
    a.I(f"s_lshl_b32 s{s_t}, s5, 8")
    a.I(f"s_add_u32 s{s_o}, s{s_o}, s{s_t}")
    a.I(f"s_lshl_b32 s{s_t}, s{s_wn}, 7")
    a.I(f"s_add_u32 s{s_o}, s{s_o}, s{s_t}")
    a.I(f"s_xor_b32 s{s_t}, s7, 1")
    a.I(f"s_lshl_b32 s{s_t}, s{s_t}, 11")
    a.I(f"s_add_u32 s{s_o}, s{s_o}, s{s_t}")
    a.I(f"s_mov_b32 s{srdo+2}, {2048*4096}")
    a.I(f"s_mov_b32 s{srdo+3}, 0x00020000")
    assert (T - 1) % N == 0
    a.I(f"s_mul_i32 s{s_t}, s{S_WAVE}, {N*SUB}")
    a.I(f"s_add_u32 s{s_t}, s{s_t}, {2*SUB}")
    a.I(f"v_bfe_u32 {v(tmp)}, v0, 4, 1")
    a.I(f"v_lshrrev_b32 {v(tmp+1)}, 5, v0")
    a.I(f"v_lshl_or_b32 {v(tmp+1)}, {v(tmp)}, 1, {v(tmp+1)}")
    a.I(f"v_xor_b32 {v(tmp+1)}, {v(tmp+1)}, v0")
    a.I(f"v_and_b32 {v(tmp+1)}, 7, {v(tmp+1)}")
    a.I(f"v_lshlrev_b32 {v(tmp+1)}, 4, {v(tmp+1)}")
    a.I(f"v_and_b32 {v(tmp)}, 15, v0")
    a.I(f"v_lshl_add_u32 {v(tmp)}, {v(tmp)}, 7, {v(tmp+1)}")
    a.I(f"v_add_u32 {v(vtw)}, s{s_t}, {v(tmp)}")
    a.I(f"v_xor_b32 {v(vtw+1)}, 64, {v(vtw)}")
    a.I(f"v_lshrrev_b32 {v(tmp)}, 3, v0")
    a.I(f"v_xor_b32 {v(tmp+1)}, {v(tmp)}, v0")
    a.I(f"v_and_b32 {v(tmp+1)}, 7, {v(tmp+1)}")
    a.I(f"v_lshlrev_b32 {v(vtr)}, 4, v0")
    a.I(f"v_add_u32 {v(vtr)}, s{s_t}, {v(vtr)}")
    a.I(f"v_lshlrev_b32 {v(vst)}, 12, {v(tmp)}")
    a.I(f"v_lshl_add_u32 {v(vst)}, {v(tmp+1)}, 4, {v(vst)}")
    def padd(i):
        m, n = i >> 1, i & 1
        return [f"v_add_f32 {v(acc[m][n]+k)}, {v(pk+16*i+k)}, {v(acc[m][n]+k)}" for k in range(16)]
    def tail(last, isy):
        blocks = []
        def stores(m):
            ops = []
            for j in range(4):
                ops.append(f"s_waitcnt lgkmcnt({3-j})")
                ops.append(f"buffer_store_dwordx4 {v(pk+16*m+4*j,4)}, {v(vst)}, {s(srdo,4)}, s{s_o} offen{stm}")
                if m == 0 or j < 3: ops.append(f"s_add_u32 s{s_o}, s{s_o}, {8*4096}")
            return ops
        for m in range(2):
            for n in range(2):
                d = acc[m][n]
                ops = (padd(2*m+n) if isy and m == 0 else []) + pack_ops(d, d, swap=True)
                if (m, n) == (1, 0): ops += stores(0)
                for j in range(2):
                    ops.append(f"ds_write_b128 {v(vtw+n)}, {v(d+4*j,4)} offset:{m*4096+j*2048}")
                if n == 1:
                    for j in range(4): ops.append(f"ds_read_b128 {v(pk+16*m+4*j,4)}, {v(vtr)} offset:{m*4096+j*1024}")
                    if m == 1: ops += stores(1)
                blocks.append(ops)
        last(blocks, pre=(padd(2) + padd(3)) if isy else [])
        stamp_out(a, 2)
        a.I("s_endpgm")
    a.I(f"s_mul_i32 s{s_b}, s{s_wn}, {N*SUB}")
    a.I(f"s_add_u32 s{s_b}, s{s_b}, {CB}")
    a.I("s_cmp_eq_u32 s7, 1")
    a.I(f"s_cbranch_scc1 {name}_cy")
    save = (va.n, sa.n)
    R = RdFM(a, va, s_rb, lambda m: m * 4096, tmp, kind="o")
    C = RdTR(a, va, sa, s_b, 0, "halves", None, tmp)
    a.I("s_waitcnt lgkmcnt(0)")
    a.I(f"s_mov_b64 s[{srdo}:{srdo+1}], s[{P_OUT}:{P_OUT+1}]")
    last = gemm_compute(a, "k3o", sa, R, C, 2, 2, True, T, N, zero_acc(a), regs, cfg)
    tail(last, False)
    hv = max(hv, va.hi); hs = max(hs, sa.hi)
    a.L(f"{name}_cy")
    va.n, sa.n = save
    s_p = sa.get(); vp = va.get(2)
    a.I(f"s_lshl_b32 s{s_p}, s{s_tb}, 6")
    a.I(f"s_lshl_b32 s{s_t}, s5, 2")
    a.I(f"s_add_u32 s{s_p}, s{s_p}, s{s_t}")
    a.I(f"s_lshl_b32 s{s_t}, s{s_wn}, 1")
    a.I(f"s_add_u32 s{s_p}, s{s_p}, s{s_t}")
    a.I(f"s_lshl_b32 s{s_p}, s{s_p}, 11")
    a.I(f"s_add_u32 s{s_p}, s{s_p}, {WS_PF}")
    a.I(f"v_lshlrev_b32 {v(vp)}, 4, v0")
    a.I(f"v_add_u32 {v(vp+1)}, 0x10000, {v(vp)}")
    a.I(f"s_mov_b32 s{srdw+2}, {WS_END}")
    a.I(f"s_mov_b32 s{srdw+3}, 0x00020000")
    R = RdFM(a, va, s_rb, lambda m: m * 4096, tmp)
    C = RdRM(a, va, s_b, lambda n: n * 4096, tmp)
    a.I("s_waitcnt lgkmcnt(0)")
    a.I(f"s_mov_b64 s[{srdw}:{srdw+1}], s[{P_WS}:{P_WS+1}]")
    a.I(f"s_mov_b64 s[{srdo}:{srdo+1}], s[{P_OUT}:{P_OUT+1}]")
    def ltop(s_cnt):
        a.I(f"s_cmp_eq_u32 s{s_cnt}, 2")
        a.I("s_cbranch_scc0 k3y_t1")
        for m in range(2):
            for n in range(2):
                for g in range(2):
                    a.I(f"buffer_load_dwordx4 {v(pk+32+16*m+8*n+4*g,4)}, {v(vp+m)}, {s(srdw,4)}, s{s_p} offen offset:{n*2048+g*1024}")
        a.L("k3y_t1")
        a.I(f"s_cmp_eq_u32 s{s_cnt}, 1")
        a.I("s_cbranch_scc0 k3y_t2")
        a.I("s_waitcnt vmcnt(0)")
        for i in range(32):
            a.I(f"v_lshlrev_b32 {v(pk+2*i)}, 16, {v(pk+32+i)}")
            a.I(f"v_and_b32 {v(pk+2*i+1)}, 0xffff0000, {v(pk+32+i)}")
        a.L("k3y_t2")
    last = gemm_compute(a, "k3y", sa, R, C, 2, 2, True, T, N, zero_acc(a), regs, cfg, loop_top=ltop)
    tail(last, True)
    hv = max(hv, va.hi); hs = max(hs, sa.hi)
    kernel_tail(a, name)
    return dict(name=name, grid=256, block=512, lds=4*N*SUB, vgpr=hv, sgpr=hs)

def emit(kernels, a):
    head = []
    for k in kernels:
        head.append(f"; @launch kernel={k['name']} grid=({k['grid']},1,1) block=({k['block']},1,1) lds={k['lds']}")
    head.append('.amdgcn_target "amdgcn-amd-amdhsa--gfx950"')
    head.append(".text")
    body = a.finalize()
    tail = ['.section .rodata,"a"']
    for k in kernels:
        vg = (k['vgpr'] + 7) // 8 * 8
        tail += [".p2align 6", f".amdhsa_kernel {k['name']}",
                 f"  .amdhsa_next_free_vgpr {vg}", f"  .amdhsa_next_free_sgpr {100 if STAMP else max(k['sgpr'], 32)}",
                 f"  .amdhsa_accum_offset {vg}", "  .amdhsa_group_segment_fixed_size 0", "  .amdhsa_kernarg_size 88",
                 "  .amdhsa_user_sgpr_count 2", "  .amdhsa_user_sgpr_kernarg_segment_ptr 1",
                 "  .amdhsa_system_sgpr_workgroup_id_x 1", ".end_amdhsa_kernel"]
    return "\n".join(head) + "\n" + body + "\n".join(tail) + "\n"

if __name__ == "__main__":
    a = Asm()
    cfg = {}
    for kv in sys.argv[2:]:
        k_, v_ = kv.split("=")
        if k_.startswith("st"): cfg[k_] = (" " + v_.replace("_", " ")) if v_ else ""
        else: cfg[k_] = int(v_) if v_.lstrip("-").isdigit() else v_
    ks = [gen_k1(a, cfg), gen_k2(a, cfg), gen_k3(a, cfg)]
    out = sys.argv[1] if len(sys.argv) > 1 else "concat_heads__spectral_fnet__mha_block__prompt.s"
    open(out, "w").write(emit(ks, a))
    print(ks)
```

```python
import sys, os, struct
sys.path.insert(0, os.path.dirname(os.path.abspath(__file__)))
from asmlib import Asm

MB_ = 1 << 20
WSB = MB_ * int(([x.split("=")[1] for x in sys.argv if x.startswith("wsb=")] + ["0"])[0])
WS_AF = WSB
WS_QF = WSB + 4 * MB_
WS_KV = WSB + 8 * MB_
KV_HSTRIDE = 65 * 4096
WS_OF = WSB + 17 * MB_
WS_PF = WSB + 21 * MB_
WS_VF = WSB + 25 * MB_
WS_END = WSB + 29 * MB_
BIG = 0x80000000
QSCALE = 1.4426950408889634 / (32 ** 0.5)
SUB = 8192

def f32hex(x): return "0x%08x" % struct.unpack("<I", struct.pack("<f", x))[0]
def v(i, n=1): return f"v{i}" if n == 1 else f"v[{i}:{i+n-1}]"
def s(i, n=1): return f"s{i}" if n == 1 else f"s[{i}:{i+n-1}]"

class Alloc:
    def __init__(self, start, limit): self.n = start; self.limit = limit; self.hi = start
    def get(self, cnt=1, align=1):
        self.n = (self.n + align - 1) // align * align
        r = self.n; self.n += cnt
        assert self.n <= self.limit, ("register overflow", self.n, self.limit)
        self.hi = max(self.hi, self.n)
        return r

P_AX, P_CR, P_CI, P_WR, P_WI, P_BX, P_WQKV, P_WO = [8 + 2 * i for i in range(8)]
P_OUT = 24; P_WS = 26
S_WAVE = 3
S_FREE0 = 28
MF = "v_mfma_f32_32x32x16_bf16"
FAKE16 = int(([x.split("=")[1] for x in sys.argv if x.startswith("fake16=")] + ["0"])[0])

STAMP = os.environ.get("STAMP") == "1"
WS_STAMP = 40 * MB_
S_ST = 84
def stamp(a, i):
    if STAMP: a.I(f"s_memtime s[{S_ST+2*i}:{S_ST+2*i+1}]")
def stamp_rt(a, i):
    if STAMP: a.I(f"s_memrealtime s[{S_ST+2*i}:{S_ST+2*i+1}]")
def stamp_out(a, kidx):
    if not STAMP: return
    a.I("s_waitcnt vmcnt(0) lgkmcnt(0)")
    stamp(a, 6); stamp_rt(a, 7)
    a.I("s_waitcnt lgkmcnt(0)")
    a.I(f"s_mov_b32 s76, s{P_WS}")
    a.I(f"s_mov_b32 s77, s{P_WS+1}")
    a.I(f"s_mov_b32 s78, {WS_STAMP + 8*MB_}")
    a.I(f"s_mov_b32 s79, 0x00020000")
    a.I(f"s_lshl_b32 s80, s2, 4")
    a.I(f"s_add_u32 s80, s80, s{S_WAVE}")
    a.I(f"s_lshl_b32 s80, s80, 5")
    a.I(f"s_add_u32 s80, s80, {WS_STAMP + kidx*MB_}")
    for i in range(8): a.I(f"v_mov_b32 v{8+i}, s{S_ST+2*i}")
    a.I("v_mov_b32 v1, 0")
    a.I("buffer_store_dwordx4 v[8:11], v1, s[76:79], s80 offen")
    a.I("buffer_store_dwordx4 v[12:15], v1, s[76:79], s80 offen offset:16")

def kernel_head(a, name, grid):
    a.R(".p2align 8")
    a.R(f".globl {name}")
    a.R(f".type {name},@function")
    a.L(name)
    a.I(f"s_cmp_ge_u32 s2, {grid}")
    a.I(f"s_cbranch_scc1 {name}_end")
    a.I("s_load_dwordx16 s[8:23], s[0:1], 0")
    a.I("s_load_dwordx2 s[24:25], s[0:1], 64")
    a.I("s_load_dwordx2 s[26:27], s[0:1], 80")
    a.I("v_lshrrev_b32 v1, 6, v0")
    a.I("v_and_b32 v0, 63, v0")
    a.I(f"v_readfirstlane_b32 s{S_WAVE}, v1")
    if STAMP:
        for i in (2, 3, 4, 5): a.I(f"s_mov_b64 s[{S_ST+2*i}:{S_ST+2*i+1}], 0")
    stamp(a, 0); stamp_rt(a, 1)
    a.I("s_and_b32 s4, s2, 7")
    a.I("s_lshr_b32 s5, s2, 3")

def kernel_tail(a, name):
    a.L(f"{name}_end")
    a.I("s_endpgm")

def make_srd(a, sr, ptr, nbytes):
    a.I(f"s_mov_b32 s{sr}, s{ptr}")
    a.I(f"s_mov_b32 s{sr+1}, s{ptr+1}")
    a.I(f"s_mov_b32 s{sr+2}, {nbytes}")
    a.I(f"s_mov_b32 s{sr+3}, 0x00020000")

def interleave(main, fill, lead=0, span=None):
    out = list(fill[:lead]); rest = fill[lead:]
    n = span or len(main)
    for i, m in enumerate(main):
        out.append(m)
        if i < n:
            lo = len(rest) * i // n; hi = len(rest) * (i + 1) // n
            out += rest[lo:hi]
    return out

class LGroup:
    def __init__(self, srd, voffs, s_wb, s_k, kstep, one=False):
        self.srd = srd; self.voffs = voffs; self.s_wb = s_wb; self.s_k = s_k; self.kstep = kstep
        self.per = len(voffs)
        self.delay = 0; self.count = None
        self.s_base = None
        self.pf = None
        self.pfalt = None
        self.pflim = None
    def issue(self, s_boff, mod="", s_si=None, s_dummy=None):
        out = []
        if self.s_base is not None:
            out.append(f"s_mul_i32 s{self.s_k}, s{s_si}, {self.kstep}")
            out.append(f"s_add_u32 s{self.s_k}, s{self.s_k}, s{self.s_base}")
        for p in range(self.per):
            if p % 4 == 0:
                out.append(f"s_add_u32 m0, s{self.s_wb}, s{s_boff}" if p == 0 else "s_add_u32 m0, m0, 4096")
            out.append(f"buffer_load_dwordx4 {v(self.voffs[p])}, {s(self.srd,4)}, s{self.s_k} offen offset:{(p%4)*1024} lds{mod}")
        if self.s_base is None:
            out.append(f"s_add_u32 s{self.s_k}, s{self.s_k}, {self.kstep}")
        return out
    def prefetch(self, s_dummy):
        out = []
        if self.pf is not None:
            s_pf, imms, wide = self.pf
            for im in imms:
                if wide: out.append(f"s_buffer_load_dwordx2 {s(s_dummy,2)}, {s(self.srd,4)}, s{s_pf} offset:{im}")
                else: out.append(f"s_buffer_load_dword s{s_dummy}, {s(self.srd,4)}, s{s_pf} offset:{im}")
            if self.pfalt is None:
                out.append(f"s_add_u32 s{s_pf}, s{s_pf}, {self.kstep}")
            else:
                out.append(f"s_add_u32 s{s_pf}, s{s_pf}, s{self.pfalt}")
                out.append(f"s_sub_u32 s{self.pfalt}, {2*self.kstep}, s{self.pfalt}")
            if self.pflim is not None:
                out.append(f"s_min_u32 s{s_pf}, s{s_pf}, {self.pflim - max(imms) - 8}")
        return out
    def set_pf_rm(self, a, sa, cfg, s_row, s_share, nrow, pitch):
        d = cfg.get("spf", 0); mode = cfg.get("spfm", 1)
        if not d: return
        s_pf = sa.get()
        a.I(f"s_mul_i32 s{s_pf}, s{s_share}, {nrow}")
        a.I(f"s_add_u32 s{s_pf}, s{s_pf}, s{s_row}")
        a.I(f"s_mul_i32 s{s_pf}, s{s_pf}, {pitch}")
        a.I(f"s_add_u32 s{s_pf}, s{s_pf}, {d*128}")
        if mode == 1: self.pf = (s_pf, [j*pitch for j in range(nrow)], False)
        elif mode == 3: self.pf = (s_pf, [j*pitch + 60 for j in range(nrow)], True)
        else:
            assert d % 2 == 0
            self.pf = (s_pf, [j*pitch + 124 for j in range(nrow//2)], True)
            self.pfalt = sa.get()
            a.I(f"s_mov_b32 s{self.pfalt}, {nrow//2*pitch}")
    def set_pf_lin(self, a, sa, cfg, s_gbase, s_share, nbytes):
        d = cfg.get("spf", 0); mode = cfg.get("spfm", 1)
        if not d: return
        s_pf = sa.get()
        a.I(f"s_mul_i32 s{s_pf}, s{s_share}, {nbytes}")
        a.I(f"s_add_u32 s{s_pf}, s{s_pf}, s{s_gbase}")
        a.I(f"s_add_u32 s{s_pf}, s{s_pf}, {d*self.kstep}")
        n = nbytes // 128
        if mode == 1: self.pf = (s_pf, [j*128 for j in range(n)], False)
        elif mode == 3: self.pf = (s_pf, [j*128 + 60 for j in range(n)], True)
        else: self.pf = (s_pf, [j*256 + 124 for j in range(n//2)], True)
    def set_pf_tr(self, a, sa, cfg, s_col0, s_lw, s_share, pitch):
        d = cfg.get("spf", 0); mode = cfg.get("spfm", 1)
        if not d: return
        s_pf = sa.get()
        a.I(f"s_lshl_b32 s{s_pf}, s{s_share}, 2")
        a.I(f"s_add_u32 s{s_pf}, s{s_pf}, s{s_lw}")
        a.I(f"s_mul_i32 s{s_pf}, s{s_pf}, {4*pitch}")
        a.I(f"s_add_u32 s{s_pf}, s{s_pf}, s{s_col0}")
        a.I(f"s_add_u32 s{s_pf}, s{s_pf}, {d*self.kstep}")
        if mode == 1: self.pf = (s_pf, [j*pitch + h*128 for j in range(4) for h in range(2)], False)
        elif mode == 3: self.pf = (s_pf, [j*pitch + h*128 + 60 for j in range(4) for h in range(2)], True)
        else: self.pf = (s_pf, [j*pitch + 124 for j in range(4)], True)

class WGroup:
    def __init__(self, srd, voff, vdum, s_k, kstep, delay, count, imms=(0,)):
        self.srd = srd; self.voff = voff; self.vdum = vdum; self.s_k = s_k; self.kstep = kstep
        self.delay = delay; self.count = count; self.imms = imms; self.per = len(imms); self.s_base = None
    def issue(self, s_boff, mod="", s_si=None, s_dummy=None):
        out = [f"buffer_load_dword {v(self.vdum)}, {v(self.voff)}, {s(self.srd,4)}, s{self.s_k} offen offset:{im}" for im in self.imms]
        out.append(f"s_add_u32 s{self.s_k}, s{self.s_k}, {self.kstep}" if self.kstep >= 0 else f"s_sub_u32 s{self.s_k}, s{self.s_k}, {-self.kstep}")
        return out

def wset_k3(a, va, sa, cfg, isv, s_lw):
    srd = sa.get(4, 4); sk = sa.get(); vo = va.get(); vd = va.get()
    n = cfg.get("l2n", 8)
    a.I(f"s_lshl_b32 s{sk}, s5, 2")
    a.I(f"s_add_u32 s{sk}, s{sk}, s{s_lw}")
    a.I(f"s_lshl_b32 s{sk}, s{sk}, {14 if isv else 11}")
    a.I(f"s_add_u32 s{sk}, s{sk}, {(n-1) * (256 if isv else 262144)}")
    if isv:
        a.I(f"v_lshrrev_b32 {v(vo)}, 3, v0")
        a.I(f"v_lshlrev_b32 {v(vo)}, 6, {v(vo)}")
        a.I(f"v_and_or_b32 {v(vo)}, v0, 7, {v(vo)}")
        a.I(f"v_lshlrev_b32 {v(vo)}, 5, {v(vo)}")
    else:
        a.I(f"v_lshlrev_b32 {v(vo)}, 5, v0")
    pp = P_WI if isv else P_WO
    a.I(f"s_mov_b64 s[{srd}:{srd+1}], s[{pp}:{pp+1}]")
    a.I(f"s_mov_b32 s{srd+2}, {1024*2048}")
    a.I(f"s_mov_b32 s{srd+3}, 0x00020000")
    return WGroup(srd, vo, vd, sk, -256 if isv else -262144, cfg["l2s"], n)

def lset_rm(a, va, sa, srd, s_row, per, pitch, s_wb, tmp):
    t0, t1, t2 = tmp, tmp + 1, tmp + 2
    sk = sa.get()
    a.I(f"v_lshrrev_b32 {v(t0)}, 3, v0")
    a.I(f"v_add_u32 {v(t0)}, s{s_row}, {v(t0)}")
    a.I(f"v_lshlrev_b32 {v(t0)}, {pitch.bit_length()-1}, {v(t0)}")
    a.I(f"v_lshrrev_b32 {v(t1)}, 4, v0")
    a.I(f"v_xor_b32 {v(t1)}, {v(t1)}, v0")
    a.I(f"v_and_b32 {v(t1)}, 7, {v(t1)}")
    a.I(f"v_lshl_add_u32 {v(t1)}, {v(t1)}, 4, {v(t0)}")
    voffs = [va.get() for p in range(per)]
    for p in range(min(per, 4)):
        c = ((p >> 1) & 1) * 2 + (p & 1) * 4
        a.I(f"v_xor_b32 {v(t2)}, {c*16}, {v(t1)}")
        for q in range(p, per, 4):
            a.I(f"v_add_u32 {v(voffs[q])}, {q*8*pitch - (q%4)*1024}, {v(t2)}")
    a.I(f"s_mov_b32 s{sk}, 0")
    return LGroup(srd, voffs, s_wb, sk, 128)

def lset_lin(a, va, sa, srd, s_gbase, per, kstep, s_wb):
    assert per <= 4
    r = va.get(); sk = sa.get()
    a.I(f"v_lshlrev_b32 {v(r)}, 4, v0")
    a.I(f"s_mov_b32 s{sk}, s{s_gbase}")
    return LGroup(srd, [r] * per, s_wb, sk, kstep)

def lset_tr(a, va, sa, srd, s_krow, s_colb, pitch, s_wb, tmp):
    t0, t1 = tmp, tmp + 1
    st = sa.get(); sk = sa.get()
    a.I(f"v_lshrrev_b32 {v(t0)}, 3, v0")
    a.I(f"v_add_u32 {v(t0)}, s{s_krow}, {v(t0)}")
    a.I(f"v_mul_u32_u24 {v(t0)}, {pitch}, {v(t0)}")
    a.I(f"v_lshrrev_b32 {v(t1)}, 2, v0")
    a.I(f"v_and_b32 {v(t1)}, 4, {v(t1)}")
    a.I(f"v_xor_b32 {v(t1)}, {v(t1)}, v0")
    a.I(f"v_and_b32 {v(t1)}, 7, {v(t1)}")
    a.I(f"v_lshl_add_u32 {v(t0)}, {v(t1)}, 4, {v(t0)}")
    a.I(f"v_xor_b32 {v(t1)}, 32, {v(t0)}")
    voffs = []
    for p in range(4):
        r = va.get()
        a.I(f"v_add_u32 {v(r)}, {p*8*pitch - p*1024}, {v(t0 if p % 2 == 0 else t1)}")
        voffs.append(r)
    a.I(f"s_mov_b32 s{sk}, s{s_colb}")
    return LGroup(srd, voffs, s_wb, sk, 64 * pitch)

def warm_next(a, va, sa, cfg, kidx, s_lw):
    if kidx == 0 and cfg.get("w2", 0):
        n = cfg["w2"]
        def f():
            srd = 4; so = sa.get(); st = sa.get(); vo = va.get(); vd = va.get(4, 4)
            a.I("s_bitcmp1_b32 s2, 0")
            a.I(f"s_cselect_b32 s{srd}, s{P_CI}, s{P_CR}")
            a.I(f"s_cselect_b32 s{srd+1}, s{P_CI+1}, s{P_CR+1}")
            a.I(f"s_mov_b32 s{srd+2}, {2048*4096}")
            a.I(f"s_mov_b32 s{srd+3}, 0x00020000")
            a.I(f"s_bfe_u32 s{so}, s2, 0x20001")
            a.I(f"s_lshl_b32 s{so}, s{so}, 2")
            a.I(f"s_bfe_u32 s{st}, s2, 0x20003")
            a.I(f"s_add_u32 s{so}, s{so}, s{st}")
            a.I(f"s_lshl_b32 s{so}, s{so}, 2")
            a.I(f"s_add_u32 s{so}, s{so}, s{s_lw}")
            a.I(f"s_lshl_b32 s{so}, s{so}, 17")
            a.I(f"s_lshr_b32 s{st}, s2, 5")
            a.I(f"s_lshl_b32 s{st}, s{st}, 7")
            a.I(f"s_add_u32 s{so}, s{so}, s{st}")
            a.I(f"v_lshrrev_b32 {v(vo)}, 3, v0")
            a.I(f"v_lshlrev_b32 {v(vo)}, 12, {v(vo)}")
            a.I(f"v_and_b32 {v(vd)}, 7, v0")
            a.I(f"v_lshl_add_u32 {v(vo)}, {v(vd)}, 4, {v(vo)}")
            for j in range(n):
                for p in range(4):
                    a.I(f"s_add_u32 s{st}, s{so}, {p*8*4096}")
                    a.I(f"buffer_load_dwordx4 {v(vd,4)}, {v(vo)}, {s(srd,4)}, s{st} offen offset:{j*1024}")
        return f, 4 * n
    if kidx == 1 and cfg.get("w3", 0) >= 2:
        nl = cfg["w3"]
        def f():
            srd = 4; so = sa.get(); st = sa.get(); vo = va.get(); vd = va.get(4, 4)
            a.I(f"s_bitcmp1_b32 s2, {0 if cfg.get('m3', 0) else 2}")
            a.I(f"s_cselect_b32 s{srd}, s{P_WI}, s{P_WO}")
            a.I(f"s_cselect_b32 s{srd+1}, s{P_WI+1}, s{P_WO+1}")
            a.I(f"s_mov_b32 s{srd+2}, {1024*2048}")
            a.I(f"s_mov_b32 s{srd+3}, 0x00020000")
            a.I(f"s_lshr_b32 s{so}, s2, 3")
            a.I(f"s_lshl_b32 s{so}, s{so}, 2")
            a.I(f"s_add_u32 s{so}, s{so}, s{s_lw}")
            a.I(f"s_lshl_b32 s{so}, s{so}, 14")
            a.I(f"v_lshlrev_b32 {v(vo)}, 4, v0")
            for p in range(nl):
                a.I(f"buffer_load_dwordx4 {v(vd,4)}, {v(vo)}, {s(srd,4)}, s{so} offen offset:{p%4*1024}")
                if p % 4 == 3: a.I(f"s_add_u32 s{so}, s{so}, 4096")
        return f, nl
    if kidx == 1 and cfg.get("w3", 0):
        def f():
            srd = 4; so = sa.get(); st = sa.get(); vo = va.get(); vd = va.get(4, 4)
            a.I(f"s_bitcmp1_b32 s2, {0 if cfg.get('m3', 0) else 2}")
            a.I(f"s_cselect_b32 s{srd}, s{P_WI}, s{P_WO}")
            a.I(f"s_cselect_b32 s{srd+1}, s{P_WI+1}, s{P_WO+1}")
            a.I(f"s_mov_b32 s{srd+2}, {1024*2048}")
            a.I(f"s_mov_b32 s{srd+3}, 0x00020000")
            a.I(f"s_bfe_u32 s{so}, s2, 0x20001" if cfg.get("m3", 0) else f"s_and_b32 s{so}, s2, 3")
            a.I(f"s_lshl_b32 s{so}, s{so}, 5")
            a.I(f"s_lshr_b32 s{st}, s2, 3")
            a.I(f"s_add_u32 s{so}, s{so}, s{st}")
            a.I(f"s_lshl_b32 s{so}, s{so}, 2")
            a.I(f"s_add_u32 s{so}, s{so}, s{s_lw}")
            a.I(f"s_lshl_b32 s{so}, s{so}, 12")
            a.I(f"v_lshlrev_b32 {v(vo)}, 4, v0")
            for p in range(4):
                a.I(f"buffer_load_dwordx4 {v(vd,4)}, {v(vo)}, {s(srd,4)}, s{so} offen offset:{p*1024}")
            t3 = cfg.get("t3", 0)
            if t3 & 4:
                a.I(f"s_lshr_b32 s{so}, s2, 3")
                a.I(f"s_lshl_b32 s{so}, s{so}, 2")
                a.I(f"s_add_u32 s{so}, s{so}, s{s_lw}")
                a.I(f"s_lshl_b32 s{so}, s{so}, 14")
                a.I(f"v_and_b32 {v(vo)}, 3, v0")
                a.I(f"v_lshlrev_b32 {v(vo)}, 12, {v(vo)}")
                a.I(f"buffer_load_dword {v(vd)}, {v(vo)}, {s(srd,4)}, s{so} offen")
            if t3 & 8:
                a.I(f"s_mov_b64 s[{srd}:{srd+1}], s[{P_WS}:{P_WS+1}]")
                a.I(f"s_mov_b32 s{srd+2}, {WS_END}")
                a.I(f"s_bfe_u32 s{so}, s2, 0x20001" if cfg.get("m3", 0) else f"s_and_b32 s{so}, s2, 3")
                a.I(f"s_lshl_b32 s{so}, s{so}, 5")
                a.I(f"s_lshr_b32 s{st}, s2, 3")
                a.I(f"s_add_u32 s{so}, s{so}, s{st}")
                a.I(f"s_lshl_b32 s{so}, s{so}, 2")
                a.I(f"s_add_u32 s{so}, s{so}, s{s_lw}")
                a.I(f"s_lshl_b32 s{so}, s{so}, 13")
                a.I(f"s_add_u32 s{so}, s{so}, {WS_OF}")
                a.I(f"v_and_b32 {v(vo)}, 1, v0")
                a.I(f"v_lshlrev_b32 {v(vo)}, 12, {v(vo)}")
                a.I(f"v_bfe_u32 {v(vd)}, v0, 1, 2")
                a.I(f"v_min_u32 {v(vd)}, 2, {v(vd)}")
                a.I(f"v_lshl_add_u32 {v(vo)}, {v(vd)}, 22, {v(vo)}")
                a.I(f"buffer_load_dword {v(vd)}, {v(vo)}, {s(srd,4)}, s{so} offen sc1")
            if t3 & 3:
                assert not cfg.get("m3", 0)
                a.I(f"s_and_b32 s{so}, s2, 3")
                a.I(f"s_lshl_b32 s{so}, s{so}, 2")
                a.I(f"s_bfe_u32 s{st}, s2, 0x20003")
                a.I(f"s_add_u32 s{so}, s{so}, s{st}")
                a.I(f"s_lshl_b32 s{so}, s{so}, 2")
                a.I(f"s_add_u32 s{so}, s{so}, s{s_lw}")
            if t3 & 1:
                a.I(f"s_mov_b64 s[{srd}:{srd+1}], s[{P_WS}:{P_WS+1}]")
                a.I(f"s_mov_b32 s{srd+2}, {WS_END}")
                a.I(f"s_lshl_b32 s{st}, s{so}, 16")
                a.I(f"s_add_u32 s{st}, s{st}, {WS_PF}")
                a.I(f"v_and_b32 {v(vo)}, 1, v0")
                a.I(f"v_lshlrev_b32 {v(vo)}, 22, {v(vo)}")
                a.I(f"buffer_load_dword {v(vd)}, {v(vo)}, {s(srd,4)}, s{st} offen")
            if t3 & 2:
                a.I(f"s_mov_b64 s[{srd}:{srd+1}], s[{P_OUT}:{P_OUT+1}]")
                a.I(f"s_mov_b32 s{srd+2}, {2048*4096}")
                a.I(f"s_lshl_b32 s{st}, s{so}, 17")
                a.I(f"v_and_b32 {v(vo)}, 1, v0")
                a.I(f"v_lshlrev_b32 {v(vo)}, 16, {v(vo)}")
                a.I(f"buffer_load_dword {v(vd)}, {v(vo)}, {s(srd,4)}, s{st} offen")
        return f, 4 + bin(cfg.get("t3", 0)).count("1")
    return None, 0

def loader_main(a, pfx, sa, groups, T, N, nbar, cfg, kidx, tail=(None, 0)):
    if cfg.get("k0", 0) >> kidx & 1:
        for g in groups: g.kstep = 0
    s_boff = sa.get(); s_cnt = sa.get()
    a.I(f"s_mov_b32 s{s_boff}, 0")
    if cfg.get("rot", 0) >> {0: 1, 1: 8, 2: 2}[kidx] & 1:
        for g in groups:
            g.s_base = sa.get()
    rot = any(g.s_base is not None for g in groups)
    s_dummy = sa.get(2, 2)
    if rot:
        s_t = sa.get(); s_si = sa.get(); s_r = sa.get()
        a.I(f"s_mov_b32 s{s_t}, 0")
        a.I(f"s_lshr_b32 s{s_r}, s2, 3")
        a.I(f"s_lshr_b32 s{s_si}, s2, 5")
        a.I(f"s_add_u32 s{s_r}, s{s_r}, s{s_si}")
        for g in groups:
            if g.s_base is not None:
                assert g.delay == 0
                a.I(f"s_mov_b32 s{g.s_base}, s{g.s_k}")
    else: s_si = None
    steps = max(g.delay + (g.count or T) for g in groups)
    comp = [tuple(i for i, g in enumerate(groups) if 0 <= j - g.delay < (g.count or T)) for j in range(steps)]
    cnt = [sum(groups[i].per for i in c) for c in comp]
    def issue(j):
        gs = [groups[i] for i in comp[j]]
        if any(g.s_base is not None for g in gs):
            a.I(f"s_add_u32 s{s_si}, s{s_t}, s{s_r}")
            a.I(f"s_and_b32 s{s_si}, s{s_si}, 3")
            a.I(f"s_andn2_b32 s{s_dummy}, s{s_t}, 3")
            a.I(f"s_or_b32 s{s_si}, s{s_si}, s{s_dummy}")
            a.I(f"s_add_u32 s{s_t}, s{s_t}, 1")
        for g in gs:
            for t in g.issue(s_boff, s_si=s_si): a.I(t)
        a.I(f"s_add_u32 s{s_boff}, s{s_boff}, {SUB}")
        a.I(f"s_cmp_eq_u32 s{s_boff}, {N*SUB}")
        a.I(f"s_cselect_b32 s{s_boff}, 0, s{s_boff}")
    stamp(a, 4)
    first = cfg.get(f"first{kidx+1}", cfg.get("first", 2))
    ramp = cfg.get(f"ramp{kidx+1}", cfg.get("ramp", 2))
    for j in range(first): issue(j)
    stamp(a, 5)
    tail_at = cfg.get(f"tailat{kidx+1}", steps)
    recs = []; issued = first; extra = []
    tpos = None
    for k in range(nbar):
        w = None
        if k < steps:
            w = sum(cnt[k + 1:issued]) + sum(groups[i].per for i in comp[k] if isinstance(groups[i], WGroup))
            if tpos is not None and tpos > k: w += tail[1]
        n = max(0, min(ramp, min(k - 1 + N, steps - 1) + 1 - issued))
        js = list(range(issued, issued + n)); issued += n
        t = tail[0] is not None and tpos is None and issued >= tail_at
        if t: tpos = issued
        recs.append((w, js, t))
    assert issued == steps
    key = lambda r: (r[0], tuple(comp[j] for j in r[1]), r[2])
    k = 0; nl = 0
    while k < nbar:
        e = k + 1
        while e < nbar and k > 0 and key(recs[e]) == key(recs[k]): e += 1
        w, js, t = recs[k]
        if e - k >= 3:
            nl += 1
            a.I(f"s_mov_b32 s{s_cnt}, {e - k}")
            a.L(f"{pfx}_lloop{nl}")
        else: e = k + 1
        if w is not None: a.I(f"s_waitcnt vmcnt({w})")
        a.I("s_barrier")
        if k == 0: stamp(a, 2)
        for j in js: issue(j)
        if t: tail[0]()
        if e - k >= 3:
            a.I(f"s_sub_u32 s{s_cnt}, s{s_cnt}, 1")
            a.I(f"s_cmp_lg_u32 s{s_cnt}, 0")
            a.I(f"s_cbranch_scc1 {pfx}_lloop{nl}")
        k = e
    stamp(a, 3)
    stamp_out(a, kidx)
    a.I("s_endpgm")

M16 = "v_mfma_f32_16x16x32_bf16"
class RdRM:
    def __init__(self, a, va, s_base, blkoff, tmp, rho=False):
        t0, t1, t2 = tmp, tmp + 1, tmp + 2
        self.blkoff = blkoff
        self.rb = [[va.get() for u in range(2)] for t in range(2)]
        if rho:
            a.I(f"v_bfe_u32 {v(t0)}, v0, 2, 2")
            a.I(f"v_lshlrev_b32 {v(t0)}, 3, {v(t0)}")
            a.I(f"v_and_or_b32 {v(t0)}, v0, 3, {v(t0)}")
            a.I(f"v_bfe_u32 {v(t1)}, v0, 1, 1")
            a.I(f"v_bfe_u32 {v(t2)}, v0, 3, 1")
            a.I(f"v_lshl_or_b32 {v(t1)}, {v(t2)}, 1, {v(t1)}")
            a.I(f"v_and_or_b32 {v(t1)}, v0, 4, {v(t1)}")
        else:
            a.I(f"v_and_b32 {v(t0)}, 15, v0")
            a.I(f"v_bfe_u32 {v(t1)}, v0, 1, 3")
        a.I(f"v_lshlrev_b32 {v(t0)}, 7, {v(t0)}")
        a.I(f"v_add_u32 {v(t0)}, s{s_base}, {v(t0)}")
        a.I(f"v_lshrrev_b32 {v(t2)}, 4, v0")
        a.I(f"v_xor_b32 {v(t1)}, {v(t1)}, {v(t2)}")
        a.I(f"v_lshl_add_u32 {v(t0)}, {v(t1)}, 4, {v(t0)}")
        self.toff = 512 if rho else 2048
        for t in range(2):
            for u in range(2):
                a.I(f"v_xor_b32 {v(self.rb[t][u])}, {64*u + 32*t}, {v(t0)}")
    def read(self, blk, t, u, buf, dst):
        off = self.blkoff(blk) + buf * SUB + t * self.toff
        assert off < 65536
        return [f"ds_read_b128 {v(dst,4)}, {v(self.rb[t][u])} offset:{off}"]

class RdFM:
    def __init__(self, a, va, s_base, blkoff, tmp, kind="lin"):
        self.blkoff = blkoff; self.kind = kind
        self.rb = va.get()
        if kind == "lin":
            a.I(f"v_lshlrev_b32 {v(tmp)}, 4, v0")
        else:
            a.I(f"v_lshrrev_b32 {v(tmp)}, 4, v0")
            a.I(f"v_lshlrev_b32 {v(tmp)}, 5, {v(tmp)}")
            a.I(f"v_and_or_b32 {v(tmp)}, v0, 15, {v(tmp)}")
            a.I(f"v_lshlrev_b32 {v(tmp)}, 4, {v(tmp)}")
        a.I(f"v_add_u32 {v(self.rb)}, s{s_base}, {v(tmp)}")
    def read(self, blk, t, u, buf, dst):
        off = self.blkoff(blk) + buf * SUB + (t * 2048 + u * 1024 if self.kind == "lin" else t * 256 + u * 2048)
        assert off < 65536
        return [f"ds_read_b128 {v(dst,4)}, {v(self.rb)} offset:{off}"]

class RdTR:
    def __init__(self, a, va, sa, s_base, partoff, mode, s_half, tmp):
        t0, t1 = tmp, tmp + 1
        self.partoff = partoff; self.mode = mode
        a.I(f"v_bfe_u32 {v(t0)}, v0, 1, 1")
        a.I(f"v_bfe_u32 {v(t1)}, v0, 4, 1")
        a.I(f"v_lshl_or_b32 {v(t0)}, {v(t1)}, 1, {v(t0)}")
        a.I(f"v_bfe_u32 {v(t1)}, v0, 3, 1")
        a.I(f"v_lshl_or_b32 {v(t0)}, {v(t1)}, 2, {v(t0)}")
        if mode == "parts":
            st = sa.get()
            a.I(f"s_lshl_b32 s{st}, s{s_half}, 2")
            a.I(f"v_xor_b32 {v(t0)}, s{st}, {v(t0)}")
        a.I(f"v_lshlrev_b32 {v(t0)}, 4, {v(t0)}")
        a.I(f"v_bfe_u32 {v(t1)}, v0, 2, 2")
        a.I(f"v_lshl_add_u32 {v(t0)}, {v(t1)}, 7, {v(t0)}")
        a.I(f"v_and_b32 {v(t1)}, 1, v0")
        a.I(f"v_lshl_add_u32 {v(t0)}, {v(t1)}, 3, {v(t0)}")
        a.I(f"v_lshrrev_b32 {v(t1)}, 4, v0")
        a.I(f"v_lshl_add_u32 {v(t0)}, {v(t1)}, 10, {v(t0)}")
        n = 2 if mode == "parts" else 4
        self.rb = [va.get() for _ in range(n)]
        a.I(f"v_add_u32 {v(self.rb[0])}, s{s_base}, {v(t0)}")
        for c in range(1, n): a.I(f"v_xor_b32 {v(self.rb[c])}, {32*c}, {v(self.rb[0])}")
    def read(self, blk, t, u, buf, dst):
        out = []
        for hh in range(2):
            off = u * 4096 + hh * 512 + buf * SUB
            if self.mode == "parts": off += self.partoff * blk; rb = self.rb[t]
            else: rb = self.rb[2 * blk + t]
            assert off < 65536
            out.append(f"ds_read_b64_tr_b16 {v(dst+2*hh,2)}, {v(rb)} offset:{off}")
        return out

def gemm_regs(va, MB, NB):
    return ([[va.get(16, 4) for n in range(NB)] for m in range(MB)],
            [[[va.get(4, 4) for t in range(2)] for m in range(MB)] for _ in range(2)],
            [[[va.get(4, 4) for t in range(2)] for n in range(NB)] for _ in range(2)])

def gemm_compute(a, pfx, sa, R, C, MB, NB, swap, T, N, init_acc, regs, cfg, loop_top=None, off=0, pace=0, hook=None):
    acc, fr, fc = regs
    s_cnt = sa.get()
    pre_bar = cfg.get("prebar", 2)
    def reads(u, buf):
        out = []
        rl = [R.read(m, t, u, buf, fr[u][m][t]) for m in range(MB) for t in range(2)]
        cl = [C.read(n, t, u, buf, fc[u][n][t]) for n in range(NB) for t in range(2)]
        order = [rl[0], cl[0], cl[1], rl[1], cl[2], cl[3]] + rl[2:]
        for x in order: out += x
        return out
    def blk_mf(m, n, u):
        out = []
        for i in range(4):
            tr, tc = (i >> 1, (i ^ (i >> 1)) & 1)
            if swap: A_, B_, o = fc[u][n][tc], fr[u][m][tr], 8 * tr + 4 * tc
            else: A_, B_, o = fr[u][m][tr], fc[u][n][tc], 8 * tc + 4 * tr
            d = acc[m][n] + o
            out.append(f"{M16} {v(d,4)}, {v(A_,4)}, {v(B_,4)}, {v(d,4)}")
        return out
    blist = [(m, n) for m in range(MB) for n in range(NB)]
    def mfmas(u):
        out = []
        for (m, n) in blist: out += blk_mf(m, n, u)
        return out
    pcnt = [0, 0]
    def emit_seq(mf, fill, span=None):
        seq = interleave(mf, fill, span=span)
        for i, t in enumerate(seq):
            if off & 1 and t.startswith("v_mfma"): continue
            if off & 2 and t.startswith("ds_read"): continue
            if pace > 0 and t.startswith("v_mfma"): a.I(f"s_nop {pace-1}")
            if pace < 0 and t.startswith("v_mfma"):
                pcnt[0] += 1
                if pcnt[0] % 2 == cfg.get("pph", 1):
                    n = -pace - cfg.get("prd", 0) * pcnt[1]
                    while n > 0:
                        a.I(f"s_nop {min(n, 16) - 1}"); n -= 16
                    pcnt[1] = 0
            if t.startswith("ds_read"): pcnt[1] += 1
            a.I(t)
    init_acc(acc)
    a.I("s_barrier")
    stamp(a, 2)
    for t in reads(0, 0): a.I(t)
    nmf = 4 * MB * NB
    rspan = cfg.get("rspan", 70)
    def stage(buf, inloop=True):
        a.I("s_waitcnt lgkmcnt(0)")
        emit_seq(mfmas(0), reads(1, buf), span=nmf * rspan // 100)
        a.I("s_waitcnt lgkmcnt(0)")
        mf = mfmas(1)
        emit_seq(mf[:pre_bar], [])
        a.I("s_barrier")
        if hook and inloop: hook(buf, s_cnt)
        elif hook: hook(buf, s_cnt, False)
        emit_seq(mf[pre_bar:], reads(0, (buf + 1) % N), span=(nmf - pre_bar) * rspan // 100)
    nfull = T - 1
    niter = nfull // N
    a.I(f"s_mov_b32 s{s_cnt}, {niter}")
    a.L(f"{pfx}_loop")
    if loop_top: loop_top(s_cnt)
    for b in range(N): stage(b)
    if STAMP and cfg.get("itst", 0):
        for j in range(2):
            a.I(f"s_cmp_eq_u32 s{s_cnt}, {niter - j}")
            a.I(f"s_cbranch_scc0 {pfx}_its{j}")
            stamp(a, 4 + j)
            a.L(f"{pfx}_its{j}")
    a.I(f"s_sub_u32 s{s_cnt}, s{s_cnt}, 1")
    a.I(f"s_cmp_lg_u32 s{s_cnt}, 0")
    a.I(f"s_cbranch_scc1 {pfx}_loop")
    lp = cfg.get("lprio", 0) if pfx.startswith("k2") else 0
    for b in range(nfull - niter * N):
        if lp and nfull - niter * N - b == lp - 1: a.I("s_setprio 3")
        stage(b, False)
    if lp == 1: a.I("s_setprio 3")
    lbuf = (T - 1) % N
    def last(blocks, pre=(), lead=None, lag=None, post=None, xbar=0):
        nb = len(blist)
        if lead is None: lead = cfg.get("lead", 3 if nb > 4 else 2)
        if lag is None: lag = cfg.get("lag", 3)
        stamp(a, 3)
        a.I("s_waitcnt lgkmcnt(0)")
        mf = []
        for b in blist[:lead]: mf += blk_mf(*b, 0)
        rd = reads(1, lbuf)
        pre = list(pre)
        k = len(mf) * 2 // 3
        emit_seq(mf[:k], rd)
        npre = min(len(pre), 3 * (len(mf) - k))
        emit_seq(mf[k:], pre[:npre])
        pre = pre[npre:]
        a.I("s_waitcnt lgkmcnt(0)")
        xb = cfg.get("xbpos", 8)
        seq = []; done = {}
        for i, b in enumerate(blist):
            if i >= lead: seq += blk_mf(*b, 0)
            seq += blk_mf(*b, 1)
            if post: seq += post(i)
            done[i] = len(seq)
        q = [(0, t) for t in pre]
        for i in range(nb): q += [(done[i] + lag, t) for t in blocks[i]]
        per = cfg.get("tper", 3)
        for i, m_ in enumerate(seq):
            if not off & 1: a.I(m_)
            if xbar and i == xb: a.I("s_barrier")
            k = 0
            while q and q[0][0] <= i + 1 and k < per:
                a.I(q.pop(0)[1]); k += 1
        for _, t in q: a.I(t)
        for _ in range(xbar - 1): a.I("s_barrier")
    return last

def zero_acc(a):
    def f(acc):
        for row in acc:
            for r in row:
                for i in range(16): a.I(f"v_mov_b32 {v(r+i)}, 0")
    return f

def pack_ops(accr, dst, scale_s=None, neg=False, swap=False):
    out = []
    if scale_s is not None:
        for i in range(16): out.append(f"v_mul_f32 {v(accr+i)}, s{scale_s}, {v(accr+i)}")
    n = "-" if neg else ""
    for i in range(8):
        out.append(f"v_cvt_pk_bf16_f32 {v(dst+i)}, {n}{v(accr+2*i)}, {n}{v(accr+2*i+1)}")
    if swap:
        for g in range(2):
            out.append(f"v_permlane16_swap_b32 {v(dst+4*g)}, {v(dst+4*g+2)}")
            out.append(f"v_permlane16_swap_b32 {v(dst+4*g+1)}, {v(dst+4*g+3)}")
    return out

def gen_k1(a, cfg):
    name = "k1_kernel"
    N = 3; T = 16
    stm = cfg.get("st1", " sc1")
    RB = 0; CB = 4 * N * SUB
    kernel_head(a, name, 256)
    a.I("s_lshr_b32 s7, s4, 1")
    a.I("s_and_b32 s6, s4, 1")
    a.I("s_lshl_b32 s6, s6, 2")
    a.I("s_and_b32 s4, s5, 3")
    a.I("s_add_u32 s6, s6, s4")
    a.I("s_lshr_b32 s5, s5, 2")
    a.I(f"s_cmp_lt_u32 s{S_WAVE}, 4")
    a.I(f"s_cbranch_scc1 {name}_comp")
    va = Alloc(1, 256); sa = Alloc(S_FREE0, 76)
    tmp = va.get(4)
    srdx = sa.get(4, 4); srdw = sa.get(4, 4)
    s_lw = sa.get(); s_row = sa.get(); s_wbr = sa.get(); s_wbc = sa.get(); s_t = sa.get(); s_t2 = sa.get()
    a.I(f"s_sub_u32 s{s_lw}, s{S_WAVE}, 4")
    a.I(f"s_lshl_b32 s{s_row}, s6, 8")
    a.I(f"s_lshl_b32 s{s_t}, s{s_lw}, 6")
    a.I(f"s_add_u32 s{s_row}, s{s_row}, s{s_t}")
    a.I(f"s_mul_i32 s{s_wbr}, s{s_lw}, {N*SUB}")
    a.I(f"s_lshr_b32 s{s_t}, s{s_lw}, 1")
    a.I(f"s_mul_i32 s{s_wbc}, s{s_t}, {N*SUB}")
    a.I(f"s_and_b32 s{s_t2}, s{s_lw}, 1")
    a.I(f"s_lshl_b32 s{s_t2}, s{s_t2}, 12")
    a.I(f"s_add_u32 s{s_wbc}, s{s_wbc}, s{s_t2}")
    a.I(f"s_add_u32 s{s_wbc}, s{s_wbc}, {CB}")
    gR = lset_rm(a, va, sa, srdx, s_row, 8, 2048, s_wbr, tmp)
    a.I(f"s_mov_b32 s{srdx+2}, {2048*2048}")
    a.I(f"s_mov_b32 s{srdx+3}, 0x00020000")
    a.I(f"s_mov_b32 s{srdw+3}, 0x00020000")
    a.I("s_cmp_eq_u32 s7, 3")
    a.I(f"s_cbranch_scc1 {name}_lda")
    save = (va.n, sa.n)
    s_col = sa.get(); s_kr = sa.get()
    a.I(f"s_lshl_b32 s{s_col}, s7, 11")
    a.I(f"s_lshl_b32 s{s_kr}, s5, 8")
    a.I(f"s_add_u32 s{s_col}, s{s_col}, s{s_kr}")
    a.I(f"s_lshl_b32 s{s_t}, s{s_t}, 7")
    a.I(f"s_add_u32 s{s_col}, s{s_col}, s{s_t}")
    a.I(f"s_lshr_b32 s{s_kr}, s{s_t2}, 7")
    gC = lset_tr(a, va, sa, srdw, s_kr, s_col, 6144, s_wbc, tmp)
    a.I(f"s_mov_b32 s{srdw+2}, {1024*6144}")
    a.I("s_waitcnt lgkmcnt(0)")
    a.I(f"s_mov_b64 s[{srdx}:{srdx+1}], s[{P_BX}:{P_BX+1}]")
    a.I(f"s_mov_b64 s[{srdw}:{srdw+1}], s[{P_WQKV}:{P_WQKV+1}]")
    loader_main(a, "k1q", sa, [gR, gC], T, N, T, cfg, 0, warm_next(a, va, sa, cfg, 0, s_lw))
    hv = va.hi; hs = sa.hi
    a.L(f"{name}_lda")
    va.n, sa.n = save
    s_r2 = sa.get()
    a.I(f"s_lshl_b32 s{s_r2}, s5, 7")
    a.I(f"s_lshl_b32 s{s_t}, s{s_lw}, 5")
    a.I(f"s_add_u32 s{s_r2}, s{s_r2}, s{s_t}")
    gC = lset_rm(a, va, sa, srdw, s_r2, 4, 2048, s_wbc, tmp)
    a.I(f"s_mov_b32 s{srdw+2}, {1024*2048}")
    a.I("s_waitcnt lgkmcnt(0)")
    a.I(f"s_mov_b64 s[{srdx}:{srdx+1}], s[{P_AX}:{P_AX+1}]")
    a.I(f"s_mov_b64 s[{srdw}:{srdw+1}], s[{P_WR}:{P_WR+1}]")
    loader_main(a, "k1a", sa, [gR, gC], T, N, T, cfg, 0, warm_next(a, va, sa, cfg, 0, s_lw))
    hv = max(hv, va.hi); hs = max(hs, sa.hi)
    a.L(f"{name}_comp")
    va = Alloc(1, 256); sa = Alloc(S_FREE0, 76)
    tmp = va.get(3)
    vst = va.get(2)
    srdo = sa.get(4, 4)
    s_wm = sa.get(); s_wn = sa.get(); s_b = sa.get(); s_o = sa.get(); s_t = sa.get(); s_sc = sa.get(); s_sb = sa.get(); s_rb = sa.get()
    a.I(f"s_lshr_b32 s{s_wm}, s{S_WAVE}, 1")
    a.I(f"s_and_b32 s{s_wn}, s{S_WAVE}, 1")
    a.I(f"s_mul_i32 s{s_rb}, s{s_wm}, {2*N*SUB}")
    rblk = lambda m: (m >> 1) * N * SUB + (m & 1) * 4096
    regs = gemm_regs(va, 4, 2)
    acc = regs[0]
    a.I(f"s_lshl_b32 s{s_sb}, s6, 3")
    a.I(f"s_lshl_b32 s{s_t}, s{s_wm}, 2")
    a.I(f"s_add_u32 s{s_sb}, s{s_sb}, s{s_t}")
    a.I(f"v_lshlrev_b32 {v(vst)}, 4, v0")
    a.I(f"s_mov_b32 s{srdo+2}, {WS_OF}")
    a.I(f"s_mov_b32 s{srdo+3}, 0x00020000")
    pf1 = [cfg.get("pf1" + c, None) for c in "abc"]
    hook = None
    if pf1[0] is not None:
        srdp = sa.get(4, 4); s_pfo = sa.get(); s_pfs = sa.get(); vpf = va.get(); vdum = va.get()
        a.I(f"s_mov_b32 s{srdp+3}, 0x00020000")
        a.I(f"s_and_b32 s{s_pfo}, s6, 3")
        a.I(f"s_cmp_lg_u32 s7, 3")
        a.I(f"s_cselect_b32 s{s_t}, s{s_wm}, 0")
        a.I(f"s_cmp_eq_u32 s{s_t}, 1")
        a.I(f"s_cbranch_scc1 {name}_pft")
        a.I(f"s_lshl_b32 s{s_t}, s5, 2")
        a.I(f"s_add_u32 s{s_t}, s{s_t}, s{s_pfo}")
        a.I(f"s_lshl_b32 s{s_pfs}, s6, 3")
        a.I(f"s_add_u32 s{s_pfs}, s{s_pfs}, s5")
        a.I(f"s_cmp_eq_u32 s{s_wm}, 1")
        a.I(f"s_cselect_b32 s{s_t}, s{s_t}, s{s_pfs}")
        a.I(f"s_cselect_b32 s{srdp+2}, {1024*2048}, {2048*2048}" if False else f"s_cselect_b32 s{srdp+2}, 1, 2")
        a.I(f"s_lshl_b32 s{srdp+2}, s{srdp+2}, 21")
        a.I(f"s_lshl_b32 s{s_t}, s{s_t}, 1")
        a.I(f"s_add_u32 s{s_t}, s{s_t}, s{s_wn}")
        a.I(f"s_lshl_b32 s{s_pfo}, s{s_t}, 15")
        a.I(f"s_mov_b32 s{s_pfs}, 512")
        a.I(f"v_lshrrev_b32 {v(vpf)}, 2, v0")
        a.I(f"v_lshlrev_b32 {v(vpf)}, 4, {v(vpf)}")
        a.I(f"v_and_or_b32 {v(vpf)}, v0, 3, {v(vpf)}")
        a.I(f"v_lshlrev_b32 {v(vpf)}, 7, {v(vpf)}")
        a.I("s_waitcnt lgkmcnt(0)")
        a.I(f"s_cmp_eq_u32 s7, 3")
        a.I(f"s_cselect_b32 s{srdp}, s{P_AX}, s{P_BX}")
        a.I(f"s_cselect_b32 s{srdp+1}, s{P_AX+1}, s{P_BX+1}")
        a.I(f"s_cmp_eq_u32 s{s_wm}, 1")
        a.I(f"s_cselect_b32 s{srdp}, s{P_WR}, s{srdp}")
        a.I(f"s_cselect_b32 s{srdp+1}, s{P_WR+1}, s{srdp+1}")
        a.I(f"s_branch {name}_pfd")
        a.L(f"{name}_pft")
        a.I(f"s_lshl_b32 s{s_pfo}, s{s_pfo}, 1")
        a.I(f"s_add_u32 s{s_pfo}, s{s_pfo}, s{s_wn}")
        a.I(f"s_mul_i32 s{s_pfo}, s{s_pfo}, {32*6144}")
        a.I(f"s_lshl_b32 s{s_t}, s7, 3")
        a.I(f"s_add_u32 s{s_t}, s{s_t}, s5")
        a.I(f"s_lshl_b32 s{s_t}, s{s_t}, 8")
        a.I(f"s_add_u32 s{s_pfo}, s{s_pfo}, s{s_t}")
        a.I(f"s_mov_b32 s{s_pfs}, {256*6144}")
        a.I(f"s_mov_b32 s{srdp+2}, {1024*6144}")
        a.I(f"v_lshrrev_b32 {v(vpf)}, 1, v0")
        a.I(f"v_mul_u32_u24 {v(vpf)}, 48, {v(vpf)}")
        a.I(f"v_and_or_b32 {v(vpf)}, v0, 1, {v(vpf)}")
        a.I(f"v_lshlrev_b32 {v(vpf)}, 7, {v(vpf)}")
        a.I("s_waitcnt lgkmcnt(0)")
        a.I(f"s_mov_b64 s[{srdp}:{srdp+1}], s[{P_WQKV}:{P_WQKV+1}]")
        a.L(f"{name}_pfd")
        def pf_issue():
            a.I(f"s_add_u32 s{s_pfo}, s{s_pfo}, s{s_pfs}")
            a.I(f"buffer_load_dword {v(vdum)}, {v(vpf)}, {s(srdp,4)}, s{s_pfo} offen")
        if cfg.get("pf1s", 0): a.I(f"s_sleep {cfg['pf1s']}")
        for st_ in pf1:
            if st_ is not None and st_ < 0: pf_issue()
        hcnt = [0]
        def hook(buf, s_cnt):
            for st_ in sorted(set(x for x in pf1 if x is not None and x >= 0)):
                if st_ % N != buf: continue
                hcnt[0] += 1
                a.I(f"s_cmp_eq_u32 s{s_cnt}, {(T - 1) // N - st_ // N}")
                a.I(f"s_cbranch_scc0 {name}_pfh{hcnt[0]}")
                for _ in range(pf1.count(st_)): pf_issue()
                a.L(f"{name}_pfh{hcnt[0]}")
    def mk_blocks(scale, off_fn, mstep_s):
        blocks = []
        for m in range(4):
            for n in range(2):
                d = acc[m][n]
                ops = pack_ops(d, d, scale)
                for j in range(2):
                    ops.append(f"buffer_store_dwordx4 {v(d+4*j,4)}, {v(vst+n)}, {s(srdo,4)}, s{s_o} offen offset:{off_fn(m, j)}{stm}")
                if n == 1 and mstep_s(m) is not None:
                    ops.append(f"s_add_u32 s{s_o}, s{s_o}, {mstep_s(m)}")
                blocks.append(ops)
        return blocks
    def fin():
        stamp_out(a, 0)
        a.I("s_endpgm")
    a.I("s_cmp_eq_u32 s7, 3")
    a.I(f"s_cbranch_scc1 {name}_ca")
    save = (va.n, sa.n)
    a.I(f"s_mov_b32 s{s_b}, {CB}")
    C = RdTR(a, va, sa, s_b, N * SUB, "parts", s_wn, tmp)
    s_h = sa.get()
    a.I(f"s_lshl_b32 s{s_h}, s5, 2")
    a.I(f"s_add_u32 s{s_h}, s{s_h}, s{s_wn}")
    a.I("s_cmp_eq_u32 s7, 0")
    a.I(f"s_cbranch_scc1 {name}_cq")
    a.I(f"s_mul_i32 s{s_o}, s{s_h}, {KV_HSTRIDE}")
    a.I(f"s_lshl_b32 s{s_t}, s{s_sb}, 12")
    a.I(f"s_add_u32 s{s_o}, s{s_o}, s{s_t}")
    a.I(f"s_add_u32 s{s_o}, s{s_o}, {WS_KV}")
    a.I(f"v_add_u32 {v(vst+1)}, {2*KV_HSTRIDE}, {v(vst)}")
    a.I("s_cmp_eq_u32 s7, 2")
    a.I(f"s_cbranch_scc1 {name}_cv")
    a.I(f"s_branch {name}_cqk")
    a.L(f"{name}_cq")
    a.I(f"s_lshl_b32 s{s_o}, s{s_h}, 6")
    a.I(f"s_add_u32 s{s_o}, s{s_o}, s{s_sb}")
    a.I(f"s_lshl_b32 s{s_o}, s{s_o}, 11")
    a.I(f"s_add_u32 s{s_o}, s{s_o}, {WS_QF}")
    a.I(f"v_add_u32 {v(vst+1)}, {2*64*2048}, {v(vst)}")
    a.I(f"s_mov_b32 s{s_sc}, {f32hex(QSCALE)}")
    a.L(f"{name}_cqk")
    save2 = (va.n, sa.n)
    R = RdRM(a, va, s_rb, rblk, tmp)
    a.I("s_waitcnt lgkmcnt(0)")
    a.I(f"s_mov_b64 s[{srdo}:{srdo+1}], s[{P_WS}:{P_WS+1}]")
    last = gemm_compute(a, "k1qk", sa, R, C, 4, 2, True, T, N, zero_acc(a), regs, cfg, hook=hook)
    a.I("s_cmp_eq_u32 s7, 0")
    a.I(f"s_cbranch_scc0 {name}_tk")
    last(mk_blocks(s_sc, lambda m, j: j * 1024, lambda m: 2048)); fin()
    a.L(f"{name}_tk")
    last(mk_blocks(None, lambda m, j: j * 1024, lambda m: 4096)); fin()
    hv = max(hv, va.hi); hs = max(hs, sa.hi)
    a.L(f"{name}_cv")
    va.n, sa.n = save2
    R = RdRM(a, va, s_rb, rblk, tmp, rho=True)
    a.I(f"s_add_u32 s{s_o}, s{s_o}, 4096")
    a.I("s_waitcnt lgkmcnt(0)")
    a.I(f"s_mov_b64 s[{srdo}:{srdo+1}], s[{P_WS}:{P_WS+1}]")
    last = gemm_compute(a, "k1v", sa, R, C, 4, 2, False, T, N, zero_acc(a), regs, cfg, hook=hook)
    last(mk_blocks(None, lambda m, j: 2048 + j * 1024, lambda m: 4096)); fin()
    hv = max(hv, va.hi); hs = max(hs, sa.hi)
    a.L(f"{name}_ca")
    va.n, sa.n = save
    R = RdRM(a, va, s_rb, rblk, tmp, rho=True)
    a.I(f"s_lshl_b32 s{s_b}, s{s_wn}, 12")
    a.I(f"s_add_u32 s{s_b}, s{s_b}, {CB}")
    C = RdRM(a, va, s_b, lambda n: n * N * SUB, tmp)
    a.I(f"s_lshl_b32 s{s_o}, s5, 2")
    a.I(f"s_add_u32 s{s_o}, s{s_o}, s{s_wn}")
    a.I(f"s_lshl_b32 s{s_o}, s{s_o}, 17")
    a.I(f"s_lshl_b32 s{s_t}, s{s_sb}, 11")
    a.I(f"s_add_u32 s{s_o}, s{s_o}, s{s_t}")
    if WS_AF: a.I(f"s_add_u32 s{s_o}, s{s_o}, {WS_AF}")
    a.I(f"v_add_u32 {v(vst+1)}, {2<<17}, {v(vst)}")
    a.I("s_waitcnt lgkmcnt(0)")
    a.I(f"s_mov_b64 s[{srdo}:{srdo+1}], s[{P_WS}:{P_WS+1}]")
    last = gemm_compute(a, "k1a", sa, R, C, 4, 2, False, T, N, zero_acc(a), regs, cfg, hook=hook)
    last(mk_blocks(None, lambda m, j: j * 2048 + (m & 1) * 1024, lambda m: 4096 if m == 1 else None)); fin()
    hv = max(hv, va.hi); hs = max(hs, sa.hi)
    kernel_tail(a, name)
    return dict(name=name, grid=256, block=512, lds=6*N*SUB, vgpr=hv, sgpr=hs)

MBIAS = 96.0
def att_role(a, cfg, N, kvoff):
    stm = cfg.get("st2", " sc1")
    va = Alloc(1, 168); sa = Alloc(S_FREE0, 76)
    vl16 = 0
    vkv = va.get(); vkg = va.get()
    L = [va.get(4, 2) for _ in range(2)]
    Q = [[va.get(4, 2) for j in range(2)] for qb in range(2)]
    NM = va.get(16, 2)
    VA = va.get(4, 2); VI = va.get()
    S = [va.get(16, 2) for _ in range(2)]
    O = [va.get(16, 2) for _ in range(2)]
    P = [va.get(8, 2) for _ in range(2)]
    K = [[va.get(4, 2) for j in range(2)] for b in range(2)]
    V = [[va.get(4, 2) for j in range(2)] for b in range(2)]
    srd = sa.get(4, 4)
    s_h = sa.get(); s_sb = sa.get(); s_q = sa.get(); s_kv = sa.get(); s_t = sa.get(); s_fb = sa.get()
    s_cnt = sa.get()
    a.I(f"s_lshl_b32 s{s_h}, s4, 2")
    a.I(f"s_lshr_b32 s{s_t}, s5, 3")
    a.I(f"s_add_u32 s{s_h}, s{s_h}, s{s_t}")
    a.I(f"s_and_b32 s{s_sb}, s5, 7")
    a.I(f"s_lshl_b32 s{s_sb}, s{s_sb}, 3")
    a.I(f"s_lshl_b32 s{s_t}, s{S_WAVE}, 1")
    a.I(f"s_add_u32 s{s_sb}, s{s_sb}, s{s_t}")
    a.I(f"s_lshl_b32 s{s_q}, s{s_h}, 6")
    a.I(f"s_add_u32 s{s_q}, s{s_q}, s{s_sb}")
    a.I(f"s_lshl_b32 s{s_q}, s{s_q}, 11")
    a.I(f"s_add_u32 s{s_q}, s{s_q}, {WS_QF}")
    a.I(f"s_mul_i32 s{s_kv}, s{s_h}, {KV_HSTRIDE}")
    a.I(f"s_add_u32 s{s_kv}, s{s_kv}, {WS_KV}")
    vq = S[0]; t0 = S[0] + 1; t1 = S[0] + 2
    a.I(f"v_bfe_u32 {v(t0)}, v0, 4, 1")
    a.I(f"v_lshlrev_b32 {v(t0)}, 6, {v(t0)}")
    a.I(f"v_lshrrev_b32 {v(t1)}, 5, v0")
    a.I(f"v_lshl_or_b32 {v(t0)}, {v(t1)}, 4, {v(t0)}")
    a.I(f"v_and_or_b32 {v(vq)}, v0, 15, {v(t0)}")
    a.I(f"v_lshlrev_b32 {v(vq)}, 4, {v(vq)}")
    a.I(f"v_and_or_b32 {v(t0)}, v0, 3, {v(t0)}")
    a.I(f"v_bfe_u32 {v(t1)}, v0, 2, 1")
    a.I(f"v_lshl_or_b32 {v(t0)}, {v(t1)}, 3, {v(t0)}")
    a.I(f"v_bfe_u32 {v(t1)}, v0, 3, 1")
    a.I(f"v_lshl_or_b32 {v(t0)}, {v(t1)}, 2, {v(t0)}")
    a.I(f"v_lshlrev_b32 {v(vkg)}, 4, {v(t0)}")
    a.I(f"s_mov_b32 s{srd+2}, {WS_PF}")
    a.I(f"s_mov_b32 s{srd+3}, 0x00020000")
    skew = cfg.get("skew", 0); qlate = cfg.get("qlate", 0)
    a.I("s_waitcnt lgkmcnt(0)")
    a.I(f"s_mov_b64 s[{srd}:{srd+1}], s[{P_WS}:{P_WS+1}]")
    for _ in range(qlate): a.I("s_barrier")
    for j in range(2):
        a.I(f"buffer_load_dwordx4 {v(K[0][j],4)}, {v(vkg)}, {s(srd,4)}, s{s_kv} offen offset:{j*512}")
    for qb in range(2):
        for j in range(2):
            a.I(f"buffer_load_dwordx4 {v(Q[qb][j],4)}, {v(vq)}, {s(srd,4)}, s{s_q} offen offset:{qb*2048+j*512}")
    a.I(f"v_bfe_i32 {v(VI)}, v0, 2, 1")
    a.I(f"v_and_b32 {v(VA+2)}, 0x3f803f80, {v(VI)}")
    a.I(f"v_xor_b32 {v(VA)}, 0x3f803f80, {v(VA+2)}")
    a.I(f"v_mov_b32 {v(VA+3)}, {v(VA+2)}")
    a.I(f"v_mov_b32 {v(VA+1)}, {v(VA)}")
    a.I(f"v_and_b32 {v(VI)}, 1, v0")
    a.I(f"v_mul_u32_u24 {v(VI)}, 0xaaaa, {v(VI)}")
    a.I(f"v_add_u32 {v(VI)}, 0x4444, {v(VI)}")
    a.I(f"v_lshlrev_b32 {v(vl16)}, 4, v0")
    a.I(f"v_add_u32 {v(vkv)}, {kvoff}, {v(vkg)}")
    a.I(f"s_mov_b32 s{s_fb}, 0")
    def zero_state():
        for qb in range(2):
            for i in range(16): a.I(f"v_mov_b32 {v(O[qb]+i)}, 0")
            for i in range(4): a.I(f"v_mov_b32 {v(L[qb]+i)}, 0")
    zero_state()
    for i in range(8): a.I(f"v_mov_b32 {v(P[1]+i)}, 0")
    for j in range(2):
        for i in range(4): a.I(f"v_mov_b32 {v(V[0][j]+i)}, 0")
    def s_mfma(qb, kbuf, c):
        return [f"{MF} {v(S[qb],16)}, {v(K[kbuf][0],4)}, {v(Q[qb][0],4)}, {c}",
                f"{MF} {v(S[qb],16)}, {v(K[kbuf][1],4)}, {v(Q[qb][1],4)}, {v(S[qb],16)}"]
    def pv_mfma(qb, vbuf):
        return [f"{MF} {v(O[qb],16)}, {v(V[vbuf][j],4)}, {v(P[qb]+4*j,4)}, {v(O[qb],16)}" for j in range(2)]
    def sm_mfma(qb):
        return f"v_smfmac_f32_16x16x64_bf16 {v(L[qb],4)}, {v(VA,4)}, {v(P[qb],8)}, {v(VI)}"
    def max16(dst, sreg, first):
        i = 0
        if first:
            a.I(f"v_max3_f32 {v(dst)}, {v(sreg)}, {v(sreg+1)}, {v(sreg+2)}"); i = 3
        while i < 16:
            if i + 1 < 16:
                a.I(f"v_max3_f32 {v(dst)}, {v(dst)}, {v(sreg+i)}, {v(sreg+i+1)}"); i += 2
            else:
                a.I(f"v_max_f32 {v(dst)}, {v(dst)}, {v(sreg+i)}"); i += 1
    def valu_groups(qb):
        gs = []
        for g in range(4):
            r = S[qb] + 4 * g
            x = [f"v_exp_f32 {v(r+i)}, {v(r+i)}" for i in range(4)]
            for h in range(2):
                x.append(f"v_cvt_pk_bf16_f32 {v(P[qb]+2*g+h)}, {v(r+2*h)}, {v(r+2*h+1)}")
            gs.append(x)
        return gs
    tmp = P[0]
    nb1 = max(0, min(skew - qlate, cfg.get("qbar", 1)))
    for _ in range(nb1): a.I("s_barrier")
    a.I("s_waitcnt vmcnt(0)")
    for qb in range(2):
        for t in s_mfma(qb, 0, "0"): a.I(t)
    for qb in range(2): max16(tmp + qb, S[qb], True)
    a.I(f"v_permlane32_swap_b32 {v(tmp)}, {v(tmp+1)}")
    a.I(f"v_max_f32 {v(tmp)}, {v(tmp)}, {v(tmp+1)}")
    a.I(f"v_mov_b32 {v(tmp+1)}, {v(tmp)}")
    a.I(f"v_permlane32_swap_b32 {v(tmp)}, {v(tmp+1)}")
    a.I(f"v_min_f32 {v(tmp)}, {v(tmp)}, {v(tmp+1)}")
    a.I(f"v_sub_f32 {v(NM)}, {f32hex(-MBIAS)}, {v(tmp)}")
    for i in range(16): a.I(f"v_add_f32 {v(S[0]+i)}, {v(NM)}, {v(S[0]+i)}")
    for i in range(1, 16): a.I(f"v_mov_b32 {v(NM+i)}, {v(NM)}")
    a.I(f"s_mov_b32 s{s_cnt}, {32 // N}")
    for _ in range(skew - qlate - nb1): a.I("s_barrier")
    a.I("s_barrier")
    stamp(a, 2)
    a.L("att_loop")
    for buf in range(N):
        for sl in range(4):
            qb = sl % 2; o = 1 - qb
            kbuf = ((sl + 1) // 2) % 2
            vbuf = (((sl - 1) // 2) + 1) % 2
            m = s_mfma(o, kbuf, v(NM, 16)) + pv_mfma(o, vbuf)
            gs = valu_groups(qb)
            gs[cfg.get("smpos", 3)].insert(cfg.get("smoff", 3), sm_mfma(o))
            if sl % 2 == 1: a.I("s_waitcnt lgkmcnt(0)")
            extra = [[], [], [], []]
            if sl == 3: extra[0] = ["s_barrier"] if buf < N - 1 else ["s_cbranch_scc0 att_nobar", "s_barrier", "att_nobar:"]
            if sl % 2 == 0:
                rb = (sl // 2 + 1) % 2
                ro = (sl // 2) * 4096 + (buf + skew) % N * SUB
                kr = [f"ds_read_b128 {v(K[rb][j],4)}, {v(vkv)} offset:{ro + j*512}" for j in range(2)]
                vr = [f"ds_read_b128 {v(V[rb][j],4)}, {v(vkv)} offset:{ro + 2048 + j*512}" for j in range(2)]
                if cfg.get("rd1", 0): extra = [[kr[0]], [kr[1]], [vr[0]], [vr[1]]]
                else: extra[0] = kr; extra[1] = vr
            if sl == 1 and buf == N - 1:
                extra[1] = [f"s_sub_u32 s{s_cnt}, s{s_cnt}, 1"]
                extra[2] = [f"s_cmp_lg_u32 s{s_cnt}, 0"]
            for g in range(4):
                if not cfg.get("attoff", 0) & 1: a.I(m[g])
                for t in extra[g]:
                    if t.endswith(":"): a.L(t[:-1])
                    elif not (cfg.get("attoff", 0) & 4 and t.startswith("ds_read")): a.I(t)
                if not cfg.get("attoff", 0) & 2:
                    for t in gs[g]: a.I(t)
    a.I("s_cbranch_scc1 att_loop")
    stamp(a, 3)
    a.I(sm_mfma(1))
    for t in pv_mfma(1, 0): a.I(t)
    tmp = S[0]
    a.L("att_fin")
    a.I(f"s_lshl_b32 s{s_t}, s{s_sb}, 16")
    a.I(f"s_lshl_b32 s{s_q}, s{s_h}, 11")
    a.I(f"s_add_u32 s{s_t}, s{s_t}, s{s_q}")
    a.I(f"s_add_u32 s{s_t}, s{s_t}, {WS_OF}")
    for qb in range(2):
        a.I(f"v_add_f32 {v(L[qb])}, {v(L[qb])}, {v(L[qb]+1)}")
    a.I(f"v_add_u32 {v(tmp+4)}, 0x10000, {v(vl16)}")
    a.I(f"v_rcp_f32 {v(tmp+2)}, {v(L[0])}")
    a.I(f"v_rcp_f32 {v(tmp+3)}, {v(L[1])}")
    a.I(f"s_cmp_lg_u32 s{s_fb}, 0")
    a.I("s_cbranch_scc1 att_store")
    a.I(f"v_max_f32 {v(tmp)}, {v(L[0])}, {v(L[1])}")
    a.I(f"v_mul_f32 {v(tmp+1)}, 0, {v(L[0])}")
    a.I(f"v_mul_f32 {v(tmp+5)}, 0, {v(L[1])}")
    for i in range(16): a.I(f"v_fmac_f32 {v(tmp+1)}, 0, {v(O[0]+i)}")
    for i in range(16): a.I(f"v_fmac_f32 {v(tmp+5)}, 0, {v(O[1]+i)}")
    a.I(f"v_add_f32 {v(tmp)}, {v(tmp)}, {v(tmp+1)}")
    a.I(f"v_add_f32 {v(tmp)}, {v(tmp)}, {v(tmp+5)}")
    a.I(f"v_cmp_ngt_f32 vcc, {f32hex(2.0**120)}, {v(tmp)}")
    if not cfg.get("attoff", 0): a.I("s_cbranch_vccnz att_fallback")
    a.L("att_store")
    for qb in range(2):
        for i in range(16): a.I(f"v_mul_f32 {v(O[qb]+i)}, {v(tmp+2+qb)}, {v(O[qb]+i)}")
        for t in pack_ops(O[qb], P[qb]): a.I(t)
        for j in range(2):
            a.I(f"buffer_store_dwordx4 {v(P[qb]+4*j,4)}, {v(vl16 if qb == 0 else tmp+4)}, {s(srd,4)}, s{s_t} offen offset:{j*1024}{stm}")
    stamp_out(a, 1)
    a.I("s_endpgm")
    tmp = P[0]
    a.L("att_fallback")
    a.I(f"s_mov_b32 s{s_fb}, 1")
    a.I(f"s_mov_b32 s{s_t}, s{s_kv}")
    a.I(f"s_mov_b32 s{s_cnt}, 0")
    a.I(f"v_mov_b32 {v(tmp+2)}, 0xff800000")
    a.I(f"v_mov_b32 {v(tmp+3)}, 0xff800000")
    a.L("att_fb1")
    for j in range(2):
        a.I(f"buffer_load_dwordx4 {v(K[0][j],4)}, {v(vkg)}, {s(srd,4)}, s{s_t} offen offset:{j*512}")
    a.I("s_waitcnt vmcnt(0)")
    for qb in range(2):
        for t in s_mfma(qb, 0, "0"): a.I(t)
    for qb in range(2): max16(tmp + 2 + qb, S[qb], False)
    a.I(f"s_add_u32 s{s_t}, s{s_t}, 4096")
    a.I(f"s_add_u32 s{s_cnt}, s{s_cnt}, 1")
    a.I(f"s_cmp_lt_u32 s{s_cnt}, 64")
    a.I("s_cbranch_scc1 att_fb1")
    for qb in range(2):
        a.I(f"v_mov_b32 {v(NM+qb)}, {v(tmp+2+qb)}")
        a.I(f"v_permlane32_swap_b32 {v(NM+qb)}, {v(tmp+2+qb)}")
        a.I(f"v_max_f32 {v(NM+qb)}, {v(NM+qb)}, {v(tmp+2+qb)}")
    zero_state()
    a.I(f"s_mov_b32 s{s_t}, s{s_kv}")
    a.I(f"s_mov_b32 s{s_cnt}, 0")
    va2 = K[1][0]
    a.I(f"v_add_u32 {v(va2)}, 4096, {v(vkg)}")
    a.L("att_fb2")
    for j in range(2):
        a.I(f"buffer_load_dwordx4 {v(K[0][j],4)}, {v(vkg)}, {s(srd,4)}, s{s_t} offen offset:{j*512}")
        a.I(f"buffer_load_dwordx4 {v(V[0][j],4)}, {v(va2)}, {s(srd,4)}, s{s_t} offen offset:{2048+j*512}")
    a.I("s_waitcnt vmcnt(0)")
    for qb in range(2):
        for t in s_mfma(qb, 0, "0"): a.I(t)
    for qb in range(2):
        for i in range(16): a.I(f"v_sub_f32 {v(S[qb]+i)}, {v(S[qb]+i)}, {v(NM+qb)}")
        for g in valu_groups(qb):
            for t in g: a.I(t)
        for t in pv_mfma(qb, 0): a.I(t)
        a.I(sm_mfma(qb))
    a.I(f"s_add_u32 s{s_t}, s{s_t}, 4096")
    a.I(f"s_add_u32 s{s_cnt}, s{s_cnt}, 1")
    a.I(f"s_cmp_lt_u32 s{s_cnt}, 64")
    a.I("s_cbranch_scc1 att_fb2")
    a.I("s_branch att_fin")
    return va.hi, sa.hi

def gen_k2(a, cfg):
    name = "k2_kernel"
    N = 4; T = 32
    stm = cfg.get("st2", " sc1")
    RB = 0; CB = 2 * N * SUB; KB = 4 * N * SUB
    kernel_head(a, name, 256)
    a.I(f"s_cmp_ge_u32 s{S_WAVE}, 4")
    a.I(f"s_cbranch_scc1 {name}_g3")
    if cfg.get("prio_att"): a.I(f"s_setprio {cfg['prio_att']}")
    hv, hs = att_role(a, cfg, N, KB)
    a.L(f"{name}_g3")
    sa = Alloc(S_FREE0, 76)
    s_tb = sa.get(); s_eb = sa.get(); s_t = sa.get(); s_t2 = sa.get()
    a.I("s_and_b32 s7, s4, 1")
    a.I(f"s_lshr_b32 s{s_tb}, s4, 1")
    a.I(f"s_lshl_b32 s{s_tb}, s{s_tb}, 2")
    a.I(f"s_and_b32 s{s_t}, s5, 3")
    a.I(f"s_add_u32 s{s_tb}, s{s_tb}, s{s_t}")
    a.I(f"s_lshr_b32 s{s_eb}, s5, 2")
    a.I(f"s_cmp_lt_u32 s{S_WAVE}, 8")
    a.I(f"s_cbranch_scc1 {name}_comp")
    save_s = sa.n
    va = Alloc(1, 168)
    tmp = va.get(4)
    srdc = sa.get(4, 4); srdw = sa.get(4, 4); srdx = sa.get(4, 4)
    s_lw = sa.get(); s_row = sa.get(); s_wbr = sa.get(); s_wbc = sa.get(); s_wbk = sa.get(); s_kv = sa.get()
    a.I(f"s_sub_u32 s{s_lw}, s{S_WAVE}, 8")
    a.I(f"s_lshl_b32 s{s_row}, s{s_tb}, 7")
    a.I(f"s_lshl_b32 s{s_t}, s{s_lw}, 5")
    a.I(f"s_add_u32 s{s_row}, s{s_row}, s{s_t}")
    a.I(f"s_lshr_b32 s{s_t}, s{s_lw}, 1")
    a.I(f"s_mul_i32 s{s_wbr}, s{s_t}, {N*SUB}")
    a.I(f"s_and_b32 s{s_t2}, s{s_lw}, 1")
    a.I(f"s_lshl_b32 s{s_t2}, s{s_t2}, 12")
    a.I(f"s_add_u32 s{s_wbr}, s{s_wbr}, s{s_t2}")
    a.I(f"s_add_u32 s{s_wbc}, s{s_wbr}, {CB}")
    a.I(f"s_lshl_b32 s{s_wbk}, s{s_lw}, 11")
    a.I(f"s_lshl_b32 s{s_kv}, s4, 2")
    a.I(f"s_lshr_b32 s6, s5, 3")
    a.I(f"s_add_u32 s{s_kv}, s{s_kv}, s6")
    a.I(f"s_mul_i32 s{s_kv}, s{s_kv}, {KV_HSTRIDE}")
    a.I(f"s_add_u32 s{s_kv}, s{s_kv}, s{s_wbk}")
    a.I(f"s_add_u32 s{s_kv}, s{s_kv}, {WS_KV + 4096}")
    a.I(f"s_add_u32 s{s_wbk}, s{s_wbk}, {KB}")
    gK = lset_lin(a, va, sa, srdw, s_kv, 2, 8192, s_wbk)
    skew = cfg.get("skew", 0)
    gK.delay = skew
    gR = lset_rm(a, va, sa, srdc, s_row, 4, 4096, s_wbr, tmp)
    rot = cfg.get("rot", 0) & 1
    s_sh4 = sa.get(); s_sh8 = sa.get()
    a.I(f"s_and_b32 s{s_sh4}, s5, 3")
    a.I(f"s_and_b32 s{s_sh8}, s5, 7")
    gK.set_pf_lin(a, sa, cfg, s_kv, s_sh8, 256)
    if rot: gR.s_base = sa.get()
    else: gR.set_pf_rm(a, sa, cfg, s_row, s_eb, 4, 4096); gR.pflim = 2048*4096
    a.I(f"s_mov_b32 s{srdc+2}, {2048*4096}")
    a.I(f"s_mov_b32 s{srdc+3}, 0x00020000")
    a.I(f"s_mov_b32 s{srdw+2}, {WS_OF}")
    a.I(f"s_mov_b32 s{srdw+3}, 0x00020000")
    a.I("s_cmp_eq_u32 s7, 1")
    a.I(f"s_cbranch_scc1 {name}_ldv")
    save = (va.n, sa.n)
    s_g = sa.get()
    a.I(f"s_lshl_b32 s{s_g}, s{s_eb}, 2")
    a.I(f"s_add_u32 s{s_g}, s{s_g}, s{s_lw}")
    a.I(f"s_lshl_b32 s{s_g}, s{s_g}, 17")
    if WS_AF: a.I(f"s_add_u32 s{s_g}, s{s_g}, {WS_AF}")
    gC = lset_lin(a, va, sa, srdw, s_g, 4, 4096, s_wbc)
    if rot: gC.s_base = sa.get()
    else: gC.set_pf_lin(a, sa, cfg, s_g, s_sh4, 1024)
    a.I("s_waitcnt lgkmcnt(0)")
    a.I(f"s_mov_b64 s[{srdc}:{srdc+1}], s[{P_CR}:{P_CR+1}]")
    a.I(f"s_mov_b64 s[{srdw}:{srdw+1}], s[{P_WS}:{P_WS+1}]")
    gm = cfg.get("gmask", 7)
    gW = [wset_k3(a, va, sa, cfg, False, s_lw)] if cfg.get("l2s") else []
    loader_main(a, "k2p", sa, [g for i, g in enumerate([gK, gR, gC]) if gm >> i & 1] + gW, T, N, T + skew, cfg, 1, warm_next(a, va, sa, cfg, 1, s_lw))
    hv = max(hv, va.hi); hs = max(hs, sa.hi)
    a.L(f"{name}_ldv")
    va.n, sa.n = save
    s_col = sa.get(); s_kr = sa.get()
    a.I(f"s_lshl_b32 s{s_col}, s{s_eb}, 8")
    a.I(f"s_lshl_b32 s{s_t}, s{s_t}, 7")
    a.I(f"s_add_u32 s{s_col}, s{s_col}, s{s_t}")
    a.I(f"s_lshr_b32 s{s_kr}, s{s_t2}, 7")
    gC = lset_tr(a, va, sa, srdx, s_kr, s_col, 2048, s_wbc, tmp)
    if rot: gC.s_base = sa.get()
    else:
        a.I(f"s_lshl_b32 s{s_t}, s{s_eb}, 8")
        gC.set_pf_tr(a, sa, cfg, s_t, s_lw, s_sh4, 2048); gC.pflim = 2048*2048
    a.I(f"s_mov_b32 s{srdx+2}, {2048*2048}")
    a.I(f"s_mov_b32 s{srdx+3}, 0x00020000")
    a.I("s_waitcnt lgkmcnt(0)")
    a.I(f"s_mov_b64 s[{srdc}:{srdc+1}], s[{P_CI}:{P_CI+1}]")
    a.I(f"s_mov_b64 s[{srdw}:{srdw+1}], s[{P_WS}:{P_WS+1}]")
    a.I(f"s_mov_b64 s[{srdx}:{srdx+1}], s[{P_AX}:{P_AX+1}]")
    gW = [wset_k3(a, va, sa, cfg, True, s_lw)] if cfg.get("l2s") else []
    loader_main(a, "k2v", sa, [g for i, g in enumerate([gK, gR, gC]) if gm >> i & 1] + gW, T, N, T + skew, cfg, 1, warm_next(a, va, sa, cfg, 1, s_lw))
    hv = max(hv, va.hi); hs = max(hs, sa.hi)
    a.L(f"{name}_comp")
    if cfg.get("prio_g3"): a.I(f"s_setprio {cfg['prio_g3']}")
    sa.n = save_s
    va = Alloc(1, 168)
    tmp = va.get(3); vst = va.get(2)
    srdo = sa.get(4, 4)
    s_wm = sa.get(); s_wn = sa.get(); s_b = sa.get(); s_o = sa.get()
    a.I(f"s_bfe_u32 s{s_wm}, s{S_WAVE}, 0x10001")
    a.I(f"s_and_b32 s{s_wn}, s{S_WAVE}, 1")
    a.I(f"s_mul_i32 s{s_b}, s{s_wm}, {N*SUB}")
    R = RdRM(a, va, s_b, lambda m: m * 4096, tmp)
    regs = gemm_regs(va, 2, 2)
    acc = regs[0]
    a.I(f"s_lshl_b32 s{s_o}, s{s_tb}, 1")
    a.I(f"s_add_u32 s{s_o}, s{s_o}, s{s_wm}")
    a.I(f"s_lshl_b32 s{s_o}, s{s_o}, 6")
    a.I(f"s_lshl_b32 s{s_t}, s{s_eb}, 2")
    a.I(f"s_add_u32 s{s_o}, s{s_o}, s{s_t}")
    a.I(f"s_lshl_b32 s{s_o}, s{s_o}, 11")
    a.I(f"s_mov_b32 s{srdo+2}, {WS_END}")
    a.I(f"s_mov_b32 s{srdo+3}, 0x00020000")
    def mk_blocks(isv):
        blocks = []
        for m in range(2):
            for n in range(2):
                d = acc[m][n]
                ops = pack_ops(d, d, neg=isv, swap=isv)
                for j in range(2):
                    ops.append(f"buffer_store_dwordx4 {v(d+4*j,4)}, {v(vst+m)}, {s(srdo,4)}, s{s_o if n == 0 else s_t2} offen offset:{j*(2048 if isv else 1024)}{cfg.get('stv' if isv else 'stp', stm)}")
                blocks.append(ops)
        return blocks
    pace = cfg.get("pace", 0)
    l2w = [cfg.get("l2a"), cfg.get("l2b")]
    if l2w[0] is not None:
        assert cfg.get("m3", 0)
        srdl = sa.get(4, 4); s_l = sa.get(); vl = va.get(); vdum = va.get()
    def mk_hook(isv):
        if l2w[0] is None: return None
        a.I(f"s_lshl_b32 s{s_l}, s5, 2")
        a.I(f"s_add_u32 s{s_l}, s{s_l}, s{S_WAVE}")
        a.I(f"s_sub_u32 s{s_l}, s{s_l}, 4")
        a.I(f"s_lshl_b32 s{s_l}, s{s_l}, {14 if isv else 13}")
        if isv:
            a.I(f"v_lshrrev_b32 {v(vl)}, 3, v0")
            a.I(f"v_lshlrev_b32 {v(vl)}, 4, {v(vl)}")
            a.I(f"v_and_or_b32 {v(vl)}, v0, 7, {v(vl)}")
            a.I(f"v_lshlrev_b32 {v(vl)}, 7, {v(vl)}")
        else:
            a.I(f"v_lshlrev_b32 {v(vl)}, 7, v0")
            a.I(f"s_add_u32 s{s_l}, s{s_l}, {1 << 20}")
        pp = P_WI if isv else P_WO
        a.I(f"s_mov_b64 s[{srdl}:{srdl+1}], s[{pp}:{pp+1}]")
        a.I(f"s_mov_b32 s{srdl+2}, {1024*2048}")
        a.I(f"s_mov_b32 s{srdl+3}, 0x00020000")
        def ld(j):
            a.I(f"buffer_load_dword {v(vdum)}, {v(vl)}, {s(srdl,4)}, s{s_l} offen offset:{1024 if isv and j == 0 else 0}")
            if j == 0 and not isv: a.I(f"s_sub_u32 s{s_l}, s{s_l}, {1 << 20}")
        niter = (T - 1) // N
        def hook(buf, s_cnt, inloop=True):
            for j in range(2):
                st_ = l2w[j]
                if st_ % N != buf or (st_ < niter * N) != inloop: continue
                if not inloop: ld(j); continue
                lb = f"{name}_l2{int(isv)}{j}"
                a.I(f"s_cmp_eq_u32 s{s_cnt}, {niter - st_ // N}")
                a.I(f"s_cbranch_scc0 {lb}")
                ld(j)
                a.L(lb)
        return hook
    a.I("s_cmp_eq_u32 s7, 1")
    a.I(f"s_cbranch_scc1 {name}_cv")
    save = (va.n, sa.n)
    a.I(f"s_lshl_b32 s{s_t}, s{s_wn}, 11")
    a.I(f"s_add_u32 s{s_o}, s{s_o}, s{s_t}")
    a.I(f"s_add_u32 s{s_o}, s{s_o}, {WS_PF}")
    a.I(f"s_add_u32 s{s_t2}, s{s_o}, 4096")
    a.I(f"v_lshlrev_b32 {v(vst)}, 4, v0")
    a.I(f"v_add_u32 {v(vst+1)}, 0x10000, {v(vst)}")
    a.I(f"s_lshl_b32 s{s_b}, s{s_wn}, 12")
    a.I(f"s_add_u32 s{s_b}, s{s_b}, {CB}")
    C = RdFM(a, va, s_b, lambda n: n * N * SUB, tmp)
    a.I("s_waitcnt lgkmcnt(0)")
    a.I(f"s_mov_b64 s[{srdo}:{srdo+1}], s[{P_WS}:{P_WS+1}]")
    last = gemm_compute(a, "k2p", sa, R, C, 2, 2, True, T, N, zero_acc(a), regs, cfg, off=cfg.get("g3off", 0), pace=pace, hook=mk_hook(False))
    last(mk_blocks(False), xbar=skew)
    stamp_out(a, 1)
    a.I("s_endpgm")
    hv = max(hv, va.hi); hs = max(hs, sa.hi)
    a.L(f"{name}_cv")
    va.n, sa.n = save
    a.I(f"s_lshl_b32 s{s_t}, s{s_wn}, 10")
    a.I(f"s_add_u32 s{s_o}, s{s_o}, s{s_t}")
    a.I(f"s_add_u32 s{s_o}, s{s_o}, {WS_VF}")
    a.I(f"s_add_u32 s{s_t2}, s{s_o}, 4096")
    a.I(f"v_bfe_u32 {v(tmp)}, v0, 4, 1")
    a.I(f"v_lshlrev_b32 {v(tmp)}, 5, {v(tmp)}")
    a.I(f"v_lshrrev_b32 {v(tmp+1)}, 5, v0")
    a.I(f"v_lshl_or_b32 {v(tmp)}, {v(tmp+1)}, 4, {v(tmp)}")
    a.I(f"v_and_or_b32 {v(tmp)}, v0, 15, {v(tmp)}")
    a.I(f"v_lshlrev_b32 {v(vst)}, 4, {v(tmp)}")
    a.I(f"v_add_u32 {v(vst+1)}, 0x10000, {v(vst)}")
    a.I(f"s_mov_b32 s{s_b}, {CB}")
    C = RdTR(a, va, sa, s_b, N * SUB, "parts", s_wn, tmp)
    a.I("s_waitcnt lgkmcnt(0)")
    a.I(f"s_mov_b64 s[{srdo}:{srdo+1}], s[{P_WS}:{P_WS+1}]")
    last = gemm_compute(a, "k2v", sa, R, C, 2, 2, True, T, N, zero_acc(a), regs, cfg, off=cfg.get("g3off", 0), pace=pace, hook=mk_hook(True))
    last(mk_blocks(True), xbar=skew)
    stamp_out(a, 1)
    a.I("s_endpgm")
    hv = max(hv, va.hi); hs = max(hs, sa.hi)
    kernel_tail(a, name)
    return dict(name=name, grid=256, block=768, lds=5*N*SUB, vgpr=hv, sgpr=hs)

def gen_k3(a, cfg):
    name = "k3_kernel"
    N = 5; T = 16
    stm = cfg.get("st3", "")
    RB = 0; CB = 2 * N * SUB
    kernel_head(a, name, 256)
    if cfg.get("m3", 0):
        a.I("s_and_b32 s7, s4, 1")
        a.I("s_and_b32 s6, s4, 6")
        a.I("s_lshl_b32 s6, s6, 1")
    else:
        a.I("s_lshr_b32 s7, s4, 2")
        a.I("s_and_b32 s6, s4, 3")
        a.I("s_lshl_b32 s6, s6, 2")
    a.I("s_and_b32 s4, s5, 3")
    a.I("s_add_u32 s6, s6, s4")
    a.I("s_lshr_b32 s5, s5, 2")
    a.I(f"s_cmp_lt_u32 s{S_WAVE}, 4")
    a.I(f"s_cbranch_scc1 {name}_comp")
    va = Alloc(1, 256); sa = Alloc(S_FREE0, 76)
    tmp = va.get(4)
    srdw = sa.get(4, 4); srdb = sa.get(4, 4)
    s_lw = sa.get(); s_wbr = sa.get(); s_wbc = sa.get(); s_t = sa.get(); s_t2 = sa.get(); s_g = sa.get()
    a.I(f"s_sub_u32 s{s_lw}, s{S_WAVE}, 4")
    a.I(f"s_lshr_b32 s{s_t}, s{s_lw}, 1")
    a.I(f"s_mul_i32 s{s_wbr}, s{s_t}, {N*SUB}")
    a.I(f"s_and_b32 s{s_t2}, s{s_lw}, 1")
    a.I(f"s_lshl_b32 s{s_t2}, s{s_t2}, 12")
    a.I(f"s_add_u32 s{s_wbr}, s{s_wbr}, s{s_t2}")
    a.I(f"s_add_u32 s{s_wbc}, s{s_wbr}, {CB}")
    a.I(f"s_lshl_b32 s{s_g}, s6, 2")
    a.I(f"s_add_u32 s{s_g}, s{s_g}, s{s_lw}")
    a.I(f"s_lshl_b32 s{s_g}, s{s_g}, 16")
    a.I(f"s_mul_i32 s4, s7, {WS_VF - WS_OF}")
    a.I(f"s_add_u32 s{s_g}, s{s_g}, s4")
    a.I(f"s_add_u32 s{s_g}, s{s_g}, {WS_OF}")
    gR = lset_lin(a, va, sa, srdw, s_g, 4, 4096, s_wbr)
    a.I(f"s_mov_b32 s{srdw+2}, {WS_END}")
    a.I(f"s_mov_b32 s{srdw+3}, 0x00020000")
    a.I(f"s_mov_b32 s{srdb+2}, {1024*2048}")
    a.I(f"s_mov_b32 s{srdb+3}, 0x00020000")
    a.I("s_cmp_eq_u32 s7, 1")
    a.I(f"s_cbranch_scc1 {name}_ldy")
    save = (va.n, sa.n)
    s_col = sa.get(); s_kr = sa.get()
    a.I(f"s_lshl_b32 s{s_col}, s5, 8")
    a.I(f"s_lshl_b32 s{s_t}, s{s_t}, 7")
    a.I(f"s_add_u32 s{s_col}, s{s_col}, s{s_t}")
    a.I(f"s_lshr_b32 s{s_kr}, s{s_t2}, 7")
    gC = lset_tr(a, va, sa, srdb, s_kr, s_col, 2048, s_wbc, tmp)
    a.I("s_waitcnt lgkmcnt(0)")
    a.I(f"s_mov_b64 s[{srdw}:{srdw+1}], s[{P_WS}:{P_WS+1}]")
    a.I(f"s_mov_b64 s[{srdb}:{srdb+1}], s[{P_WO}:{P_WO+1}]")
    loader_main(a, "k3o", sa, [gR, gC], T, N, T, cfg, 2)
    hv = va.hi; hs = sa.hi
    a.L(f"{name}_ldy")
    va.n, sa.n = save
    s_r2 = sa.get()
    a.I(f"s_lshl_b32 s{s_r2}, s5, 7")
    a.I(f"s_lshl_b32 s{s_t}, s{s_lw}, 5")
    a.I(f"s_add_u32 s{s_r2}, s{s_r2}, s{s_t}")
    gC = lset_rm(a, va, sa, srdb, s_r2, 4, 2048, s_wbc, tmp)
    a.I("s_waitcnt lgkmcnt(0)")
    a.I(f"s_mov_b64 s[{srdw}:{srdw+1}], s[{P_WS}:{P_WS+1}]")
    a.I(f"s_mov_b64 s[{srdb}:{srdb+1}], s[{P_WI}:{P_WI+1}]")
    loader_main(a, "k3y", sa, [gR, gC], T, N, T, cfg, 2)
    hv = max(hv, va.hi); hs = max(hs, sa.hi)
    a.L(f"{name}_comp")
    va = Alloc(1, 256); sa = Alloc(S_FREE0, 76)
    tmp = va.get(3); vst = va.get(); vtw = va.get(2); vtr = va.get()
    srdo = sa.get(4, 4); srdw = sa.get(4, 4)
    s_wm = sa.get(); s_wn = sa.get(); s_b = sa.get(); s_o = sa.get(); s_t = sa.get(); s_tb = sa.get(); s_rb = sa.get()
    a.I(f"s_lshr_b32 s{s_wm}, s{S_WAVE}, 1")
    a.I(f"s_and_b32 s{s_wn}, s{S_WAVE}, 1")
    a.I(f"s_mul_i32 s{s_rb}, s{s_wm}, {N*SUB}")
    regs = gemm_regs(va, 2, 2)
    acc = regs[0]
    pk = va.get(64, 4)
    a.I(f"s_lshl_b32 s{s_tb}, s6, 1")
    a.I(f"s_add_u32 s{s_tb}, s{s_tb}, s{s_wm}")
    a.I(f"s_lshl_b32 s{s_o}, s{s_tb}, 18")
    a.I(f"s_lshl_b32 s{s_t}, s5, 8")
    a.I(f"s_add_u32 s{s_o}, s{s_o}, s{s_t}")
    a.I(f"s_lshl_b32 s{s_t}, s{s_wn}, 7")
    a.I(f"s_add_u32 s{s_o}, s{s_o}, s{s_t}")
    a.I(f"s_xor_b32 s{s_t}, s7, 1")
    a.I(f"s_lshl_b32 s{s_t}, s{s_t}, 11")
    a.I(f"s_add_u32 s{s_o}, s{s_o}, s{s_t}")
    a.I(f"s_mov_b32 s{srdo+2}, {2048*4096}")
    a.I(f"s_mov_b32 s{srdo+3}, 0x00020000")
    assert (T - 1) % N == 0
    a.I(f"s_mul_i32 s{s_t}, s{S_WAVE}, {N*SUB}")
    a.I(f"s_add_u32 s{s_t}, s{s_t}, {2*SUB}")
    a.I(f"v_bfe_u32 {v(tmp)}, v0, 4, 1")
    a.I(f"v_lshrrev_b32 {v(tmp+1)}, 5, v0")
    a.I(f"v_lshl_or_b32 {v(tmp+1)}, {v(tmp)}, 1, {v(tmp+1)}")
    a.I(f"v_xor_b32 {v(tmp+1)}, {v(tmp+1)}, v0")
    a.I(f"v_and_b32 {v(tmp+1)}, 7, {v(tmp+1)}")
    a.I(f"v_lshlrev_b32 {v(tmp+1)}, 4, {v(tmp+1)}")
    a.I(f"v_and_b32 {v(tmp)}, 15, v0")
    a.I(f"v_lshl_add_u32 {v(tmp)}, {v(tmp)}, 7, {v(tmp+1)}")
    a.I(f"v_add_u32 {v(vtw)}, s{s_t}, {v(tmp)}")
    a.I(f"v_xor_b32 {v(vtw+1)}, 64, {v(vtw)}")
    a.I(f"v_lshrrev_b32 {v(tmp)}, 3, v0")
    a.I(f"v_xor_b32 {v(tmp+1)}, {v(tmp)}, v0")
    a.I(f"v_and_b32 {v(tmp+1)}, 7, {v(tmp+1)}")
    a.I(f"v_lshlrev_b32 {v(vtr)}, 4, v0")
    a.I(f"v_add_u32 {v(vtr)}, s{s_t}, {v(vtr)}")
    a.I(f"v_lshlrev_b32 {v(vst)}, 12, {v(tmp)}")
    a.I(f"v_lshl_add_u32 {v(vst)}, {v(tmp+1)}, 4, {v(vst)}")
    pmf = cfg.get("pmf", 0)
    vid = va.get(6, 2) if pmf else None
    def pmfma(i):
        m, n = i >> 1, i & 1
        out = [f"s_waitcnt vmcnt({[6, 4, 0][i]})"] if i < 3 else []
        for tr in range(2):
            for tc in range(2):
                d = acc[m][n] + 8 * tr + 4 * tc
                out.append(f"{M16} {v(d,4)}, {v(vid + 2 - 2*tc,4)}, {v(pk+32+16*m+8*n+4*tr,4)}, {v(d,4)}")
        return out
    def padd(i):
        m, n = i >> 1, i & 1
        return [f"v_add_f32 {v(acc[m][n]+k)}, {v(pk+16*i+k)}, {v(acc[m][n]+k)}" for k in range(16)]
    def tail(last, isy):
        blocks = []
        def stores(m):
            ops = []
            for j in range(4):
                ops.append(f"s_waitcnt lgkmcnt({3-j})")
                ops.append(f"buffer_store_dwordx4 {v(pk+16*m+4*j,4)}, {v(vst)}, {s(srdo,4)}, s{s_o} offen{stm}")
                if m == 0 or j < 3: ops.append(f"s_add_u32 s{s_o}, s{s_o}, {8*4096}")
            return ops
        for m in range(2):
            for n in range(2):
                d = acc[m][n]
                ops = (padd(2*m+n) if isy and m == 0 and not pmf else []) + pack_ops(d, d, swap=True)
                if (m, n) == (1, 0): ops += stores(0)
                for j in range(2):
                    ops.append(f"ds_write_b128 {v(vtw+n)}, {v(d+4*j,4)} offset:{m*4096+j*2048}")
                if n == 1:
                    for j in range(4): ops.append(f"ds_read_b128 {v(pk+16*m+4*j,4)}, {v(vtr)} offset:{m*4096+j*1024}")
                    if m == 1: ops += stores(1)
                blocks.append(ops)
        if isy and pmf: last(blocks, post=pmfma)
        else: last(blocks, pre=(padd(2) + padd(3)) if isy else [])
        stamp_out(a, 2)
        a.I("s_endpgm")
    a.I(f"s_mul_i32 s{s_b}, s{s_wn}, {N*SUB}")
    a.I(f"s_add_u32 s{s_b}, s{s_b}, {CB}")
    a.I("s_cmp_eq_u32 s7, 1")
    a.I(f"s_cbranch_scc1 {name}_cy")
    save = (va.n, sa.n)
    R = RdFM(a, va, s_rb, lambda m: m * 4096, tmp, kind="o")
    C = RdTR(a, va, sa, s_b, 0, "halves", None, tmp)
    a.I("s_waitcnt lgkmcnt(0)")
    a.I(f"s_mov_b64 s[{srdo}:{srdo+1}], s[{P_OUT}:{P_OUT+1}]")
    last = gemm_compute(a, "k3o", sa, R, C, 2, 2, True, T, N, zero_acc(a), regs, cfg)
    tail(last, False)
    hv = max(hv, va.hi); hs = max(hs, sa.hi)
    a.L(f"{name}_cy")
    va.n, sa.n = save
    s_p = sa.get(); vp = va.get(2)
    a.I(f"s_lshl_b32 s{s_p}, s{s_tb}, 6")
    a.I(f"s_lshl_b32 s{s_t}, s5, 2")
    a.I(f"s_add_u32 s{s_p}, s{s_p}, s{s_t}")
    a.I(f"s_lshl_b32 s{s_t}, s{s_wn}, 1")
    a.I(f"s_add_u32 s{s_p}, s{s_p}, s{s_t}")
    a.I(f"s_lshl_b32 s{s_p}, s{s_p}, 11")
    a.I(f"s_add_u32 s{s_p}, s{s_p}, {WS_PF}")
    a.I(f"v_lshlrev_b32 {v(vp)}, 4, v0")
    a.I(f"v_add_u32 {v(vp+1)}, 0x10000, {v(vp)}")
    a.I(f"s_mov_b32 s{srdw+2}, {WS_END}")
    a.I(f"s_mov_b32 s{srdw+3}, 0x00020000")
    R = RdFM(a, va, s_rb, lambda m: m * 4096, tmp)
    C = RdRM(a, va, s_b, lambda n: n * 4096, tmp)
    a.I("s_waitcnt lgkmcnt(0)")
    a.I(f"s_mov_b64 s[{srdw}:{srdw+1}], s[{P_WS}:{P_WS+1}]")
    a.I(f"s_mov_b64 s[{srdo}:{srdo+1}], s[{P_OUT}:{P_OUT+1}]")
    def pload():
        for m in range(2):
            for n in range(2):
                for g in range(2):
                    a.I(f"buffer_load_dwordx4 {v(pk+32+16*m+8*n+4*g,4)}, {v(vp+m)}, {s(srdw,4)}, s{s_p} offen offset:{n*2048+g*1024}")
    def ltop(s_cnt):
        a.I(f"s_cmp_eq_u32 s{s_cnt}, 2")
        a.I("s_cbranch_scc0 k3y_t1")
        pload()
        a.L("k3y_t1")
        a.I(f"s_cmp_eq_u32 s{s_cnt}, 1")
        a.I("s_cbranch_scc0 k3y_t2")
        a.I("s_waitcnt vmcnt(0)")
        for i in range(32):
            a.I(f"v_lshlrev_b32 {v(pk+2*i)}, 16, {v(pk+32+i)}")
            a.I(f"v_and_b32 {v(pk+2*i+1)}, 0xffff0000, {v(pk+32+i)}")
        a.L("k3y_t2")
    def hook(buf, s_cnt):
        pst = cfg.get("pst", 11)
        if buf != pst % N: return
        a.I(f"s_cmp_eq_u32 s{s_cnt}, {(T - 1) // N - pst // N}")
        a.I("s_cbranch_scc0 k3y_t1")
        pload()
        a.L("k3y_t1")
    if pmf:
        a.I(f"v_bfe_u32 {v(tmp)}, v0, 2, 2")
        a.I(f"v_lshrrev_b32 {v(tmp+1)}, 4, v0")
        a.I(f"v_cmp_eq_u32 vcc, {v(tmp)}, {v(tmp+1)}")
        a.I(f"v_and_b32 {v(tmp)}, 1, v0")
        a.I(f"v_lshlrev_b32 {v(tmp)}, 4, {v(tmp)}")
        a.I(f"v_lshlrev_b32 {v(tmp)}, {v(tmp)}, 0x3f80" if False else f"v_mov_b32 {v(tmp+1)}, 0x3f80")
        a.I(f"v_lshlrev_b32 {v(tmp)}, {v(tmp)}, {v(tmp+1)}")
        a.I(f"v_cndmask_b32 {v(tmp)}, 0, {v(tmp)}, vcc")
        a.I(f"v_bfe_i32 {v(tmp+1)}, v0, 1, 1")
        a.I(f"v_and_b32 {v(vid+3)}, {v(tmp+1)}, {v(tmp)}")
        a.I(f"v_xor_b32 {v(vid+2)}, {v(vid+3)}, {v(tmp)}")
        for i in (0, 1, 4, 5): a.I(f"v_mov_b32 {v(vid+i)}, 0")
        last = gemm_compute(a, "k3y", sa, R, C, 2, 2, True, T, N, zero_acc(a), regs, cfg, hook=hook)
    else:
        last = gemm_compute(a, "k3y", sa, R, C, 2, 2, True, T, N, zero_acc(a), regs, cfg, loop_top=ltop)
    tail(last, True)
    hv = max(hv, va.hi); hs = max(hs, sa.hi)
    kernel_tail(a, name)
    return dict(name=name, grid=256, block=512, lds=4*N*SUB, vgpr=hv, sgpr=hs)

def emit(kernels, a):
    head = []
    for k in kernels:
        head.append(f"; @launch kernel={k['name']} grid=({k['grid']},1,1) block=({k['block']},1,1) lds={k['lds']}")
    head.append('.amdgcn_target "amdgcn-amd-amdhsa--gfx950"')
    head.append(".text")
    body = a.finalize()
    tail = ['.section .rodata,"a"']
    for k in kernels:
        vg = (k['vgpr'] + 7) // 8 * 8
        tail += [".p2align 6", f".amdhsa_kernel {k['name']}",
                 f"  .amdhsa_next_free_vgpr {vg}", f"  .amdhsa_next_free_sgpr {100 if STAMP else max(k['sgpr'], 32)}",
                 f"  .amdhsa_accum_offset {vg}", "  .amdhsa_group_segment_fixed_size 0", "  .amdhsa_kernarg_size 88",
                 "  .amdhsa_user_sgpr_count 2", "  .amdhsa_user_sgpr_kernarg_segment_ptr 1",
                 "  .amdhsa_system_sgpr_workgroup_id_x 1", ".end_amdhsa_kernel"]
    return "\n".join(head) + "\n" + body + "\n".join(tail) + "\n"

if __name__ == "__main__":
    a = Asm()
    cfg = {}
    for kv in sys.argv[2:]:
        k_, v_ = kv.split("=")
        if k_.startswith("st"): cfg[k_] = (" " + v_.replace("_", " ")) if v_ else ""
        else: cfg[k_] = int(v_) if v_.lstrip("-").isdigit() else v_
    ks = [gen_k1(a, cfg), gen_k2(a, cfg), gen_k3(a, cfg)]
    out = sys.argv[1] if len(sys.argv) > 1 else "concat_heads__spectral_fnet__mha_block__prompt.s"
    open(out, "w").write(emit(ks, a))
    print(ks)
```
